```python
import torch

def _softmax(x, axis=-1):
    return torch.softmax(x, dim=axis)

def _gelu(x):
    return torch.nn.functional.gelu(x, approximate='tanh')

def _silu(x):
    return torch.nn.functional.silu(x)

def _sigmoid(x):
    return torch.sigmoid(x)

def _layernorm(x, axis=-1, eps=1e-05):
    m = x.mean(dim=axis, keepdim=True)
    v = x.var(dim=axis, keepdim=True, unbiased=False)
    return (x - m) / torch.sqrt(v + eps)

def _scatter_add(tgt, idx, src, axis=0):
    return tgt.clone().index_add_(axis, idx, src)

def _segment_sum(src, seg, n):
    out = torch.zeros((n,) + src.shape[1:], dtype=src.dtype)
    return out.index_add_(0, seg, src)

def _pad(x, pw):
    flat = tuple((v for pair in reversed(pw) for v in pair))
    return torch.nn.functional.pad(x, flat)
kernel_name = 'gated_mix__memory_aug_recurrent_mem_tr__glu_gated_glu__prompt'

def setup_inputs():

    _w = lambda a: (lambda t: t.to(torch.bfloat16) if t.is_floating_point() else t)(torch.as_tensor(a))

    def _A_setup():
        B, S, Dm = (1, 2048, 512)
        H, Dh = (32, 128)
        M, seg = (8, 32)
        seg = min(seg, S)
        S = S // seg * seg
        return {'x': _w((lambda *s: torch.randn(*s, dtype=torch.bfloat16) * 0.05)(B, S, Dm)), 'mem0': _w((lambda *s: torch.randn(*s, dtype=torch.bfloat16) * 0.8)(B, M, Dm)), 'Wq': _w((lambda *s: torch.randn(*s, dtype=torch.bfloat16) * 3.2)(Dm, H, Dh) * Dm ** (-0.5)), 'Wk': _w((lambda *s: torch.randn(*s, dtype=torch.bfloat16) * 3.2)(Dm, H, Dh) * Dm ** (-0.5)), 'Wv': _w((lambda *s: torch.randn(*s, dtype=torch.bfloat16) * 0.8)(Dm, H, Dh) * Dm ** (-0.5)), 'Wo': _w((lambda *s: torch.randn(*s, dtype=torch.bfloat16) * 0.8)(H, Dh, Dm) * (H * Dh) ** (-0.5)), 'seg_len': seg}
    _A_in = _A_setup()

    def _B_setup():
        B, S, D, F = (1, 2048, 512, 1376)
        return {'x': _w((lambda *s: torch.randn(*s, dtype=torch.bfloat16) * 0.05)(B, S, D)), 'w_gate': _w((lambda *s: torch.randn(*s, dtype=torch.bfloat16) * 0.8)(D, F)), 'w_up': _w((lambda *s: torch.randn(*s, dtype=torch.bfloat16) * 0.05)(D, F)), 'w_down': _w((lambda *s: torch.randn(*s, dtype=torch.bfloat16) * 0.05)(F, D))}
    _B_in = _B_setup()
    return {'A_x': _A_in['x'], 'A_mem0': _A_in['mem0'], 'A_Wq': _A_in['Wq'], 'A_Wk': _A_in['Wk'], 'A_Wv': _A_in['Wv'], 'A_Wo': _A_in['Wo'], 'A_seg_len': _A_in['seg_len'], 'B_x': _B_in['x'], 'B_w_gate': _B_in['w_gate'], 'B_w_up': _B_in['w_up'], 'B_w_down': _B_in['w_down'], 'gate_w': _w((lambda *s: torch.randn(*s, dtype=torch.bfloat16) * 0.05)(512) * 16.0)}

def reference(A_x, A_mem0, A_Wq, A_Wk, A_Wv, A_Wo, A_seg_len, B_x, B_w_gate, B_w_up, B_w_down, gate_w):

    def _A_ref(x, mem0, Wq, Wk, Wv, Wo, seg_len):
        B, S, Dm = x.shape
        H, Dh = (Wq.shape[1], Wq.shape[2])
        M = mem0.shape[1]
        scale = Dh ** (-0.5)
        n_seg = S // seg_len
        L = M + seg_len
        idx = torch.arange(L)
        mask = (idx[:, None] < M) | (idx[:, None] >= idx[None, :])
        mem = mem0
        outs = []
        for s in range(n_seg):
            xs = x[:, s * seg_len:(s + 1) * seg_len, :].clone()
            h = torch.concatenate([mem, xs], axis=1)
            q = torch.einsum('btd,dhe->bhte', h, Wq)
            k = torch.einsum('btd,dhe->bhte', h, Wk)
            v = torch.einsum('btd,dhe->bhte', h, Wv)
            scores = torch.einsum('bhqe,bhke->bhqk', q, k) * scale
            scores = torch.where(mask[None, None], scores, -1000000000.0)
            p = _softmax(scores, axis=-1)
            o = torch.einsum('bhqk,bhke->bhqe', p, v)
            o = torch.einsum('bhte,hed->btd', o, Wo)
            mem = o[:, :M, :].clone()
            outs.append(o[:, M:, :])
        return torch.concatenate(outs, axis=1)

    def _B_ref(x, w_gate, w_up, w_down):
        g = torch.einsum('bsd,df->bsf', x, w_gate)
        u = torch.einsum('bsd,df->bsf', x, w_up)
        h = _sigmoid(g) * u
        return torch.einsum('bsf,fd->bsd', h, w_down)
    x = A_x
    g = _sigmoid((x * gate_w).sum(-1, keepdims=True))
    a = _A_ref(x, A_mem0, A_Wq, A_Wk, A_Wv, A_Wo, A_seg_len)
    b = _B_ref(x, B_w_gate, B_w_up, B_w_down)
    return g * a + (1 - g) * b
```

```python
import re

REG_RE = re.compile(r'^(-|abs\()?\s*([vas])(?:(\d+)|\[(\d+):(\d+)\])\)?$')


def vr(b, n=1):
    return f"v{b}" if n == 1 else f"v[{b}:{b + n - 1}]"


def ar(b, n=1):
    return f"a{b}" if n == 1 else f"a[{b}:{b + n - 1}]"


def sr(b, n=1):
    return f"s{b}" if n == 1 else f"s[{b}:{b + n - 1}]"


def ur(b, n=1):
    if b >= 256:
        assert b + n <= 512
        return ar(b - 256, n)
    assert b + n <= 256
    return vr(b, n)


def parse_reg(tok):
    tok = tok.strip()
    if tok == 'vcc':
        return [('s', 'vcc')]
    if tok == 'exec':
        return [('s', 'exec')]
    if tok == 'm0':
        return [('s', 'm0')]
    m = REG_RE.match(tok)
    if not m:
        return []
    kind = m.group(2)
    if m.group(3) is not None:
        lo = hi = int(m.group(3))
    else:
        lo, hi = int(m.group(4)), int(m.group(5))
    if kind == 'a':
        return [('v', 256 + i) for i in range(lo, hi + 1)]
    return [(kind, i) for i in range(lo, hi + 1)]


TRANS = ('v_exp_f32', 'v_log_f32', 'v_rcp_f32', 'v_rsq_f32', 'v_sqrt_f32', 'v_sin_f32', 'v_cos_f32',
         'v_rcp_iflag_f32')
NO_DST_S = ('s_cmp', 's_cbranch', 's_waitcnt', 's_barrier', 's_nop', 's_setprio', 's_sleep', 's_endpgm',
            's_branch', 's_bitcmp', 's_setreg')


def mfma_passes(op):
    if '32x32' in op:
        return 8
    if '16x16' in op:
        return 4
    raise ValueError(op)


class Ins:
    __slots__ = ('text', 'op', 'ops', 'mods', 'defs', 'uses', 'kind', 'cdef', 'ause', 'buse', 'cuse', 'target',
                 'nop', 'wait', 'auto')

    def __init__(self, text, tag=None):
        self.text = text
        self.auto = False
        if text.startswith('@need'):
            self.op = '@need'
            self.ops = []
            self.mods = ''
            self.kind = 'need'
            self.defs = []
            self.uses = [('t', x) for x in text.split()[1:]]
            self.ause = self.buse = self.cuse = ()
            self.target = None
            self.nop = None
            self.wait = None
            return
        self._init(text)
        if tag is not None:
            self.defs = list(self.defs) + [('t', tag)]

    def _init(self, text):
        t = text.strip()
        sp = t.split(None, 1)
        self.op = op = sp[0]
        rest = sp[1] if len(sp) > 1 else ''
        parts = [p.strip() for p in rest.split(',')] if rest else []
        mods = ''
        if parts:
            last = parts[-1].split(None, 1)
            if len(last) > 1 and not parts[-1].startswith(('vmcnt', 'lgkmcnt', 'expcnt', 'hwreg')):
                parts[-1] = last[0]
                mods = last[1]
        self.ops = parts
        self.mods = mods
        self.defs, self.uses = [], []
        self.ause = self.buse = self.cuse = ()
        self.target = None
        self.nop = None
        self.wait = None
        P = [parse_reg(p) for p in parts]

        def allregs(lst):
            r = []
            for x in lst:
                r += x
            return r

        if op == 's_nop':
            self.kind = 'nop'
            self.nop = int(parts[0], 0) + 1
        elif op == 's_waitcnt':
            self.kind = 'wait'
            w = {}
            for name, n in re.findall(r'(vmcnt|lgkmcnt|expcnt)\((\d+)\)', rest):
                w[name] = int(n)
            self.wait = w
        elif op in ('s_branch',) or op.startswith('s_cbranch'):
            self.kind = 'branch'
            self.target = parts[0]
            if 'vcc' in op:
                self.uses = [('s', 'vcc')]
        elif op == 's_endpgm':
            self.kind = 'end'
        elif op.startswith('s_load') or op.startswith('s_buffer_load'):
            self.kind = 'smem'
            self.defs = P[0]
            self.uses = allregs(P[1:])
        elif op in ('s_memtime', 's_memrealtime'):
            self.kind = 'smem'
            self.defs = P[0]
        elif op.startswith('s_'):
            self.kind = 'salu'
            if op.startswith(NO_DST_S):
                self.uses = allregs(P)
            else:
                self.defs = list(P[0])
                self.uses = allregs(P[1:])
                if 'saveexec' in op:
                    self.defs.append(('s', 'exec'))
                    self.uses.append(('s', 'exec'))
                if op in ('s_addk_i32', 's_mulk_i32'):
                    self.uses += P[0]
        elif op.startswith('v_smfmac'):
            self.kind = 'mfma'
            self.defs = P[0]
            self.ause, self.buse = P[1], P[2]
            self.cuse = P[0]
            self.uses = P[0] + P[1] + P[2] + P[3]
        elif op.startswith('v_mfma'):
            self.kind = 'mfma'
            self.defs = P[0]
            self.ause, self.buse, self.cuse = P[1], P[2], P[3]
            self.uses = P[1] + P[2] + P[3]
        elif op.startswith('v_cmp'):
            self.kind = 'valu'
            self.defs = P[0]
            self.uses = allregs(P[1:])
            assert not op.startswith('v_cmpx')
        elif op.startswith('v_readfirstlane') or op.startswith('v_readlane'):
            self.kind = 'valu'
            self.defs = P[0]
            self.uses = allregs(P[1:])
        elif op.startswith('v_permlane') and 'swap' in op:
            self.kind = 'valu'
            self.defs = P[0] + P[1]
            self.uses = P[0] + P[1]
        elif op.startswith('v_'):
            self.kind = 'valu'
            self.defs = list(P[0])
            srcs = P[1:]
            if op.startswith(('v_add_co', 'v_sub_co', 'v_addc_co', 'v_subb_co', 'v_subrev_co')):
                self.defs += P[1]
                srcs = P[2:]
            self.uses = allregs(srcs)
            if op.startswith(('v_fmac', 'v_mac', 'v_dot2c', 'v_writelane', 'v_pk_fmac')) or 'dpp' in op or \
                    'row_' in mods or 'quad_perm' in mods or 'sdwa' in op or 'dst_sel' in mods:
                self.uses += P[0]
            if op.startswith('v_cndmask') and len(parts) == 3:
                self.uses.append(('s', 'vcc'))
        elif op.startswith('ds_'):
            self.kind = 'ds'
            if op.startswith(('ds_read', 'ds_bpermute', 'ds_permute', 'ds_swizzle')) or '_rtn' in op:
                self.defs = P[0]
                self.uses = allregs(P[1:])
            else:
                self.uses = allregs(P)
        elif op.startswith('buffer_'):
            self.kind = 'vmem'
            is_lds = bool(re.search(r'\blds\b', mods))
            if op.startswith('buffer_load'):
                if is_lds:
                    self.uses = allregs(P) + [('s', 'm0')]
                else:
                    self.defs = P[0]
                    self.uses = allregs(P[1:])
            elif op.startswith('buffer_store'):
                self.uses = allregs(P)
            elif op.startswith('buffer_atomic'):
                self.uses = allregs(P)
                if re.search(r'\bsc0\b', mods):
                    self.defs = P[0]
            else:
                raise ValueError(text)
        elif op.startswith('global_'):
            self.kind = 'vmem'
            is_lds = '_lds_' in op
            if op.startswith('global_load'):
                if is_lds:
                    self.uses = allregs(P) + [('s', 'm0')]
                else:
                    self.defs = P[0]
                    self.uses = allregs(P[1:])
            elif op.startswith('global_store'):
                self.uses = allregs(P)
            elif op.startswith('global_atomic'):
                if re.search(r'\bsc0\b', mods):
                    self.defs = P[0]
                    self.uses = allregs(P[1:])
                else:
                    self.uses = allregs(P)
            else:
                raise ValueError(text)
        else:
            raise ValueError("unknown instruction: " + text)

    def is_wide_store(self):
        return self.kind == 'vmem' and ('store_dwordx3' in self.op or 'store_dwordx4' in self.op)

    def store_data(self):
        if self.op.startswith('buffer_store'):
            return parse_reg(self.ops[0])
        return parse_reg(self.ops[1])

    def is_dpp(self):
        return self.kind == 'valu' and ('dpp' in self.op or 'row_' in self.mods or 'quad_perm' in self.mods)

    def slots(self):
        if self.kind == 'need':
            return 0
        return self.nop if self.kind == 'nop' else 1


class Label:
    __slots__ = ('name',)

    def __init__(self, name):
        self.name = name


class Raw:
    __slots__ = ('text',)

    def __init__(self, text):
        self.text = text


def need_states(prod, cons):
    n = 0
    pk, ck = prod.kind, cons.kind
    if pk == 'valu':
        pd = set(prod.defs)
        pds = {r for r in pd if r[0] == 's'}
        pdv = {r for r in pd if r[0] == 'v'}
        cu = set(cons.uses)
        if pds:
            if ck == 'vmem' and pds & cu:
                n = max(n, 5)
            if ck == 'valu' and pds & cu:
                if cons.op.startswith(('v_readlane', 'v_writelane')):
                    n = max(n, 4)
                n = max(n, 2)
            if ck == 'branch' and pds & cu:
                n = max(n, 0)
        if pdv:
            if ck == 'mfma' and pdv & cu:
                n = max(n, 2)
            if ck == 'valu':
                if cons.is_dpp() and pdv & cu:
                    n = max(n, 2)
                if cons.op.startswith('v_permlane') and pdv & cu:
                    n = max(n, 2)
                if cons.op.startswith(('v_readlane', 'v_readfirstlane')) and pdv & cu:
                    n = max(n, 1)
                if prod.op.startswith(TRANS) and pdv & cu and not cons.op.startswith(TRANS):
                    n = max(n, 1)
                if prod.op.startswith(TRANS) and pdv & cu:
                    n = max(n, 1)
                if ('op_sel' in prod.mods or 'dst_sel' in prod.mods or 'sdwa' in prod.op) and \
                        pdv & (cu | set(cons.defs)):
                    n = max(n, 1)
                if prod.op.startswith('v_dot') and pdv & (cu | set(cons.defs)):
                    same = prod.op == cons.op
                    if not same:
                        n = max(n, 3)
                    else:
                        srcc = set(parse_reg(cons.ops[0])) if cons.op.startswith('v_dot2c') else \
                            set(parse_reg(cons.ops[3]))
                        ab = set(parse_reg(cons.ops[1])) | set(parse_reg(cons.ops[2]))
                        if pdv & ab:
                            n = max(n, 3)
            if prod.op.startswith('v_dot') and ck in ('vmem', 'ds', 'mfma') and pdv & cu:
                n = max(n, 3)
    elif pk == 'mfma':
        p = mfma_passes(prod.op)
        pd = set(prod.defs)
        if ck == 'mfma':
            cc = set(cons.cuse)
            if pd & cc:
                if cc == pd and cons.op == prod.op:
                    n = max(n, 0)
                else:
                    n = max(n, {4: 6, 8: 10}[p])
            if pd & (set(cons.ause) | set(cons.buse)):
                n = max(n, {4: 8, 8: 12}[p])
            if cons.op.startswith('v_smfmac') and pd & set(parse_reg(cons.ops[3])):
                n = max(n, {4: 8, 8: 12}[p])
            if pd & set(cons.defs) and not (pd & cc):
                n = max(n, {4: 8, 8: 12}[p])
        elif ck in ('valu', 'vmem', 'ds'):
            if pd & (set(cons.uses) | set(cons.defs)):
                n = max(n, {4: 8, 8: 12}[p])
            if ck == 'valu' and set(prod.cuse) & set(cons.defs):
                n = max(n, {4: 3, 8: 7}[p])
    elif pk == 'vmem':
        if prod.is_wide_store() and ck in ('valu', 'mfma', 'ds', 'vmem'):
            if set(prod.store_data()) & set(cons.defs):
                n = max(n, 2)
    elif pk == 'salu':
        if ('s', 'm0') in prod.defs and ck == 'vmem' and ('s', 'm0') in cons.uses:
            n = max(n, 1)
    return n


MAXWIN = 13


class Asm:
    def __init__(self):
        self.items = []
        self.uid = 0

    def __call__(self, text, tag=None):
        for line in text.strip().split('\n'):
            line = line.split(';')[0].strip()
            if not line:
                continue
            t = tag
            if '#' in line:
                line, t = [x.strip() for x in line.split('#')]
            if line.endswith(':'):
                self.items.append(Label(line[:-1]))
            else:
                self.items.append(Ins(line, t))

    def need(self, *tags):
        self.items.append(Ins('@need ' + ' '.join(tags)))

    def label(self, name):
        self.items.append(Label(name))

    def newlabel(self, stem):
        self.uid += 1
        return f"L_{stem}_{self.uid}"

    def raw(self, text):
        self.items.append(Raw(text))

    def comment(self, text):
        self.items.append(Raw("; " + text))

    def _cfg(self, items):
        labels = {}
        for i, it in enumerate(items):
            if isinstance(it, Label):
                labels[it.name] = i
        return labels

    def insert_waits(self):
        items = self.items
        labels = self._cfg(items)
        n = len(items)
        succ = [[] for _ in range(n)]
        for i, it in enumerate(items):
            if isinstance(it, Ins):
                if it.kind == 'end':
                    continue
                if it.kind == 'branch':
                    if it.target not in labels:
                        raise ValueError("unknown label " + it.target)
                    succ[i].append(labels[it.target])
                    if it.op == 's_branch':
                        continue
            if i + 1 < n:
                succ[i].append(i + 1)

        def merge(a, b):
            if a is None:
                return b, True
            changed = False
            vm, lg = dict(a[0]), dict(a[1])
            for src, dst in ((b[0], vm), (b[1], lg)):
                for r, k in src.items():
                    if r not in dst or k < dst[r]:
                        dst[r] = k
                        changed = True
            sm = a[2] or b[2]
            if sm != a[2]:
                changed = True
            return (vm, lg, sm), changed

        def transfer(it, st, record):
            vm, lg, sm = dict(st[0]), dict(st[1]), st[2]
            if not isinstance(it, Ins):
                return (vm, lg, sm)
            need_vm = need_lg = None
            touched = set(it.uses) | set(it.defs)
            if it.kind != 'wait':
                for r in touched:
                    if r in vm:
                        k = min(vm[r], 63)
                        need_vm = k if need_vm is None else min(need_vm, k)
                    if r in lg:
                        k = 0 if sm else min(lg[r], 15)
                        need_lg = k if need_lg is None else min(need_lg, k)
                if it.kind == 'vmem' and need_vm is not None:
                    if not any(r in vm for r in it.uses):
                        need_vm = None
                if it.kind == 'ds' and need_lg is not None and not sm:
                    if not any(r in lg for r in it.uses):
                        need_lg = None
            if record is not None:
                record.append((need_vm, need_lg))
            if need_vm is not None:
                vm = {r: k for r, k in vm.items() if k < need_vm}
            if need_lg is not None:
                lg = {r: k for r, k in lg.items() if k < need_lg}
                if need_lg == 0:
                    sm = False
            if it.kind == 'wait':
                w = it.wait
                if 'vmcnt' in w:
                    vm = {r: k for r, k in vm.items() if k < w['vmcnt']}
                if 'lgkmcnt' in w:
                    if w['lgkmcnt'] == 0:
                        lg = {}
                        sm = False
                    elif not sm:
                        lg = {r: k for r, k in lg.items() if k < w['lgkmcnt']}
            elif it.kind == 'vmem':
                vm = {r: min(k + 1, 64) for r, k in vm.items()}
                for r in it.defs:
                    vm[r] = 0
            elif it.kind == 'ds':
                lg = {r: min(k + 1, 16) for r, k in lg.items()}
                for r in it.defs:
                    lg[r] = 0
            elif it.kind == 'smem':
                lg = {r: min(k + 1, 16) for r, k in lg.items()}
                for r in it.defs:
                    lg[r] = 0
                sm = True
            return (vm, lg, sm)

        instate = [None] * n
        instate[0] = ({}, {}, False)
        work = [0]
        for name, i in labels.items():
            if name.endswith('_kernel'):
                instate[i] = ({}, {}, False)
                work.append(i)
        leaders = set([0]) | set(labels.values())
        for i, it in enumerate(items):
            if isinstance(it, Ins) and it.kind in ('branch', 'end') and i + 1 < n:
                leaders.add(i + 1)
        work = sorted(set(work))
        inwork = set(work)
        while work:
            b = work.pop(0)
            inwork.discard(b)
            st = instate[b]
            i = b
            while True:
                st = transfer(items[i], st, None)
                ss = succ[i]
                nxt_lin = None
                for s_ in ss:
                    if s_ in leaders:
                        m, ch = merge(instate[s_], st)
                        if ch:
                            instate[s_] = m
                            if s_ not in inwork:
                                work.append(s_)
                                inwork.add(s_)
                    else:
                        nxt_lin = s_
                if nxt_lin is None:
                    break
                i = nxt_lin
        out = []
        st = None
        for i, it in enumerate(items):
            if i in leaders:
                st = instate[i]
            if st is None:
                out.append(it)
                continue
            rec = []
            st = transfer(it, st, rec)
            if rec:
                nv, nl = rec[0]
                if nv is not None or nl is not None:
                    w = "s_waitcnt"
                    if nv is not None:
                        w += f" vmcnt({nv})"
                    if nl is not None:
                        w += f" lgkmcnt({nl})"
                    x = Ins(w)
                    x.auto = True
                    out.append(x)
            out.append(it)
            if isinstance(it, Ins) and (it.kind == 'end' or it.op == 's_branch'):
                st = None
        self.items = out

    def insert_nops(self):
        total = 0
        while True:
            items = self.items
            labels = self._cfg(items)
            br_to = {}
            for i, it in enumerate(items):
                if isinstance(it, Ins) and it.kind == 'branch':
                    br_to.setdefault(labels[it.target], []).append(i)

            def back(i, dist, cons, best):
                stack = [(i, dist)]
                seen = {}
                while stack:
                    j, d = stack.pop()
                    if d >= MAXWIN:
                        continue
                    if seen.get(j, 99) <= d:
                        continue
                    seen[j] = d
                    if j in br_to:
                        for b in br_to[j]:
                            it = items[b]
                            best = max(best, need_states(it, cons) - d)
                            stack.append((b, d + 1))
                    p = j - 1
                    if p < 0:
                        continue
                    it = items[p]
                    if isinstance(it, Ins):
                        if it.kind == 'end' or it.op == 's_branch':
                            continue
                        best = max(best, need_states(it, cons) - d)
                        stack.append((p, d + it.slots()))
                    else:
                        stack.append((p, d))
                return best

            out = []
            added = 0
            for i, it in enumerate(items):
                if isinstance(it, Ins) and it.kind in ('valu', 'mfma', 'vmem', 'ds'):
                    k = back(i, 0, it, 0)
                    if k > 0:
                        x = Ins(f"s_nop {k - 1}")
                        x.auto = True
                        out.append(x)
                        added += 1
                        out.append(it)
                        out.extend(items[i + 1:])
                        break
                out.append(it)
            self.items = out
            total += added
            if not added:
                break
        return total

    def insert_nops_fast(self):
        items = self.items
        labels = self._cfg(items)
        br_src = {}
        for i, it in enumerate(items):
            if isinstance(it, Ins) and it.kind == 'branch':
                br_src.setdefault(it.target, []).append(i)
        extra = [0] * (len(items) + 1)

        def back(i, cons):
            best = 0
            stack = [(i, 0)]
            seen = {}
            while stack:
                j, d = stack.pop()
                d += extra[j] if j != i else 0
                if d >= MAXWIN or seen.get(j, 99) <= d:
                    continue
                seen[j] = d
                itj = items[j]
                if isinstance(itj, Label) and itj.name in br_src:
                    for b in br_src[itj.name]:
                        stack.append((b, d + 1))
                p = j - 1
                if p < 0:
                    continue
                it = items[p]
                if isinstance(it, Ins):
                    if it.kind == 'end' or it.op == 's_branch':
                        continue
                    best = max(best, need_states(it, cons) - d)
                    stack.append((p, d + it.slots()))
                else:
                    stack.append((p, d))
            return best

        changed = True
        rounds = 0
        while changed:
            changed = False
            rounds += 1
            for i, it in enumerate(items):
                if isinstance(it, Ins) and it.kind in ('valu', 'mfma', 'vmem', 'ds'):
                    k = back(i, it) - extra[i]
                    if k > 0:
                        extra[i] += k
                        changed = True
            if rounds > 5:
                raise RuntimeError("nop insertion did not converge")
        out = []
        cnt = 0
        for i, it in enumerate(items):
            k = extra[i]
            while k > 0:
                c = min(k, 16)
                x = Ins(f"s_nop {c - 1}")
                x.auto = True
                out.append(x)
                k -= c
                cnt += 1
            out.append(it)
        self.items = out
        return cnt

    def finalize(self):
        self.insert_waits()
        return self.insert_nops_fast()

    def text(self):
        o = []
        for it in self.items:
            if isinstance(it, Label):
                o.append(it.name + ":")
            elif isinstance(it, Raw):
                o.append(it.text)
            elif it.kind != 'need':
                o.append("  " + it.text)
        return "\n".join(o) + "\n"

    def count(self):
        return sum(1 for it in self.items if isinstance(it, Ins) and it.kind != 'need')
```

```python
import re
from collections import deque
from asmlib import *
from layout import *
from common import *

L_M = 0
L_KX = 8192
L_QK = 16384
L_O = L_QK + 2 * 2304
L_DUMMY = L_O + 2304
L_W = 23552
NLF = 17
WSTRIDE = NLF * 2048
CHAIN_LDS = L_W + 4 * WSTRIDE

(V_FL, V_IDX, V_MP, V_MA, V_W, V_QKW, V_QB, V_KM, V_KX0, V_KX1, V_KXG, V_VXG, V_PF, V_OW, V_OA, V_PS, V_IN, V_MS,
 V_KMP, V_VMP) = range(20)
A = 20
ACC = 52
R = 84
VX = 124
T = 132
RES0 = 136

S_WQ, S_WK, S_WV, S_WO, S_M0 = 24, 28, 32, 36, 40
S_H = 44
S_STEP = 45
S_TAGM = 46
S_TAG = 47
S_RETRY = 48
S_MOFF = 49
S_MST = 50
S_KMO = 51
S_VMO = 52
S_KFO = 53
S_VFO = 54
S_FLKV = 55
S_FLMEM = 56
S_T0 = 57
S_HI = 58
S_ONES = 60
S_SELLO = 62
S_SELHI = 63
S_SC = 64
S_NSC = 66
S_M0KX = 67
S_PS = 68
S_IN = 76
S_T1 = 80
S_TS = 82
S_T2 = 84
S_PH = 86
PHASES = False


def ph(a, k):
    if PHASES:
        a(f"s_memtime {sr(S_PH + 2 * k, 2)}")


def ph_flush(a):
    if not PHASES:
        return
    a("s_waitcnt lgkmcnt(0)")
    for k in range(8):
        a(f"v_writelane_b32 v{T + 1}, s{S_PH + 2 * k}, {k}")
    a(f"s_lshl_b32 s{S_T1}, s{S_H}, 2")
    a(f"s_add_u32 s{S_T1}, s{S_T1}, s{S_WAVE}")
    a(f"s_lshl_b32 s{S_T1}, s{S_T1}, 6")
    a(f"s_add_u32 s{S_T1}, s{S_T1}, s{S_STEP}")
    a(f"s_lshl_b32 s{S_T1}, s{S_T1}, 8")
    a(f"s_add_u32 s{S_T1}, s{S_T1}, {hex(WS_TS2)}")
    a(f"buffer_store_dword v{T + 1}, v{V_FL}, {sr(S_WS, 4)}, s{S_T1} offen")

SCALE_LOG2E = 128 ** -0.5 * 1.4426950408889634


def f32hex(x):
    import struct
    return hex(struct.unpack('<I', struct.pack('<f', x))[0])


def placement():
    pl = {}
    res = []
    for mat in 'qkv':
        for J in range(8):
            for c in range(2):
                p = 2 * J + c
                if mat == 'q' and p < 5:
                    pl[(mat, c, J)] = ('lds', p)
                elif mat == 'q' and p >= 12:
                    pl[(mat, c, J)] = ('lds', p - 7)
                else:
                    res.append((mat, c, J))
    for t in range(8):
        for J2 in range(2):
            if t >= 4:
                pl[('o', t, J2)] = ('lds', 9 + 2 * (t - 4) + J2)
            else:
                res.append(('o', t, J2))
    assert len(res) == 47
    for i, f in enumerate(res):
        pl[f] = ('reg', RES0 + 8 * i if i < 15 else 256 + 8 * (i - 15))
    return pl


PL = placement()


def pos_of_row(row):
    return 2 * ((row >> 2) + 2 * (row & 1)) + ((row >> 1) & 1)


def row_of_pos(pos):
    g, hp = pos >> 1, pos & 1
    return 4 * (g & 1) + (g >> 1) + 2 * hp


def gamma_map(g1, half):
    return {(0, 0): 0, (0, 1): 1, (1, 0): 9, (1, 1): 8}[(g1, half)]


def consts(a, vtid):
    t0, t1, st = T, T + 1, S_T0

    def F(dst, f):
        lanefn(a, dst, lambda t: f(t & 63, t >> 6), vtid, t0, t1, st)

    n = lambda l: l & 15
    g = lambda l: l >> 4
    rowX = lambda l: 4 * (g(l) & 1) + (g(l) >> 1)
    F(V_IDX, lambda l, w: 0x4444 if n(l) < 8 else 0xEEEE)
    F(V_MP, lambda l, w: w * 2048 + l * 16)
    F(V_MA, lambda l, w: L_M + g(l) * 256 + pos_of_row(n(l) & 7) * 32 + (n(l) >> 3) * 16)
    F(V_W, lambda l, w: L_W + w * WSTRIDE + l * 16)
    F(V_QKW, lambda l, w: L_QK + rowX(l) * 288 + 64 * w + 4 * n(l))
    F(V_QB, lambda l, w: L_QK + (n(l) & 7) * 288 + g(l) * 16)

    def key(rho):
        return 4 * ((rho >> 2) & 1) + (rho >> 3) + 2 * (rho & 1)

    F(V_KM, lambda l, w: L_QK + 2304 + key(n(l)) * 288 + g(l) * 16)

    def kx(l, Tt):
        rho = n(l)
        tok = 16 * (rho >> 3) + 8 * Tt + (rho & 7)
        slot = (g(l) & 1) * 32 + tok
        slot ^= ((slot >> 4) & 1) << 3
        return L_KX + (g(l) >> 1) * 1024 + slot * 16

    F(V_KX0, lambda l, w: kx(l, 0))
    F(V_KX1, lambda l, w: kx(l, 1))
    F(V_KXG, lambda l, w: w * 2048 + (l ^ (((l >> 4) & 1) << 3)) * 16)
    F(V_VXG, lambda l, w: (w >> 1) * 4096 + (g(l) >> 1) * 1024 + (g(l) & 1) * 512 + (w & 1) * 256 + n(l) * 16)
    F(V_PF, lambda l, w: w * 2048 + l * 32)
    F(V_OW, lambda l, w: L_O + (4 * (g(l) & 1) + 2 * (g(l) >> 1)) * 288 + 64 * w + 4 * n(l))
    F(V_OA, lambda l, w: L_O + (n(l) & 7) * 288 + (2 * (g(l) >> 1) + gamma_map(g(l) & 1, n(l) >> 3)) * 16)
    F(V_PS, lambda l, w: l * 8)
    F(V_IN, lambda l, w: (l >> 3) * 512 + w * 128 + (l & 7) * 16)
    F(V_MS, lambda l, w: (w * 64 + (l >> 5) * 32 + (l & 7) * 4) if (l & 0x18) == 0 else OOB)
    F(V_KMP, lambda l, w: rowX(l) * 256 + 64 * w + 4 * n(l))
    F(V_VMP, lambda l, w: ((w >> 1) * 64 + 16 * (w & 1) + n(l)) * 16 + (2 * (g(l) & 1) + (g(l) >> 1)) * 4)
    a(f"v_and_b32 v{T}, 63, v{vtid}")
    a(f"v_lshlrev_b32 v{V_FL}, 2, v{T}")


def dest_frag4(a, frag, rbh, tmp):
    kind, where = PL[frag]
    if kind == 'reg' and where < 256:
        base = where + 4 * rbh
        return [base + i for i in range(4)], []
    regs = [tmp + i for i in range(4)]
    if kind == 'reg':
        fin = [f"v_accvgpr_write_b32 a{where - 256 + 4 * rbh + i}, v{tmp + i}" for i in range(4)]
    else:
        fin = [f"ds_write_b128 v{V_W}, {vr(tmp, 4)} offset:{where * 2048 + rbh * 1024}"]
    return regs, fin


def load_weights(a, vtid):
    vWQ, vWO0, vWO1 = V_KX0, V_KX1, V_KXG
    t0, t1, st = T, T + 1, S_T0
    n = lambda l: l & 15
    gb = lambda l: l >> 4
    lanefn(a, vWQ, lambda t: (32 * (gb(t & 63) & 1) + (gb(t & 63) >> 1)) * 8192 + 64 * (t >> 6) + 4 * n(t & 63),
           vtid, t0, t1, st)
    for half, reg, k in ((0, vWO0, 9), (1, vWO1, 7)):
        lanefn(a, reg, lambda t: (8 * k * (gb(t & 63) >> 1) + 4 * (gb(t & 63) & 1)) * 1024
               + (128 * (t >> 6) + 8 * n(t & 63)) * 2, vtid, t0, t1, st)
    lanefn(a, V_W, lambda t: L_W + (t >> 6) * WSTRIDE + (t & 63) * 16, vtid, t0, t1, st)
    sHq, sHo, so = S_T1, S_T1 + 1, S_T2
    a(f"s_lshl_b32 s{sHq}, s{S_H}, 8")
    a(f"s_lshl_b32 s{sHo}, s{S_H}, 17")
    srd = {'q': S_WQ, 'k': S_WK, 'v': S_WV}
    groups = []
    for mat in 'qkv':
        for J in range(8):
            for rbh in range(2):
                groups.append(('qkv', mat, J, rbh))
    for J2 in range(2):
        for rbh in range(2):
            groups.append(('o', None, J2, rbh))
    ring0, ringn = A, 104
    tmps = [VX, VX + 4]
    state = dict(head=0, tmp=0)
    pend = deque()

    def issue(gp, base):
        kind, mat, J, rbh = gp
        for i in range(4):
            rb = 4 * rbh + i
            for b in range(2):
                if kind == 'qkv':
                    row = 128 * (J >> 1) + 4 * (J & 1) + 64 * (rb & 1) + 16 * ((rb >> 1) & 1) + 8 * b + 2 * (rb >> 2)
                    a(f"s_add_u32 s{so}, s{sHq}, {hex(row * 8192)}")
                    a(f"buffer_load_dword v{base + 2 * i + b}, v{vWQ}, {sr(srd[mat], 4)}, s{so} offen")
                else:
                    half = rb & 1
                    kap = 2 * J + (rb >> 2)
                    row = 8 * (2 * kap + half) + 2 * ((rb >> 1) & 1) + b
                    a(f"s_add_u32 s{so}, s{sHo}, {hex(row * 1024)}")
                    a(f"buffer_load_dwordx4 {vr(base + 8 * i + 4 * b, 4)}, v{vWO1 if half else vWO0}, "
                      f"{sr(S_WO, 4)}, s{so} offen")

    def process(gp, base):
        kind, mat, J, rbh = gp
        if kind == 'qkv':
            for c in range(2):
                tmp = tmps[state['tmp']]
                state['tmp'] ^= 1
                regs, fin = dest_frag4(a, (mat, c, J), rbh, tmp)
                for i in range(4):
                    a(f"v_perm_b32 v{regs[i]}, v{base + 2 * i + 1}, v{base + 2 * i}, s{S_SELHI if c else S_SELLO}")
                for x in fin:
                    a(x)
        else:
            for t in range(8):
                tmp = tmps[state['tmp']]
                state['tmp'] ^= 1
                regs, fin = dest_frag4(a, ('o', t, J), rbh, tmp)
                for i in range(4):
                    a(f"v_perm_b32 v{regs[i]}, v{base + 8 * i + 4 + (t >> 1)}, v{base + 8 * i + (t >> 1)}, "
                      f"s{S_SELHI if t & 1 else S_SELLO}")
                for x in fin:
                    a(x)

    def fits(base, size):
        for _, b, s in pend:
            if base < b + s and b < base + size:
                return False
        return True

    for gp in groups:
        size = 8 if gp[0] == 'qkv' else 32
        while True:
            base = state['head']
            if base + size > ringn:
                base = 0
            if fits(base, size) and 8 * len(pend) + 8 <= 60:
                break
            g0, b0, _ = pend.popleft()
            process(g0, ring0 + b0)
        issue(gp, ring0 + base)
        pend.append((gp, base, size))
        state['head'] = base + size
    while pend:
        g0, b0, _ = pend.popleft()
        process(g0, ring0 + b0)


def load_mem0(a, vtid):
    t0, t1, st = T, T + 1, S_T0
    va = V_OA
    lanefn(a, va, lambda t: row_of_pos(((t & 63) >> 1) & 7) * 1024 + 256 * (t >> 6) + 128 * (t & 1)
           + 2 * ((t & 63) >> 4), vtid, t0, t1, st)
    P8 = ACC + 24
    land = R + 8
    for i in range(2):
        for x in range(8):
            a(f"buffer_load_ushort v{land + 8 * i + x}, v{va}, {sr(S_M0, 4)}, 0 offen offset:{8 * i + 16 * x}")
    for i in range(2):
        for x in range(0, 8, 2):
            a(f"v_lshl_or_b32 v{P8 + 4 * i + (x >> 1)}, v{land + 8 * i + x + 1}, 16, v{land + 8 * i + x}")


def frag_b(frag, ldsreg):
    kind, where = PL[frag]
    if kind == 'reg':
        return ur(where, 8)
    return vr(ldsreg[frag], 8)


def smf(d, areg, b):
    return f"v_smfmac_f32_16x16x64_bf16 {vr(d, 4)}, {vr(areg, 4)}, {b}, v{V_IDX}"


def ldsfrag_reads(slot, reg):
    return [f"ds_read_b128 {vr(reg, 4)}, v{V_W} offset:{slot * 2048}",
            f"ds_read_b128 {vr(reg + 4, 4)}, v{V_W} offset:{slot * 2048 + 1024}"]


def halves(acc):
    sw = [f"v_permlane32_swap_b32 v{acc}, v{acc + 1}", f"v_permlane32_swap_b32 v{acc + 2}, v{acc + 3}"]
    ad = [f"v_add_f32 v{acc}, v{acc}, v{acc + 1}", f"v_add_f32 v{acc + 2}, v{acc + 2}, v{acc + 3}"]
    return sw, ad


def retry_tail(a, top, out):
    a(f"s_cmp_eq_u32 s{S_RETRY}, 0")
    a(f"s_cbranch_scc1 {out}")
    a(f"s_sub_u32 s{S_RETRY}, s{S_RETRY}, 1")
    a(f"s_branch {top}")


def phase_w(a):
    for i in range(5):
        for x in ldsfrag_reads(i, R + 8 * i):
            a(x)
    for i in range(0, 24, 2):
        a(f"v_mov_b64 {vr(ACC + i, 2)}, 0")


def poll_m(a):
    P8 = ACC + 24
    top, out = spin_label_pair(a, "pm")
    a.label(top)
    a(f"buffer_load_dwordx4 {vr(P8, 4)}, v{V_MP}, {sr(S_WS, 4)}, s{S_MOFF} offen sc1")
    a(f"buffer_load_dwordx4 {vr(P8 + 4, 4)}, v{V_MP}, {sr(S_WS, 4)}, s{S_MOFF} offen offset:1024 sc1")
    a(f"ds_write_b128 v{V_MP}, {vr(P8, 4)} offset:{L_M}")
    a(f"v_max3_u32 v{T + 1}, v{P8}, v{P8 + 1}, v{P8 + 2}")
    a(f"v_max_u32 v{T + 1}, v{T + 1}, v{P8 + 3}")
    a(f"ds_write_b128 v{V_MP}, {vr(P8 + 4, 4)} offset:{L_M + 1024}")
    a(f"v_max3_u32 v{T + 1}, v{T + 1}, v{P8 + 4}, v{P8 + 5}")
    a(f"v_max3_u32 v{T + 1}, v{T + 1}, v{P8 + 6}, v{P8 + 7}")
    a(f"v_cmp_eq_u32 vcc, -1, v{T + 1}")
    a(f"s_cbranch_vccz {out}")
    retry_tail(a, top, out)
    a.label(out)


def kv_flag_check(a, use_flags):
    if not use_flags:
        return
    top, out = spin_label_pair(a, "kvf")
    a(f"s_add_u32 s{S_T1}, s{S_STEP}, 1")
    a.label(top)
    a(f"v_cmp_le_u32 vcc, 4, v{T}")
    a(f"s_bitcmp1_b64 vcc, s{S_T1}")
    a(f"s_cbranch_scc1 {out}")
    a(f"buffer_load_dword v{T}, v{V_FL}, {sr(S_WS, 4)}, s{S_FLKV} offen sc1")
    a("s_waitcnt vmcnt(0)")
    retry_tail(a, top, out)
    a.label(out)


def step(a, st_mod, use_flags, last=False):
    P8 = ACC + 24
    qa, ka, va = ACC, ACC + 8, ACC + 16
    a("s_waitcnt lgkmcnt(0)")
    ph(a, 0)
    a("s_barrier")
    for J in range(8):
        a(f"ds_read_b128 {vr(A + 4 * J, 4)}, v{V_MA} offset:{J * 1024}")
    ldsreg = {}
    for p in range(5):
        ldsreg[('q', p & 1, p >> 1)] = R + 8 * p
    for p in range(12, 16):
        ldsreg[('q', p & 1, p >> 1)] = R + 8 * (p - 12)

    flag_store = [f"v_mov_b32 v{T + 2}, s{S_STEP}",
                  f"buffer_store_dword v{T + 2}, off, {sr(S_WS, 4)}, s{S_FLMEM} sc1"]

    if not last:
        mq = [smf(qa + 4 * (p & 1), A + 4 * (p >> 1), frag_b(('q', p & 1, p >> 1), ldsreg)) for p in range(16)]
        fq = {}
        for i in range(4):
            fq[i] = ldsfrag_reads(5 + i, R + 8 * i)
        fq[4] = [f"s_mov_b32 m0, {L_DUMMY}",
                 f"buffer_load_dword v{V_PF}, {sr(S_WS, 4)}, s{S_VFO} offen lds"]
        if use_flags:
            fq[5] = [f"buffer_load_dword v{T}, v{V_FL}, {sr(S_WS, 4)}, s{S_FLKV} offen sc1"]
        fq[6] = flag_store
        weave(a, mq, fq)

    mk = [smf(ka + 4 * (p & 1), A + 4 * (p >> 1), frag_b(('k', p & 1, p >> 1), ldsreg)) for p in range(16)]
    fk = {}
    if not last:
        kx = []
        for ks in range(4):
            for Tt in range(2):
                kx.append(f"ds_read_b128 {vr(R + 16 * Tt + 4 * ks, 4)}, v{V_KX1 if Tt else V_KX0} offset:{ks * 2048}")
        kx.sort(key=lambda s: int(re.search(r'v\[(\d+)', s).group(1)))
        spread(fk, kx, 0, 2)
        s0, a0 = halves(qa)
        s1, a1 = halves(qa + 4)
        post = s0 + s1 + a0 + a1
        post += [f"v_cvt_pk_bf16_f32 v{qa + 1}, v{qa}, v{qa + 4}", f"v_cvt_pk_bf16_f32 v{qa + 3}, v{qa + 2}, v{qa + 6}"]
        post += [f"ds_write_b32 v{V_QKW}, v{qa + 1}", f"ds_write_b32 v{V_QKW}, v{qa + 3} offset:576"]
        spread(fk, post, 4, 2)
    else:
        fk[0] = flag_store
    weave(a, mk, fk)

    mv = [smf(va + 4 * (p & 1), A + 4 * (p >> 1), frag_b(('v', p & 1, p >> 1), ldsreg)) for p in range(16)]
    fv = {}
    s0, a0 = halves(ka)
    s1, a1 = halves(ka + 4)
    post = s0 + s1 + a0 + a1
    post += [f"v_cvt_pk_bf16_f32 v{T + 2}, v{ka}, v{ka + 4}", f"v_cvt_pk_bf16_f32 v{T + 3}, v{ka + 2}, v{ka + 6}"]
    if not last:
        post += [f"ds_write_b32 v{V_QKW}, v{T + 2} offset:2304", f"ds_write_b32 v{V_QKW}, v{T + 3} offset:{2304 + 576}"]
    p = spread(fv, post, 2, 2)
    pubk = [f"buffer_store_dword v{T + 2}, v{V_KMP}, {sr(S_WS, 4)}, s{S_KMO} offen sc1",
            f"buffer_store_dword v{T + 3}, v{V_KMP}, {sr(S_WS, 4)}, s{S_KMO} offen offset:512 sc1"]
    kmreg = [R + 32, R + 36, ka, ka + 4]
    if not last:
        fv.setdefault(p, []).extend(["s_waitcnt lgkmcnt(0)", "s_barrier"])
        rd = []
        for ks in range(4):
            rd.append(f"ds_read_b128 {vr(A + 4 * ks, 4)}, v{V_QB} offset:{ks * 64}")
            rd.append(f"ds_read_b128 {vr(kmreg[ks], 4)}, v{V_KM} offset:{ks * 64}")
        p = spread(fv, rd, p + 1, 2)
        p = spread(fv, pubk, p, 2)
        dma = [f"s_mov_b32 m0, s{S_M0KX}",
               f"buffer_load_dwordx4 v{V_KXG}, {sr(S_WS, 4)}, s{S_KFO} offen lds",
               f"buffer_load_dwordx4 v{V_KXG}, {sr(S_WS, 4)}, s{S_KFO} offen offset:1024 lds"]
        fv.setdefault(min(p, 15), []).extend(dma)
    else:
        spread(fv, pubk, p, 2)
    weave(a, mv, fv)

    vpost = []
    s0, a0 = halves(va)
    s1, a1 = halves(va + 4)
    vpost = s0 + s1 + a0 + a1
    vpost += [f"v_cvt_pk_bf16_f32 v{va}, v{va}, v{va + 2}", f"v_cvt_pk_bf16_f32 v{va + 4}, v{va + 4}, v{va + 6}"]
    pubv = [f"buffer_store_dword v{va}, v{V_VMP}, {sr(S_WS, 4)}, s{S_VMO} offen sc1",
            f"buffer_store_dword v{va + 4}, v{V_VMP}, {sr(S_WS, 4)}, s{S_VMO} offen offset:512 sc1"]
    if last:
        for x in vpost + pubv:
            a(x)
        return

    ph(a, 1)
    sT0, sT1, sM = ACC, ACC + 4, ACC + 24
    ms = []
    for ks in range(4):
        c = (lambda d: "0") if ks == 0 else (lambda d: vr(d, 4))
        ms.append(f"v_mfma_f32_16x16x32_bf16 {vr(sT0, 4)}, {vr(R + 4 * ks, 4)}, {vr(A + 4 * ks, 4)}, {c(sT0)}")
        ms.append(f"v_mfma_f32_16x16x32_bf16 {vr(sT1, 4)}, {vr(R + 16 + 4 * ks, 4)}, {vr(A + 4 * ks, 4)}, {c(sT1)}")
        ms.append(f"v_mfma_f32_16x16x32_bf16 {vr(sM, 4)}, {vr(kmreg[ks], 4)}, {vr(A + 4 * ks, 4)}, {c(sM)}")
    oreg = {('o', 4, 0): A + 16, ('o', 4, 1): A + 24, ('o', 5, 0): A, ('o', 5, 1): A + 8,
            ('o', 6, 0): R, ('o', 6, 1): R + 8, ('o', 7, 0): R + 16, ('o', 7, 1): R + 24}
    rdo = {f: ldsfrag_reads(PL[f][1], r) for f, r in oreg.items()}
    fs = {}
    spread(fs, rdo[('o', 4, 0)] + rdo[('o', 4, 1)], 0, 2)
    p = spread(fs, vpost, 2, 2)
    zero1 = [f"v_mov_b32 v{va + 1}, 0", f"v_mov_b32 v{va + 5}, 0",
             f"v_mov_b64 {vr(va + 2, 2)}, 0", f"v_mov_b64 {vr(va + 6, 2)}, 0"]
    p = spread(fs, zero1, p, 2)
    p = spread(fs, pubv, p, 2)
    weave(a, ms, fs)
    for x in rdo[('o', 5, 0)] + rdo[('o', 5, 1)] + rdo[('o', 6, 0)] + rdo[('o', 6, 1)]:
        a(x)

    sv = [sT0 + i for i in range(4)] + [sT1 + i for i in range(4)] + [sM, sM + 1]
    tm, tu = T + 2, T + 1
    a(f"v_max3_f32 v{tm}, v{sv[0]}, v{sv[1]}, v{sv[2]}")
    a(f"v_max3_f32 v{tm}, v{tm}, v{sv[3]}, v{sv[4]}")
    a(f"v_max3_f32 v{tm}, v{tm}, v{sv[5]}, v{sv[6]}")
    a(f"v_max3_f32 v{tm}, v{tm}, v{sv[7]}, v{sv[8]}")
    a(f"v_max_f32 v{tm}, v{tm}, v{sv[9]}")
    ones = R + 32
    a(f"v_mov_b32 v{tu}, v{tm}")
    a(f"v_mov_b64 {vr(ones, 2)}, {sr(S_ONES, 2)}")
    a(f"v_mov_b64 {vr(ones + 2, 2)}, {sr(S_ONES, 2)}")
    a(f"v_permlane32_swap_b32 v{tm}, v{tu}")
    a(f"v_max_f32 v{tm}, v{tm}, v{tu}")
    a(f"v_mov_b32 v{tu}, v{tm}")
    PT, PM = ACC + 8, ACC + 12
    a(f"v_mov_b32 v{PM + 1}, 0")
    a(f"v_mov_b64 {vr(PM + 2, 2)}, 0")
    a(f"v_permlane16_swap_b32 v{tm}, v{tu}")
    a(f"v_max_f32 v{tm}, v{tm}, v{tu}")
    a(f"v_mul_f32 v{tm}, s{S_NSC}, v{tm}")
    for i in (0, 2, 4, 6, 8):
        a(f"v_pk_fma_f32 {vr(sv[i], 2)}, {vr(sv[i], 2)}, {sr(S_SC, 2)}, {vr(tm, 2)} op_sel_hi:[1,1,0]")
    seq = []
    for i in range(10):
        seq.append(f"v_exp_f32 v{sv[i]}, v{sv[i]}")
    cv = [f"v_cvt_pk_bf16_f32 v{PT + j}, v{sv[2 * j]}, v{sv[2 * j + 1]}" for j in range(4)]
    cv.append(f"v_cvt_pk_bf16_f32 v{PM}, v{sv[8]}, v{sv[9]}")
    order = seq[0:3] + [cv[0]] + seq[3:5] + [cv[1]] + seq[5:7] + [cv[2]] + seq[7:9] + [cv[3]] + seq[9:10]
    for x in order:
        a(x)
    a("s_nop 0")
    a(cv[4])

    ph(a, 2)
    o0, o1, lsum = ACC, ACC + 4, ACC + 24
    a(f"v_mfma_f32_16x16x32_bf16 {vr(lsum, 4)}, {vr(PT, 4)}, {vr(ones, 4)}, 0")
    a(f"v_mfma_f32_16x16x32_bf16 {vr(o0, 4)}, {vr(PT, 4)}, {vr(VX, 4)}, 0")
    a(f"v_mfma_f32_16x16x32_bf16 {vr(o1, 4)}, {vr(PT, 4)}, {vr(VX + 4, 4)}, 0")
    a(f"v_mfma_f32_16x16x32_bf16 {vr(lsum, 4)}, {vr(PM, 4)}, {vr(ones, 4)}, {vr(lsum, 4)}")
    a(f"v_mfma_f32_16x16x32_bf16 {vr(o0, 4)}, {vr(PM, 4)}, {vr(va, 4)}, {vr(o0, 4)}")
    a(f"v_mfma_f32_16x16x32_bf16 {vr(o1, 4)}, {vr(PM, 4)}, {vr(va + 4, 4)}, {vr(o1, 4)}")
    a(f"buffer_load_dwordx4 {vr(VX, 4)}, v{V_VXG}, {sr(S_WS, 4)}, s{S_VFO} offen sc1")
    a(f"buffer_load_dwordx4 {vr(VX + 4, 4)}, v{V_VXG}, {sr(S_WS, 4)}, s{S_VFO} offen offset:2048 sc1")
    for x in rdo[('o', 7, 0)] + rdo[('o', 7, 1)]:
        a(x)
    hi = sr(S_HI, 2)
    la, lb = T + 2, T + 3
    a(f"v_cndmask_b32 v{la}, v{lsum}, v{lsum + 2}, {hi}")
    a(f"v_cndmask_b32 v{lb}, v{lsum + 1}, v{lsum + 3}, {hi}")
    a(f"v_rcp_f32 v{la}, v{la}")
    a(f"v_rcp_f32 v{lb}, v{lb}")
    a(f"v_cndmask_b32 v{o0}, v{o0}, v{o0 + 2}, {hi}")
    a(f"v_cndmask_b32 v{o0 + 1}, v{o0 + 1}, v{o0 + 3}, {hi}")
    a(f"v_cndmask_b32 v{o1}, v{o1}, v{o1 + 2}, {hi}")
    a(f"v_cndmask_b32 v{o1 + 1}, v{o1 + 1}, v{o1 + 3}, {hi}")
    a(f"v_mul_f32 v{o0}, v{o0}, v{la}")
    a(f"v_mul_f32 v{o1}, v{o1}, v{la}")
    a(f"v_mul_f32 v{o0 + 1}, v{o0 + 1}, v{lb}")
    a(f"v_mul_f32 v{o1 + 1}, v{o1 + 1}, v{lb}")
    a(f"v_cvt_pk_bf16_f32 v{la}, v{o0}, v{o1}")
    a(f"v_cvt_pk_bf16_f32 v{lb}, v{o0 + 1}, v{o1 + 1}")
    a(f"ds_write_b32 v{V_OW}, v{la}")
    a(f"ds_write_b32 v{V_OW}, v{lb} offset:288")
    for i in range(0, 32, 2):
        a(f"v_mov_b64 {vr(ACC + i, 2)}, 0")
    a("s_waitcnt lgkmcnt(0)")
    ph(a, 3)
    a("s_barrier")
    oA = R + 32
    a(f"ds_read_b128 {vr(oA, 4)}, v{V_OA}")
    a(f"ds_read_b128 {vr(oA + 4, 4)}, v{V_OA} offset:64")

    def post_o(t):
        d = ACC + 4 * t
        return [f"v_permlane32_swap_b32 v{d}, v{d + 1}", f"v_permlane32_swap_b32 v{d + 2}, v{d + 3}",
                f"v_add_f32 v{d}, v{d}, v{d + 1}", f"v_add_f32 v{d + 1}, v{d + 2}, v{d + 3}",
                f"v_and_or_b32 v{d}, v{d}, -2, s{S_TAG}",
                f"buffer_store_dwordx2 {vr(d, 2)}, v{V_PS}, {sr(S_WS, 4)}, s{S_PS + t} offen{st_mod}"]

    for t in range(8):
        for J2 in range(2):
            a(smf(ACC + 4 * t, oA + 4 * J2, frag_b(('o', t, J2), oreg)))
        if t >= 2:
            for x in post_o(t - 2):
                a(x)
    for x in post_o(6) + post_o(7):
        a(x)

    ph(a, 4)
    IN = A
    top, out = spin_label_pair(a, "pi")
    pre = []
    for i in range(5):
        pre += ldsfrag_reads(i, R + 8 * i)
    for x in pre:
        a(x)
    a.label(top)
    for k in range(4):
        a(f"buffer_load_dwordx4 {vr(IN + 4 * k, 4)}, v{V_IN}, {sr(S_WS, 4)}, s{S_IN + k} offen sc1")
    u = A + 16
    chk = lambda k: f"v_bitop3_b32 v{u + k}, v{IN + 4 * k}, v{IN + 4 * k + 2}, s{S_TAGM} bitop3:0x7e"
    pk = lambda d, s: f"v_pk_add_f32 {vr(d, 2)}, {vr(d, 2)}, {vr(s, 2)}"
    a(chk(0))
    a(chk(1))
    a(pk(IN, IN + 4))
    a(pk(IN + 2, IN + 6))
    a(chk(2))
    a(pk(IN, IN + 8))
    a(pk(IN + 2, IN + 10))
    a(chk(3))
    a(pk(IN, IN + 12))
    a(pk(IN + 2, IN + 14))
    a(f"v_or3_b32 v{u}, v{u}, v{u + 1}, v{u + 2}")
    a(f"v_bitop3_b32 v{u}, v{u}, v{u + 3}, 1 bitop3:0xa8")
    a(f"v_cmp_ne_u32 vcc, 0, v{u}")
    a(f"s_cbranch_vccz {out}")
    retry_tail(a, top, out)
    a.label(out)
    ph(a, 5)
    a(f"v_permlane32_swap_b32 v{IN}, v{IN + 1}")
    a(f"v_permlane32_swap_b32 v{IN + 2}, v{IN + 3}")
    a(f"v_add_f32 v{IN}, v{IN}, v{IN + 1}")
    a(f"v_add_f32 v{IN + 2}, v{IN + 2}, v{IN + 3}")
    a(f"v_add_f32_dpp v{IN}, v{IN}, v{IN} row_ror:8 row_mask:0xf bank_mask:0xf")
    a(f"v_add_f32_dpp v{IN + 2}, v{IN + 2}, v{IN + 2} row_ror:8 row_mask:0xf bank_mask:0xf")
    a(f"v_permlane16_swap_b32 v{IN}, v{IN + 2}")
    a(f"v_add_f32 v{IN}, v{IN}, v{IN + 2}")
    a(f"v_mov_b32 v{IN + 1}, v{IN}")
    a(f"v_permlane16_swap_b32 v{IN}, v{IN + 1}")
    a(f"v_cvt_pk_bf16_f32 v{IN}, v{IN}, v{IN + 1}")
    a(f"v_min_u32 v{IN}, -2, v{IN}")
    a(f"buffer_store_dword v{IN}, v{V_MS}, {sr(S_WS, 4)}, s{S_MST} offen{st_mod}")
    ph(a, 6)
    ph_flush(a)
    a(f"s_add_u32 s{S_STEP}, s{S_STEP}, 1")
    a(f"s_add_u32 s{S_MOFF}, s{S_MOFF}, 8192")
    a(f"s_add_u32 s{S_MST}, s{S_MST}, 8192")
    a(f"s_add_u32 s{S_KMO}, s{S_KMO}, 65536")
    a(f"s_add_u32 s{S_VMO}, s{S_VMO}, 65536")
    a(f"s_add_u32 s{S_KFO}, s{S_KFO}, 0x40000")
    a(f"s_add_u32 s{S_VFO}, s{S_VFO}, 0x40000")
    a(f"s_xor_b32 s{S_TAG}, s{S_TAG}, 1")
    a(f"s_not_b32 s{S_TAGM}, s{S_TAGM}")
    for i in range(0, 24, 2):
        a(f"v_mov_b64 {vr(ACC + i, 2)}, 0")


def stamp(a, slot, enable):
    if not enable:
        return
    l = a.newlabel("ts")
    a(f"s_cmp_lg_u32 s{S_WAVE}, 0")
    a(f"s_cbranch_scc1 {l}")
    for op, off in (("s_memtime", 0), ("s_memrealtime", 128)):
        a(f"{op} {sr(S_TS, 2)}")
        a("s_waitcnt lgkmcnt(0)")
        a(f"v_mov_b32 v{T + 2}, s{S_TS}")
        a(f"v_mov_b32 v{T + 3}, s{S_TS + 1}")
        a(f"s_lshl_b32 s{S_T1}, s{S_H}, 8")
        a(f"s_add_u32 s{S_T1}, s{S_T1}, {hex(WS_TS + slot * 8 + off)}")
        a(f"buffer_store_dwordx2 {vr(T + 2, 2)}, off, {sr(S_WS, 4)}, s{S_T1}")
    a.label(l)


def chain_role(a, st_mod="", use_flags=True, stamps=False, nsteps=63, dump=False):
    chain_pre(a, stamps)
    chain_body(a, st_mod, use_flags, stamps, nsteps, dump)


def chain_pre(a, stamps=False):
    vtid = 0
    make_srd(a, S_WQ, 'wq')
    make_srd(a, S_WK, 'wk')
    make_srd(a, S_WV, 'wv')
    make_srd(a, S_WO, 'wo')
    make_srd(a, S_M0, 'mem0')
    a(f"s_mov_b32 s{S_SELLO}, 0x05040100")
    a(f"s_mov_b32 s{S_SELHI}, 0x07060302")
    a("s_waitcnt lgkmcnt(0)")
    stamp(a, 0, stamps)
    load_weights(a, vtid)
    stamp(a, 1, stamps)


def chain_body(a, st_mod="", use_flags=True, stamps=False, nsteps=63, dump=False):
    vtid = 0
    load_mem0(a, vtid)
    a(f"v_mov_b32 v{R}, v{vtid}")
    P8 = ACC + 24
    consts(a, R)
    a(f"ds_write_b128 v{V_MP}, {vr(P8, 4)} offset:{L_M}")
    a(f"ds_write_b128 v{V_MP}, {vr(P8 + 4, 4)} offset:{L_M + 1024}")
    a(f"s_mov_b32 s{S_STEP}, 0")
    a(f"s_mov_b32 s{S_TAG}, 0")
    a(f"s_mov_b32 s{S_TAGM}, 0")
    a(f"s_mov_b32 s{S_RETRY}, 0x100000")
    a(f"s_mov_b32 s{S_MOFF}, {hex(WS_M)}")
    a(f"s_lshl_b32 s{S_T0}, s{S_H}, 8")
    a(f"s_add_u32 s{S_MST}, s{S_T0}, {hex(WS_M + 8192)}")
    a(f"s_add_u32 s{S_FLKV}, s{S_T0}, {hex(WS_FLAG + FL_KV)}")
    a(f"s_add_u32 s{S_FLMEM}, s{S_T0}, {hex(WS_FLAG + FL_MEM)}")
    a(f"s_lshl_b32 s{S_T0}, s{S_H}, 11")
    a(f"s_add_u32 s{S_KMO}, s{S_T0}, {hex(WS_KM)}")
    a(f"s_add_u32 s{S_VMO}, s{S_T0}, {hex(WS_VM)}")
    a(f"s_lshl_b32 s{S_T0}, s{S_H}, 13")
    a(f"s_add_u32 s{S_KFO}, s{S_T0}, {hex(WS_KF)}")
    a(f"s_add_u32 s{S_VFO}, s{S_T0}, {hex(WS_VF)}")
    a(f"s_mov_b32 s{S_HI}, 0")
    a(f"s_mov_b32 s{S_HI + 1}, -1")
    a(f"s_mov_b32 s{S_ONES}, 0x3f803f80")
    a(f"s_mov_b32 s{S_ONES + 1}, 0x3f803f80")
    a(f"s_mov_b32 s{S_SC}, {f32hex(SCALE_LOG2E)}")
    a(f"s_mov_b32 s{S_SC + 1}, {f32hex(SCALE_LOG2E)}")
    a(f"s_mov_b32 s{S_NSC}, {f32hex(-SCALE_LOG2E)}")
    a(f"s_lshl_b32 s{S_M0KX}, s{S_WAVE}, 11")
    a(f"s_add_u32 s{S_M0KX}, s{S_M0KX}, {L_KX}")
    a(f"s_lshl_b32 s{S_T0}, s{S_WAVE}, 17")
    a(f"s_lshl_b32 s{S_T1}, s{S_H}, 9")
    a(f"s_add_u32 s{S_T0}, s{S_T0}, s{S_T1}")
    for t in range(8):
        a(f"s_add_u32 s{S_PS + t}, s{S_T0}, {hex(WS_IN + t * 16384)}")
    a(f"s_lshl_b32 s{S_T0}, s{S_H}, 14")
    for k in range(4):
        a(f"s_add_u32 s{S_IN + k}, s{S_T0}, {hex(WS_IN + k * 4096)}")
    wait_ready(a, T + 2)
    if use_flags:
        a(f"s_mov_b32 s{S_STEP}, -1")
        a(f"buffer_load_dword v{T}, v{V_FL}, {sr(S_WS, 4)}, s{S_FLKV} offen sc1")
        kv_flag_check(a, True)
        a(f"s_mov_b32 s{S_STEP}, 0")
    a(f"s_mov_b32 m0, s{S_M0KX}")
    a(f"buffer_load_dwordx4 v{V_KXG}, {sr(S_WS, 4)}, s{S_KFO} offen lds")
    a(f"buffer_load_dwordx4 v{V_KXG}, {sr(S_WS, 4)}, s{S_KFO} offen offset:1024 lds")
    a(f"buffer_load_dwordx4 {vr(VX, 4)}, v{V_VXG}, {sr(S_WS, 4)}, s{S_VFO} offen sc1")
    a(f"buffer_load_dwordx4 {vr(VX + 4, 4)}, v{V_VXG}, {sr(S_WS, 4)}, s{S_VFO} offen offset:2048 sc1")
    a(f"s_add_u32 s{S_KFO}, s{S_KFO}, 0x40000")
    a(f"s_add_u32 s{S_VFO}, s{S_VFO}, 0x40000")
    a("s_waitcnt vmcnt(0) lgkmcnt(0)")
    phase_w(a)
    kv_flag_check(a, use_flags)
    stamp(a, 2, stamps)
    loop, entry_l = a.newlabel("step"), a.newlabel("step_in")
    a(f"s_branch {entry_l}")
    a.label(loop)
    kv_flag_check(a, use_flags)
    poll_m(a)
    a.label(entry_l)
    step(a, st_mod, use_flags)
    a(f"s_cmp_lt_u32 s{S_STEP}, {nsteps}")
    a(f"s_cbranch_scc1 {loop}")
    stamp(a, 3, stamps)
    poll_m(a)
    step(a, st_mod, use_flags, last=True)
    a("s_waitcnt vmcnt(0)")
    a("s_barrier")
    l = a.newlabel("fin")
    a(f"s_cmp_lg_u32 s{S_WAVE}, 0")
    a(f"s_cbranch_scc1 {l}")
    a(f"v_mov_b32 v{T + 2}, 64")
    a(f"v_mov_b32 v{T + 3}, 0")
    a(f"buffer_store_dword v{T + 2}, v{T + 3}, {sr(S_WS, 4)}, s{S_FLMEM} offen sc1")
    a.label(l)
    stamp(a, 4, stamps)
    if dump:
        a("s_barrier")
        a(f"s_lshl_b32 s{S_T0}, s{S_H}, 15")
        a(f"s_add_u32 s{S_T0}, s{S_T0}, {hex(WS_DBG)}")
        a(f"v_lshrrev_b32 v{A}, 2, v{V_FL}")
        a(f"v_lshlrev_b32 v{A}, 4, v{A}")
        a(f"s_lshl_b32 s{S_T1}, s{S_WAVE}, 10")
        a(f"v_add_u32 v{A}, s{S_T1}, v{A}")
        for i in range(6):
            a(f"ds_read_b128 {vr(A + 4, 4)}, v{A} offset:{i * 4096}")
            a(f"buffer_store_dwordx4 {vr(A + 4, 4)}, v{A}, {sr(S_WS, 4)}, s{S_T0} offen")
            a(f"s_add_u32 s{S_T0}, s{S_T0}, 4096")
            a("s_waitcnt vmcnt(0)")
```

```python
from asmlib import *
from layout import *

KA = dict(x=0, mem0=8, wq=16, wk=24, wv=32, wo=40, seglen=48, bx=56, wg=64, wu=72, wd=80, gw=88, out=96, dbg=104,
          ws=112)
SIZE = dict(x=2048 * 512 * 2, mem0=8 * 512 * 2, wq=512 * 4096 * 2, wk=512 * 4096 * 2, wv=512 * 4096 * 2,
            wo=4096 * 512 * 2, bx=2048 * 512 * 2, wg=512 * 1376 * 2, wu=512 * 1376 * 2, wd=1376 * 512 * 2,
            gw=512 * 2, out=2048 * 512 * 2, dbg=256, ws=WS_SIZE)

S_WS = 4
S_DBG = 8
S_XCC = 12
S_TICKET = 13
S_WAVE = 14
S_TMP = 15
S_ROLE = 20
S_MODE = 21
S_EXEC = 22
S_FREE = 24

OOB = 0x40000000


def make_srd(a, s, name):
    a(f"s_load_dwordx2 {sr(s, 2)}, s[0:1], {KA[name]}")
    a(f"s_mov_b32 s{s + 2}, {hex(SIZE[name])}")
    a(f"s_mov_b32 s{s + 3}, 0x20000")


def spin_label_pair(a, stem):
    return a.newlabel(stem + "_top"), a.newlabel(stem + "_out")


def entry(a, nwg=256, lds_scratch=0):
    a(f"s_cmp_ge_u32 s2, {nwg}")
    a("s_cbranch_scc1 L_exit")
    make_srd(a, S_WS, 'ws')
    make_srd(a, S_DBG, 'dbg')
    a(f"s_getreg_b32 s{S_XCC}, hwreg(HW_REG_XCC_ID)")
    a(f"s_and_b32 s{S_XCC}, s{S_XCC}, 7")
    a("v_lshrrev_b32 v1, 6, v0")
    a("s_nop 0")
    a(f"v_readfirstlane_b32 s{S_WAVE}, v1")
    a("v_mov_b32 v2, -1")
    a("v_mov_b32 v3, -1")
    a("v_mov_b32 v4, 0")
    a("v_lshlrev_b32 v1, 3, v0")
    a(f"s_lshl_b32 s{S_TMP}, s2, 11")
    a(f"s_add_u32 s{S_TMP + 1}, s{S_TMP}, {hex(WS_IN)}")
    a(f"s_add_u32 s{S_TMP + 2}, s{S_TMP}, {hex(WS_M)}")
    a(f"s_lshl_b32 s{S_TMP + 3}, s2, 7")
    a(f"s_add_u32 s{S_TMP + 3}, s{S_TMP + 3}, {hex(WS_FLAG)}")
    a("v_lshlrev_b32 v5, 2, v0")
    a(f"v_mov_b32 v6, {hex(OOB)}")
    a("v_cmp_gt_u32 vcc, 32, v0")
    a("v_cndmask_b32 v5, v6, v5, vcc")
    a("s_waitcnt lgkmcnt(0)")
    a(f"buffer_store_dwordx2 v[2:3], v1, {sr(S_WS, 4)}, s{S_TMP + 1} offen sc1")
    a(f"buffer_store_dwordx2 v[2:3], v1, {sr(S_WS, 4)}, s{S_TMP + 2} offen sc1")
    a(f"buffer_store_dword v4, v5, {sr(S_WS, 4)}, s{S_TMP + 3} offen sc1")
    l_skip = a.newlabel("tk_skip")
    a(f"s_cmp_lg_u32 s{S_WAVE}, 0")
    a(f"s_cbranch_scc1 {l_skip}")
    a(f"s_lshl_b32 s{S_TMP}, s{S_XCC}, 2")
    a("v_mov_b32 v6, 1")
    a(f"v_mov_b32 v7, {hex(OOB)}")
    a("v_cmp_eq_u32 vcc, 0, v0")
    a(f"v_cndmask_b32 v7, v7, v4, vcc")
    a(f"buffer_atomic_add v6, v7, {sr(S_DBG, 4)}, s{S_TMP} offen sc0 sc1")
    a("s_waitcnt vmcnt(0)")
    a(f"v_mov_b32 v7, {lds_scratch}")
    a(f"s_mov_b64 {sr(S_EXEC, 2)}, exec")
    a("s_mov_b64 exec, 1")
    a("ds_write_b32 v7, v6")
    a(f"s_mov_b64 exec, {sr(S_EXEC, 2)}")
    a.label(l_skip)
    a("s_waitcnt vmcnt(0) lgkmcnt(0)")
    a("s_barrier")
    l_skip2 = a.newlabel("rd_skip")
    a(f"s_cmp_lg_u32 s{S_WAVE}, 0")
    a(f"s_cbranch_scc1 {l_skip2}")
    a("v_mov_b32 v6, 1")
    a(f"v_mov_b32 v7, {hex(OOB)}")
    a("v_cmp_eq_u32 vcc, 0, v0")
    a(f"v_cndmask_b32 v7, v7, v4, vcc")
    a(f"buffer_atomic_add v6, v7, {sr(S_DBG, 4)}, 0 offen offset:{DBG_READY * 4} sc1")
    a.label(l_skip2)
    a(f"v_mov_b32 v7, {lds_scratch}")
    a("ds_read_b32 v6, v7")
    a("s_waitcnt lgkmcnt(0)")
    a(f"v_readfirstlane_b32 s{S_TICKET}, v6")
    a("s_barrier")


def wait_ready(a, vt, nwg=256, limit=200000):
    top, out = spin_label_pair(a, "rdy")
    a(f"s_mov_b32 s{S_TMP}, {limit}")
    a(f"v_mov_b32 v{vt + 1}, {DBG_READY * 4}")
    a.label(top)
    a(f"buffer_load_dword v{vt}, v{vt + 1}, {sr(S_DBG, 4)}, 0 offen sc1")
    a("s_waitcnt vmcnt(0)")
    a(f"v_readfirstlane_b32 s{S_TMP + 1}, v{vt}")
    a(f"s_cmp_ge_u32 s{S_TMP + 1}, {nwg}")
    a(f"s_cbranch_scc1 {out}")
    a(f"s_sub_u32 s{S_TMP}, s{S_TMP}, 1")
    a(f"s_cmp_lg_u32 s{S_TMP}, 0")
    a(f"s_cbranch_scc1 {top}")
    a.label(out)


def mode_check(a, vt, fallback, expect=32):
    ok = a.newlabel("mode_ok")
    a(f"s_cmp_lg_u32 s{S_MODE}, 0")
    a(f"s_cbranch_scc1 {ok}")
    wait_ready(a, vt)
    a(f"v_and_b32 v{vt + 1}, 63, v0")
    a(f"v_lshlrev_b32 v{vt + 1}, 2, v{vt + 1}")
    a(f"buffer_load_dword v{vt}, v{vt + 1}, {sr(S_DBG, 4)}, 0 offen sc1")
    a(f"v_cmp_ne_u32 vcc, {expect}, v{vt}")
    a(f"s_and_b32 s{S_TMP}, vcc_lo, 0xff")
    a(f"s_cmp_lg_u32 s{S_TMP}, 0")
    a(f"s_cbranch_scc1 {fallback}")
    a.label(ok)


HEADER = """; @launch grid=(256,1,1) block=(256,1,1) lds={lds}
.amdgcn_target "amdgcn-amd-amdhsa--gfx950"
.text
.globl {name}
.p2align 8
.type {name},@function
"""

FOOTER = """.section .rodata,"a"
.p2align 6
.amdhsa_kernel {name}
  .amdhsa_next_free_vgpr 512
  .amdhsa_next_free_sgpr 102
  .amdhsa_accum_offset 256
  .amdhsa_group_segment_fixed_size 0
  .amdhsa_kernarg_size 120
  .amdhsa_user_sgpr_count 2
  .amdhsa_user_sgpr_kernarg_segment_ptr 1
  .amdhsa_system_sgpr_workgroup_id_x 1
.end_amdhsa_kernel
"""


def lanefn(a, dst, f, vtid, t0, t1, stmp, nbits=8):
    N = 1 << nbits
    c = [int(f(t)) for t in range(N)]
    for i in range(nbits):
        for m in range(N):
            if m >> i & 1:
                c[m] -= c[m ^ (1 << i)]
    first = True

    def acc(coef, treg):
        nonlocal first
        coef32 = coef & 0xFFFFFFFF
        small = -(1 << 23) <= coef < (1 << 23)
        if small and -16 <= coef <= 64:
            k = str(coef)
        else:
            a(f"s_mov_b32 s{stmp}, {hex(coef32)}")
            k = f"s{stmp}"
        if small:
            a(f"v_mad_i32_i24 v{dst}, v{treg}, {k}, v{dst}")
        else:
            a(f"v_mul_lo_u32 v{t1}, v{treg}, {k}")
            a(f"v_add_u32 v{dst}, v{dst}, v{t1}")

    a(f"v_mov_b32 v{dst}, {hex(c[0] & 0xFFFFFFFF)}")
    done = set([0])
    i = 0
    while i < nbits:
        ci = c[1 << i]
        if ci == 0:
            i += 1
            continue
        j = i
        while j + 1 < nbits and c[1 << (j + 1)] == ci * (1 << (j + 1 - i)):
            j += 1
        a(f"v_bfe_u32 v{t0}, v{vtid}, {i}, {j - i + 1}")
        acc(ci, t0)
        i = j + 1
    for m in range(1, N):
        if bin(m).count('1') < 2 or c[m] == 0:
            continue
        bits = [b for b in range(nbits) if m >> b & 1]
        a(f"v_bfe_u32 v{t0}, v{vtid}, {bits[0]}, 1")
        for b in bits[1:]:
            a(f"v_bfe_u32 v{t1}, v{vtid}, {b}, 1")
            a(f"v_and_b32 v{t0}, v{t0}, v{t1}")
        acc(c[m], t0)


def weave(a, main, fills):
    for x in fills.get(-1, []):
        a(x)
    for i, m in enumerate(main):
        a(m)
        for x in fills.get(i, []):
            a(x)


def spread(fills, lst, start, per=2):
    p = start
    i = 0
    while i < len(lst):
        fills.setdefault(p, []).extend(lst[i:i + per])
        i += per
        p += 1
    return p
```

```python
from asmlib import *
from layout import *
from common import *
from proj import *
from hrole import f32hex

L_G = 133120
L_RED = 0
F_LDS = L_G + 1024
S_TG, S_CG, S_SEG, S_XS, S_XM0, S_DELTA, S_FLO, S_HO, S_NLEFT, S_N = range(44, 54)
S_GW = 56
S_U = 60
LOG2E = 1.4426950408889634
WG_, WU_ = 256, 256 + 128
ACCG, ACCU = ACC0, ACC0 + 16
WO_, WD_ = 256, 168
ACCA, ACCB = 32, 48
RING, NRING = 64, 24
V_L16, V_HF2, V_RW, V_RR, V_OUT, V_GR, V_TO, V_TD, V_G = 14, 15, 16, 17, 18, 19, 20, 21, 22


def f_index(a):
    a(f"s_sub_u32 s{S_T0}, s{S_ROLE}, 128")
    a(f"s_lshr_b32 s{S_TG}, s{S_T0}, 4")
    a(f"s_and_b32 s{S_CG}, s{S_T0}, 15")


def f_prologue(a):
    f_index(a)
    skip = a.newlabel("f0w_skip")
    make_srd(a, S_A, 'wg')
    make_srd(a, S_B, 'wu')
    make_srd(a, S_X, 'x')
    slab_consts(a, 2752)
    x_consts(a)
    a(f"s_mul_i32 s{S_WB}, s{S_WAVE}, {32 * 2752}")
    a(f"s_lshl_b32 s{S_T0}, s{S_CG}, 8")
    a(f"s_add_u32 s{S_WB}, s{S_WB}, s{S_T0}")
    a(f"s_lshl_b32 s{S_XS}, s{S_TG}, 15")
    a(f"s_lshl_b32 s{S_T0}, s{S_WAVE}, 13")
    a(f"s_add_u32 s{S_XS}, s{S_XS}, s{S_T0}")
    a(f"s_mul_i32 s{S_XM0}, s{S_WAVE}, {8 * XROW}")
    a(f"s_add_u32 s{S_XM0}, s{S_XM0}, {XB0}")
    a("s_waitcnt lgkmcnt(0)")
    a(f"s_cmp_gt_u32 s{S_CG}, 10")
    a(f"s_cbranch_scc1 {skip}")
    slabs = []
    for srd, dest in ((S_A, WG_), (S_B, WU_)):
        for sl in range(4):
            slabs.append(dict(srd=srd, stride=2752, row0=128 * sl, dest=dest + 32 * sl, perm=True))
    slab_load(a, slabs, pre=lambda: x_issue(a, S_XS, S_XM0))
    a.label(skip)


def f_hidden(a):
    skip = a.newlabel("f0_skip")
    a(f"s_cmp_gt_u32 s{S_CG}, 10")
    a(f"s_cbranch_scc1 {skip}")
    F(a, V_ST0, lambda l, w: w * 2048 + l * 16)
    a(f"s_lshl_b32 s{S_T0}, s{S_CG}, 13")
    a(f"v_add_u32 v{V_ST0}, s{S_T0}, v{V_ST0}")
    a(f"s_lshl_b32 s{S_T0}, s{S_CG}, 2")
    a(f"s_add_u32 s{S_T0}, s{S_T0}, s{S_WAVE}")
    nomask = a.newlabel("f0_nomask")
    a(f"s_cmp_lt_u32 s{S_T0}, 43")
    a(f"s_cbranch_scc1 {nomask}")
    a(f"v_mov_b32 v{V_ST0}, {hex(OOB)}")
    a(f"v_mov_b32 v{V_FLAG}, {hex(OOB)}")
    a.label(nomask)
    a(f"s_mov_b32 s{S_SEG}, s{S_TG}")
    a(f"s_mov_b32 s{S_NLEFT}, 8")
    a(f"s_mov_b32 s{S_FLO}, {hex(WS_DBG)}")
    a(f"s_mov_b32 s{S_DELTA}, {XB1 - XB0}")
    a(f"v_add_u32 v{V_XR}, {XB0}, v{V_XR}")
    a(f"s_mov_b32 s{S_U}, {f32hex(-LOG2E)}")
    top = a.newlabel("f0")
    a.label(top)
    a.need("xs")
    a("s_barrier")
    a(f"s_add_u32 s{S_XM0}, s{S_XM0}, s{S_DELTA}")
    a(f"s_add_u32 s{S_T1}, s{S_SEG}, 8")
    a(f"s_min_u32 s{S_T1}, s{S_T1}, 63")
    a(f"s_lshl_b32 s{S_XS}, s{S_T1}, 15")
    a(f"s_lshl_b32 s{S_T1}, s{S_WAVE}, 13")
    a(f"s_add_u32 s{S_XS}, s{S_XS}, s{S_T1}")
    x_issue(a, S_XS, S_XM0)

    def flag_prev():
        a.need("st")
        a(f"buffer_atomic_add v{V_ONE}, v{V_FLAG}, {sr(S_WS, 4)}, s{S_FLO} offen sc1")

    proj_mfmas(a, [(ACCG, WG_, True), (ACCU, WU_, True)], {12: flag_prev})
    a(f"s_mul_i32 s{S_HO}, s{S_SEG}, {HF_STRIDE}")
    a(f"s_add_u32 s{S_HO}, s{S_HO}, {hex(WS_HF)}")
    a(f"s_lshl_b32 s{S_T0}, s{S_SEG}, 7")
    a(f"s_add_u32 s{S_FLO}, s{S_T0}, {hex(WS_FLAG + FL_HF)}")
    for r in range(16):
        a(f"v_mul_f32 v{ACCG + r}, s{S_U}, v{ACCG + r}")
    for r in range(16):
        a(f"v_exp_f32 v{ACCG + r}, v{ACCG + r}")
    for r in range(16):
        a(f"v_add_f32 v{ACCG + r}, 1.0, v{ACCG + r}")
    for r in range(16):
        a(f"v_rcp_f32 v{ACCG + r}, v{ACCG + r}")
    for r in range(16):
        a(f"v_mul_f32 v{ACCU + r}, v{ACCU + r}, v{ACCG + r}")
    pack16(a, ACCU)
    for half in range(2):
        a(f"buffer_store_dwordx4 {vr(ACCU + 4 * half, 4)}, v{V_ST0}, {sr(S_WS, 4)}, s{S_HO} offen "
          f"offset:{half * 1024} sc1", tag="st")
    a(f"v_add_u32 v{V_XR}, s{S_DELTA}, v{V_XR}")
    a(f"s_sub_u32 s{S_DELTA}, 0, s{S_DELTA}")
    a(f"s_add_u32 s{S_SEG}, s{S_SEG}, 8")
    a(f"s_sub_u32 s{S_NLEFT}, s{S_NLEFT}, 1")
    a(f"s_cmp_lg_u32 s{S_NLEFT}, 0")
    a(f"s_cbranch_scc1 {top}")
    a.need("st")
    a(f"buffer_atomic_add v{V_ONE}, v{V_FLAG}, {sr(S_WS, 4)}, s{S_FLO} offen sc1")
    a("s_waitcnt vmcnt(0)")
    a.label(skip)
    a("s_barrier")


def f_gate(a):
    make_srd(a, S_X, 'x')
    make_srd(a, S_GW, 'gw')
    vGW, vGX, vGL = 14, 15, 16
    GWF, XFR = 128, 256
    F(a, vGW, lambda l, w: (l >> 5) * 16)
    F(a, vGX, lambda l, w: (l & 31) * 1024 + (l >> 5) * 16)
    F(a, vGL, lambda l, w: L_G + w * 256 + (l & 31) * 4)
    a(f"s_mov_b32 s{S_U}, {f32hex(-LOG2E)}")
    for ks in range(32):
        a(f"buffer_load_dwordx4 {vr(GWF + 4 * ks, 4)}, v{vGW}, {sr(S_GW, 4)}, 0 offen offset:{ks * 32}")
    for i in range(2):
        a(f"s_lshl_b32 s{S_T0}, s{S_WAVE}, 4")
        a(f"s_add_u32 s{S_T0}, s{S_T0}, s{S_TG}")
        a(f"s_add_u32 s{S_T0}, s{S_T0}, {8 * i}")
        a(f"s_lshl_b32 s{S_T0}, s{S_T0}, 15")
        for ks in range(32):
            a(f"buffer_load_dwordx4 {ur(XFR + 4 * ks, 4)}, v{vGX}, {sr(S_X, 4)}, s{S_T0} offen offset:{ks * 32}")
        for ks in range(32):
            c = "0" if ks == 0 else vr(ACC0, 16)
            a(f"v_mfma_f32_32x32x16_bf16 {vr(ACC0, 16)}, {vr(GWF + 4 * ks, 4)}, {ur(XFR + 4 * ks, 4)}, {c}")
        a(f"v_mul_f32 v{ACC0}, s{S_U}, v{ACC0}")
        a(f"v_exp_f32 v{ACC0}, v{ACC0}")
        a(f"v_add_f32 v{ACC0}, 1.0, v{ACC0}")
        a(f"v_rcp_f32 v{ACC0}, v{ACC0}")
        a(f"ds_write_b32 v{vGL}, v{ACC0} offset:{i * 128}")
    a("s_waitcnt lgkmcnt(0)")


def colbyte(l):
    G, cc = l >> 4, l & 3
    return 2 * (16 * (cc & 1) + 8 * (G & 1) + 4 * (cc >> 1))


def f_weights(a):
    make_srd(a, S_A, 'wo')
    make_srd(a, S_B, 'wd')
    make_srd(a, S_C, 'out')
    F(a, V_WG, lambda l, w: (l >> 2) * 1024 + (l & 3) * 16)
    F(a, V_TO, lambda l, w: w * 32768 + (8 * (l >> 5) + 2 * ((l & 15) >> 2)) * 64 + colbyte(l))
    F(a, V_TD, lambda l, w: w * 32768 + (8 * (l >> 5) + ((l & 15) >> 2)) * 64 + colbyte(l))
    sO, sD, sM = S_U + 1, S_U + 2, S_U + 3
    a(f"s_lshl_b32 s{S_T0}, s{S_CG}, 6")
    a(f"s_lshl_b32 s{sO}, s{S_WAVE}, 20")
    a(f"s_add_u32 s{sO}, s{sO}, s{S_T0}")
    a(f"s_mul_i32 s{sD}, s{S_WAVE}, {352 * 1024}")
    a(f"s_add_u32 s{sD}, s{sD}, s{S_T0}")
    a(f"s_lshl_b32 s{sM}, s{S_WAVE}, 15")
    slabs = [('d', sl) for sl in range(3)] + [('o', i) for i in range(8)]

    def issue(n):
        kind, i = slabs[n]
        slot = n % 4
        for k in range(6 if (kind, i) == ('d', 2) else 8):
            base, srd = (sD, S_B) if kind == 'd' else (sO, S_A)
            a(f"s_add_u32 s{S_T0}, s{base}, {hex((128 * i + 16 * k) * 1024)}")
            a(f"s_add_u32 m0, s{sM}, {slot * 8192 + k * 1024}")
            a(f"buffer_load_dwordx4 v{V_WG}, {sr(srd, 4)}, s{S_T0} offen lds", tag=f"ws{slot}")

    for n in range(4):
        issue(n)
    for n, (kind, i) in enumerate(slabs):
        slot = n % 4
        a.need(f"ws{slot}")
        if kind == 'd':
            for ks in range(6 if i == 2 else 8):
                for p in range(2):
                    a(f"ds_read_b64_tr_b16 {vr(WD_ + 4 * (8 * i + ks) + 2 * p, 2)}, v{V_TD} "
                      f"offset:{slot * 8192 + (16 * ks + 4 * p) * 64}")
        else:
            for k in range(8):
                wp, c, a_ = k >> 2, (k >> 1) & 1, k & 1
                for p in range(2):
                    a(f"ds_read_b64_tr_b16 {ur(WO_ + 32 * i + 4 * k + 2 * p, 2)}, v{V_TO} "
                      f"offset:{slot * 8192 + (64 * wp + c + 32 * a_ + 16 * p) * 64}")
        a("s_waitcnt lgkmcnt(0)")
        if n + 4 < len(slabs):
            issue(n + 4)


def f_main(a):
    F(a, V_L16, lambda l, w: l * 16)
    F(a, V_HF2, lambda l, w: OOB if w == 3 else l * 16)
    F(a, V_RW, lambda l, w: L_RED + w * 4096 + l * 16)
    F(a, V_RR, lambda l, w: L_RED + (l & 3) * 1024 + (((l >> 2) & 1) * 32 + 8 * w + (l >> 3)) * 16)
    F(a, V_OUT, lambda l, w: (8 * w + (l >> 3)) * 1024 + (l & 7) * 8)
    F(a, V_GR, lambda l, w: L_G + (l & 31) * 4)
    a(f"s_lshl_b32 s{S_T0}, s{S_CG}, 6")
    a(f"v_add_u32 v{V_OUT}, s{S_T0}, v{V_OUT}")
    a(f"s_mov_b32 s{S_N}, 0")
    a(f"s_mov_b32 s{S_DELTA}, 32768")
    a("s_barrier")
    top = a.newlabel("fm")
    a.label(top)
    sF, sH, sO, sX, sOut = S_U, S_U + 1, S_U + 2, S_U + 3, S_U + 4
    a(f"s_lshl_b32 s{S_SEG}, s{S_N}, 3")
    a(f"s_add_u32 s{S_SEG}, s{S_SEG}, s{S_TG}")
    a(f"s_lshl_b32 s{S_T0}, s{S_SEG}, 7")
    a(f"s_add_u32 s{sF}, s{S_T0}, {hex(WS_FLAG + FL_HF)}")
    a(f"s_mul_i32 s{sH}, s{S_SEG}, {HF_STRIDE}")
    a(f"s_mul_i32 s{S_T0}, s{S_WAVE}, {22 * 1024}")
    a(f"s_add_u32 s{sH}, s{sH}, s{S_T0}")
    a(f"s_add_u32 s{sH}, s{sH}, {hex(WS_HF)}")
    a(f"s_lshl_b32 s{sO}, s{S_SEG}, 18")
    a(f"s_lshl_b32 s{S_T0}, s{S_WAVE}, 16")
    a(f"s_add_u32 s{sO}, s{sO}, s{S_T0}")
    a(f"s_add_u32 s{sO}, s{sO}, {hex(WS_OF)}")
    a(f"s_lshl_b32 s{sOut}, s{S_SEG}, 15")
    a(f"ds_read_b32 v{V_G}, v{V_GR}")
    a(f"v_add_u32 v{V_GR}, 128, v{V_GR}")

    def stream(n, base, vaddr, mfma):
        def ld(i):
            if i % 4 == 0:
                a(f"s_add_u32 s{sX}, s{base}, {hex(i * 1024)}")
            a(f"buffer_load_dwordx4 {vr(RING + 4 * (i % NRING), 4)}, v{vaddr(i)}, {sr(S_WS, 4)}, s{sX} offen "
              f"offset:{(i & 3) * 1024} sc1")
        for i in range(min(n, NRING)):
            ld(i)
        for i in range(n):
            mfma(i, vr(RING + 4 * (i % NRING), 4))
            if i + NRING < n:
                ld(i + NRING)

    poll_ge(a, sF, 43, V_T0)
    stream(22, sH, lambda i: V_HF2 if i >= 20 else V_L16,
           lambda i, r: a(f"v_mfma_f32_32x32x16_bf16 {vr(ACCB, 16)}, {vr(WD_ + 4 * i, 4)}, {r}, "
                          f"{'0' if i == 0 else vr(ACCB, 16)}"))
    a(f"s_lshl_b32 s{S_T0}, s{S_SEG}, 7")
    a(f"s_add_u32 s{sF}, s{S_T0}, {hex(WS_FLAG + FL_OF)}")
    poll_ge(a, sF, 32, V_T0)
    stream(64, sO, lambda i: V_L16,
           lambda i, r: a(f"v_mfma_f32_32x32x16_bf16 {vr(ACCA, 16)}, {ur(WO_ + 4 * i, 4)}, {r}, "
                          f"{'0' if i == 0 else vr(ACCA, 16)}"))
    for r in range(16):
        a(f"v_sub_f32 v{ACCA + r}, v{ACCA + r}, v{ACCB + r}")
    for r in range(16):
        a(f"v_fma_f32 v{ACCA + r}, v{V_G}, v{ACCA + r}, v{ACCB + r}")
    for q in range(4):
        a(f"ds_write_b128 v{V_RW}, {vr(ACCA + 4 * q, 4)} offset:{q * 1024}")
    a("s_waitcnt lgkmcnt(0)")
    a("s_barrier")
    for v in range(4):
        a(f"ds_read_b128 {vr(RING + 4 * v, 4)}, v{V_RR} offset:{v * 4096}")
    for j in range(4):
        a(f"v_add_f32 v{RING + j}, v{RING + j}, v{RING + 4 + j}")
        a(f"v_add_f32 v{RING + 8 + j}, v{RING + 8 + j}, v{RING + 12 + j}")
    for j in range(4):
        a(f"v_add_f32 v{RING + j}, v{RING + j}, v{RING + 8 + j}")
    a(f"v_cvt_pk_bf16_f32 v{RING}, v{RING}, v{RING + 1}")
    a(f"v_cvt_pk_bf16_f32 v{RING + 1}, v{RING + 2}, v{RING + 3}")
    a(f"buffer_store_dwordx2 {vr(RING, 2)}, v{V_OUT}, {sr(S_C, 4)}, s{sOut} offen")
    a(f"v_xor_b32 v{V_RW}, 16384, v{V_RW}")
    a(f"v_xor_b32 v{V_RR}, 16384, v{V_RR}")
    rstamp(a, 8, S_N)
    a(f"s_add_u32 s{S_N}, s{S_N}, 1")
    a(f"s_cmp_lt_u32 s{S_N}, 8")
    a(f"s_cbranch_scc1 {top}")
```

```python
from asmlib import *
from layout import *
from common import *
from proj import *

H_LDS = XB0 + XBUF
S_H, S_J, S_SEG, S_XS, S_XM0, S_DELTA, S_FLO, S_QO, S_KO, S_VO, S_NLEFT, S_XMD = range(44, 56)
S_U = 56
S_SC = 64
WQ, WK, WV = 256, 256 + 128, 128
ACCQ, ACCK, ACCV = ACC0, ACC0 + 16, ACC0 + 32
SCALE_LOG2E = 128 ** -0.5 * 1.4426950408889634

VM_KEY = [0, 1, 2, 3, 4, 5, 6, 7]


def f32hex(x):
    import struct
    return hex(struct.unpack('<I', struct.pack('<f', x))[0])


def h_prologue(a):
    make_srd(a, S_A, 'wq')
    make_srd(a, S_B, 'wk')
    make_srd(a, S_C, 'wv')
    make_srd(a, S_X, 'x')
    a(f"s_sub_u32 s{S_T0}, s{S_ROLE}, 32")
    a(f"s_mul_i32 s{S_H}, s{S_T0}, 0xaaab")
    a(f"s_lshr_b32 s{S_H}, s{S_H}, 17")
    a(f"s_mul_i32 s{S_T1}, s{S_H}, 3")
    a(f"s_sub_u32 s{S_J}, s{S_T0}, s{S_T1}")
    slab_consts(a, 8192)
    x_consts(a)
    F(a, V_ST0, lambda l, w: w * 2048 + l * 16)
    F(a, V_ST1, lambda l, w: (w >> 1) * 4096 + (l & 1) * 2048 + (l >> 5) * 512 + (16 * (w & 1) + ((l & 31) >> 1)) * 16)
    a(f"s_lshl_b32 s{S_WB}, s{S_WAVE}, 18")
    a(f"s_lshl_b32 s{S_T0}, s{S_H}, 8")
    a(f"s_add_u32 s{S_WB}, s{S_WB}, s{S_T0}")
    a(f"s_lshl_b32 s{S_XS}, s{S_J}, 15")
    a(f"s_lshl_b32 s{S_T0}, s{S_WAVE}, 13")
    a(f"s_add_u32 s{S_XS}, s{S_XS}, s{S_T0}")
    a(f"s_mul_i32 s{S_XM0}, s{S_WAVE}, {8 * XROW}")
    a(f"s_add_u32 s{S_XM0}, s{S_XM0}, {XB0}")
    a("s_waitcnt lgkmcnt(0)")
    slabs = []
    for srd, dest, perm in ((S_B, WK, True), (S_C, WV, False), (S_A, WQ, True)):
        for sl in range(4):
            slabs.append(dict(srd=srd, stride=8192, row0=128 * sl, dest=dest + 32 * sl, perm=perm))
    slab_load(a, slabs, pre=lambda: x_issue(a, S_XS, S_XM0))


def h_phase1(a):
    a(f"s_mov_b32 s{S_SEG}, s{S_J}")
    a(f"s_cmp_eq_u32 s{S_J}, 0")
    a(f"s_cselect_b32 s{S_NLEFT}, 22, 21")
    a(f"s_mov_b32 s{S_FLO}, {hex(WS_DBG)}")
    a(f"s_mov_b32 s{S_DELTA}, {XB1 - XB0}")
    a(f"v_add_u32 v{V_XR}, {XB0}, v{V_XR}")
    top = a.newlabel("hp1")
    a.label(top)
    a.need("xs")
    a("s_barrier")
    a(f"s_add_u32 s{S_XM0}, s{S_XM0}, s{S_DELTA}")
    a(f"s_add_u32 s{S_T1}, s{S_SEG}, 3")
    a(f"s_min_u32 s{S_T1}, s{S_T1}, 63")
    a(f"s_lshl_b32 s{S_XS}, s{S_T1}, 15")
    a(f"s_lshl_b32 s{S_T1}, s{S_WAVE}, 13")
    a(f"s_add_u32 s{S_XS}, s{S_XS}, s{S_T1}")
    x_issue(a, S_XS, S_XM0)

    def flag_prev():
        a.need("st")
        a(f"buffer_atomic_add v{V_ONE}, v{V_FLAG}, {sr(S_WS, 4)}, s{S_FLO} offen sc1")

    proj_mfmas(a, [(ACCK, WK, True), (ACCV, WV, False), (ACCQ, WQ, True)], {12: flag_prev})
    a(f"s_lshl_b32 s{S_T0}, s{S_SEG}, 5")
    a(f"s_add_u32 s{S_T0}, s{S_T0}, s{S_H}")
    a(f"s_lshl_b32 s{S_T0}, s{S_T0}, 13")
    a(f"s_add_u32 s{S_KO}, s{S_T0}, {hex(WS_KF)}")
    a(f"s_add_u32 s{S_VO}, s{S_T0}, {hex(WS_VF)}")
    a(f"s_add_u32 s{S_QO}, s{S_T0}, {hex(WS_QF)}")
    a(f"s_lshl_b32 s{S_T0}, s{S_H}, 8")
    a(f"s_lshl_b32 s{S_T1}, s{S_SEG}, 2")
    a(f"s_add_u32 s{S_T0}, s{S_T0}, s{S_T1}")
    a(f"s_add_u32 s{S_FLO}, s{S_T0}, {hex(WS_FLAG + FL_KV)}")
    for acc, vo, so in ((ACCK, V_ST0, S_KO), (ACCV, V_ST1, S_VO), (ACCQ, V_ST0, S_QO)):
        pack16(a, acc)
        for half in range(2):
            a(f"buffer_store_dwordx4 {vr(acc + 4 * half, 4)}, v{vo}, {sr(S_WS, 4)}, s{so} offen "
              f"offset:{half * 1024} sc1", tag="st")
    a(f"v_add_u32 v{V_XR}, s{S_DELTA}, v{V_XR}")
    a(f"s_sub_u32 s{S_DELTA}, 0, s{S_DELTA}")
    a(f"s_add_u32 s{S_SEG}, s{S_SEG}, 3")
    a(f"s_sub_u32 s{S_NLEFT}, s{S_NLEFT}, 1")
    a(f"s_cmp_lg_u32 s{S_NLEFT}, 0")
    a(f"s_cbranch_scc1 {top}")
    a.need("st")
    a(f"buffer_atomic_add v{V_ONE}, v{V_FLAG}, {sr(S_WS, 4)}, s{S_FLO} offen sc1")


QF_, KF_, VF_ = 32, 64, 96
SA, MASK, SM = 128, 144, 160
KMF, VMF = 176, 208
PT, PM = 224, 232
V_L16, V_KML, V_VML, V_MX, V_SUM, V_TMP = 14, 15, 16, 17, 18, 19
OA = 32


def h_phase2(a):
    F(a, V_L16, lambda l, w: l * 16)
    F(a, V_KML, lambda l, w: (VM_KEY[l & 7] * 256 + (l >> 5) * 16) if (l & 31) < 8 else OOB)
    F(a, V_VML, lambda l, w: (l & 31) * 16 + (l >> 5) * 8)
    a(f"v_and_b32 v{V_T0}, 31, v0")
    a(f"v_bfe_u32 v{V_T1}, v0, 5, 1")
    a(f"v_lshlrev_b32 v{V_T1}, 2, v{V_T1}")
    a(f"v_sub_u32 v{V_TMP}, v{V_T0}, v{V_T1}")
    a(f"v_mov_b32 v{V_T0}, 0")
    a(f"v_mov_b32 v{V_T1}, {f32hex(-1e30)}")
    for r in range(16):
        a(f"v_cmp_le_i32 vcc, {8 * (r >> 2) + (r & 3)}, v{V_TMP}")
        a(f"v_cndmask_b32 v{MASK + r}, v{V_T1}, v{V_T0}, vcc")
    for i in range(4):
        a(f"v_mov_b32 v{VMF + 4 * i + 2}, 0")
        a(f"v_mov_b32 v{VMF + 4 * i + 3}, 0")
    a(f"v_mov_b32 v{PM + 2}, 0")
    a(f"v_mov_b32 v{PM + 3}, 0")
    a(f"s_mov_b32 s{S_SC}, {f32hex(SCALE_LOG2E)}")
    a(f"s_lshl_b32 s{S_SEG}, s{S_J}, 2")
    a(f"s_add_u32 s{S_SEG}, s{S_SEG}, s{S_WAVE}")
    top, done = a.newlabel("hp2"), a.newlabel("hp2_done")
    a.label(top)
    a(f"s_cmp_ge_u32 s{S_SEG}, 64")
    a(f"s_cbranch_scc1 {done}")
    sFL, sQ, sK, sV, sKM, sVM, sO, sM = range(S_U, S_U + 8)
    a(f"s_lshl_b32 s{S_T0}, s{S_H}, 8")
    a(f"s_lshl_b32 s{S_T1}, s{S_SEG}, 2")
    a(f"s_add_u32 s{sFL}, s{S_T0}, s{S_T1}")
    a(f"s_add_u32 s{sFL}, s{sFL}, {hex(WS_FLAG + FL_KV)}")
    a(f"s_add_u32 s{sM}, s{S_T0}, {hex(WS_FLAG + FL_MEM)}")
    a(f"s_lshl_b32 s{S_T0}, s{S_SEG}, 5")
    a(f"s_add_u32 s{S_T0}, s{S_T0}, s{S_H}")
    a(f"s_lshl_b32 s{S_T1}, s{S_T0}, 13")
    a(f"s_add_u32 s{sQ}, s{S_T1}, {hex(WS_QF)}")
    a(f"s_add_u32 s{sK}, s{S_T1}, {hex(WS_KF)}")
    a(f"s_add_u32 s{sV}, s{S_T1}, {hex(WS_VF)}")
    a(f"s_add_u32 s{sO}, s{S_T1}, {hex(WS_OF)}")
    a(f"s_lshl_b32 s{S_T1}, s{S_T0}, 11")
    a(f"s_add_u32 s{sKM}, s{S_T1}, {hex(WS_KM)}")
    a(f"s_add_u32 s{sVM}, s{S_T1}, {hex(WS_VM)}")
    poll_ge(a, sFL, 4, V_TMP)

    def ld(base, so, n):
        for i in range(n):
            if i == 4:
                a(f"s_add_u32 s{S_T0}, s{so}, 4096")
            a(f"buffer_load_dwordx4 {vr(base + 4 * i, 4)}, v{V_L16}, {sr(S_WS, 4)}, s{so if i < 4 else S_T0} offen "
              f"offset:{(i & 3) * 1024} sc1")

    ld(KF_, sK, 8)
    ld(QF_, sQ, 8)
    ld(VF_, sV, 8)
    for k in range(8):
        c = vr(MASK, 16) if k == 0 else vr(SA, 16)
        a(f"v_mfma_f32_32x32x16_bf16 {vr(SA, 16)}, {vr(KF_ + 4 * k, 4)}, {vr(QF_ + 4 * k, 4)}, {c}")
    a(f"v_max3_f32 v{V_MX}, v{SA}, v{SA + 1}, v{SA + 2}")
    for r in range(3, 15, 2):
        a(f"v_max3_f32 v{V_MX}, v{V_MX}, v{SA + r}, v{SA + r + 1}")
    a(f"v_max_f32 v{V_MX}, v{V_MX}, v{SA + 15}")
    poll_ge(a, sM, S_SEG, V_TMP, target_is_sgpr=True, strict=True)
    for k in range(8):
        a(f"buffer_load_dwordx4 {vr(KMF + 4 * k, 4)}, v{V_KML}, {sr(S_WS, 4)}, s{sKM} offen offset:{k * 32} sc1")
    for t in range(4):
        a(f"buffer_load_dwordx2 {vr(VMF + 4 * t, 2)}, v{V_VML}, {sr(S_WS, 4)}, s{sVM} offen offset:{t * 512} sc1")
    for k in range(8):
        c = "0" if k == 0 else vr(SM, 16)
        a(f"v_mfma_f32_32x32x16_bf16 {vr(SM, 16)}, {vr(KMF + 4 * k, 4)}, {vr(QF_ + 4 * k, 4)}, {c}")
    a(f"v_max3_f32 v{V_MX}, v{V_MX}, v{SM}, v{SM + 1}")
    a(f"v_max3_f32 v{V_MX}, v{V_MX}, v{SM + 2}, v{SM + 3}")
    a(f"v_mov_b32 v{V_TMP}, v{V_MX}")
    a(f"v_permlane32_swap_b32 v{V_MX}, v{V_TMP}")
    a(f"v_max_f32 v{V_MX}, v{V_MX}, v{V_TMP}")
    a(f"v_mul_f32 v{V_MX}, s{S_SC}, v{V_MX}")
    sv = [SA + r for r in range(16)] + [SM + r for r in range(4)]
    for r in sv:
        a(f"v_fma_f32 v{r}, v{r}, s{S_SC}, -v{V_MX}")
    for r in sv:
        a(f"v_exp_f32 v{r}, v{r}")
    a(f"v_add_f32 v{V_SUM}, v{sv[0]}, v{sv[1]}")
    a(f"v_add_f32 v{V_TMP}, v{sv[2]}, v{sv[3]}")
    for i in range(4, 20, 2):
        a(f"v_add_f32 v{V_SUM}, v{V_SUM}, v{sv[i]}")
        a(f"v_add_f32 v{V_TMP}, v{V_TMP}, v{sv[i + 1]}")
    a(f"v_add_f32 v{V_SUM}, v{V_SUM}, v{V_TMP}")
    a(f"v_mov_b32 v{V_TMP}, v{V_SUM}")
    a(f"v_permlane32_swap_b32 v{V_SUM}, v{V_TMP}")
    a(f"v_add_f32 v{V_SUM}, v{V_SUM}, v{V_TMP}")
    a(f"v_rcp_f32 v{V_SUM}, v{V_SUM}")
    for r in sv:
        a(f"v_mul_f32 v{r}, v{r}, v{V_SUM}")
    for i in range(8):
        a(f"v_cvt_pk_bf16_f32 v{PT + i}, v{SA + 2 * i}, v{SA + 2 * i + 1}")
    for i in range(2):
        a(f"v_cvt_pk_bf16_f32 v{PM + i}, v{SM + 2 * i}, v{SM + 2 * i + 1}")
    for step in range(3):
        for t in range(4):
            d = vr(OA + 16 * t, 16)
            if step < 2:
                A_, B_ = vr(VF_ + 4 * (2 * t + step), 4), vr(PT + 4 * step, 4)
            else:
                A_, B_ = vr(VMF + 4 * t, 4), vr(PM, 4)
            a(f"v_mfma_f32_32x32x16_bf16 {d}, {A_}, {B_}, {'0' if step == 0 else d}")
    a(f"s_add_u32 s{S_T1}, s{sO}, 4096")
    for t in range(4):
        pack16(a, OA + 16 * t)
        for half in range(2):
            k = 2 * t + half
            a(f"buffer_store_dwordx4 {vr(OA + 16 * t + 4 * half, 4)}, v{V_L16}, {sr(S_WS, 4)}, "
              f"s{sO if k < 4 else S_T1} offen offset:{(k & 3) * 1024} sc1", tag="ost")
    a(f"s_lshl_b32 s{S_T0}, s{S_SEG}, 7")
    a(f"s_add_u32 s{S_T0}, s{S_T0}, {hex(WS_FLAG + FL_OF)}")
    a.need("ost")
    a(f"buffer_atomic_add v{V_ONE}, v{V_FLAG}, {sr(S_WS, 4)}, s{S_T0} offen sc1")
    a(f"s_add_u32 s{S_SEG}, s{S_SEG}, 12")
    a(f"s_branch {top}")
    a.label(done)
```

```python
NSEG = 64
NH = 32

WS_KF = 0x0000000
WS_VF = 0x1000000
WS_KM = 0x2000000
WS_VM = 0x2400000
WS_OF = 0x2800000
WS_HF = 0x3800000
HF_STRIDE = 88 * 1024
WS_G = 0x3E00000
WS_IN = 0x3F00000
WS_M = 0x3F80000
WS_FLAG = 0x4000000
WS_TS = 0x4100000
WS_DBG = 0x4200000
WS_TS2 = 0x4500000
WS_DUMMY = 0x4800000
WS_QF = 0x5000000
WS_SIZE = 0x10000000

FL_KV = 0x0000
FL_MEM = 0x2000
FL_OF = 0x4000
FL_HF = 0x6000
FL_SIZE = 0x8000

DBG_TICKET = 0
DBG_READY = 8
```

```python
from asmlib import *
from layout import *
from common import *

SLAB = 32768
NSLOT = 3
XROW = 1040
XB0 = 99328
XB1 = 0
XBUF = 32 * XROW

V_WG = 1
V_TA, V_TAH = 2, 3
V_TB, V_TBH = 4, 5
V_XG = 6
V_XR = 7
V_ST0, V_ST1 = 8, 9
V_FLAG = 10
V_ONE = 11
V_T0, V_T1 = 12, 13
ACC0 = 32
XF = 80
NXF = 8

S_A, S_B, S_C, S_X = 24, 28, 32, 36
S_WB = 40
S_WM = 41
S_T0 = 42
S_T1 = 43


def F(a, dst, f, vt=0):
    lanefn(a, dst, lambda t: f(t & 63, t >> 6), vt, V_T0, V_T1, S_T0)


def tr_addr(l, w, perm):
    G, lam = l >> 4, l & 15
    row = 8 * (G >> 1) + (lam >> 2)
    if perm:
        byte = 64 * w + 32 * (G & 1) + 16 * (lam & 1) + 8 * ((lam >> 1) & 1)
    else:
        byte = 64 * w + 32 * (G & 1) + 8 * (lam & 3)
    q16 = (byte >> 4) ^ (4 * (lam >> 2))
    return row * 256 + q16 * 16 + (byte & 8)


def slab_consts(a, stride):
    F(a, V_WG, lambda l, w: (l >> 4) * stride + (((l & 15) ^ (4 * (l >> 4))) * 16))
    F(a, V_TA, lambda l, w: tr_addr(l, w, True))
    F(a, V_TB, lambda l, w: tr_addr(l, w, False))
    a(f"v_add_u32 v{V_TAH}, 0x10000, v{V_TA}")
    a(f"v_add_u32 v{V_TBH}, 0x10000, v{V_TB}")
    a(f"s_lshl_b32 s{S_WM}, s{S_WAVE}, 13")


def slab_load(a, slabs, pre=None):
    n = len(slabs)
    dist = NSLOT - 1

    def issue(i):
        sl = slabs[i]
        slot = i % NSLOT
        for k in range(8):
            a(f"s_add_u32 s{S_T0}, s{S_WB}, {hex((sl['row0'] + 4 * k) * sl['stride'])}")
            a(f"s_add_u32 m0, s{S_WM}, {slot * SLAB + k * 1024}")
            a(f"buffer_load_dwordx4 v{V_WG}, {sr(sl['srd'], 4)}, s{S_T0} offen lds", tag=f"slab{slot}")

    for i in range(min(dist, n)):
        issue(i)
    if pre:
        pre()
    for i in range(n):
        sl = slabs[i]
        slot = i % NSLOT
        a.need(f"slab{slot}")
        a("s_waitcnt lgkmcnt(0)")
        a("s_barrier")
        if i + dist < n:
            issue(i + dist)
        lo, hi = (V_TA, V_TAH) if sl['perm'] else (V_TB, V_TBH)
        for ks in range(8):
            for p in range(2):
                off = slot * SLAB + ks * 4096 + p * 1024
                reg = lo
                if off >= 65536:
                    reg, off = hi, off - 65536
                a(f"ds_read_b64_tr_b16 {ur(sl['dest'] + 4 * ks + 2 * p, 2)}, v{reg} offset:{off}")
    a("s_waitcnt lgkmcnt(0)")


def lane0_offset(a, dst):
    a(f"v_and_b32 v{V_T0}, 63, v0")
    a(f"v_mov_b32 v{V_T1}, {hex(OOB)}")
    a(f"v_cmp_ne_u32 vcc, 0, v{V_T0}")
    a(f"v_cndmask_b32 v{dst}, v{V_T0}, v{V_T1}, vcc")


def x_consts(a):
    F(a, V_XG, lambda l, w: l * 16)
    F(a, V_XR, lambda l, w: (l & 31) * XROW + (l >> 5) * 16)
    lane0_offset(a, V_FLAG)
    a(f"v_mov_b32 v{V_ONE}, 1")


def x_issue(a, s_off, s_m0, tag="xs"):
    for i in range(8):
        if i == 4:
            a(f"s_add_u32 s{S_T0}, s{s_off}, 4096")
        so = s_off if i < 4 else S_T0
        a(f"s_add_u32 m0, s{s_m0}, {i * XROW - (i & 3) * 1024}")
        a(f"buffer_load_dwordx4 v{V_XG}, {sr(S_X, 4)}, s{so} offen offset:{(i & 3) * 1024} lds", tag=tag)


def proj_mfmas(a, tiles, hooks):
    def rd(ks):
        a(f"ds_read_b128 {vr(XF + 4 * (ks % NXF), 4)}, v{V_XR} offset:{ks * 32}")

    ahead = 4
    for ks in range(ahead):
        rd(ks)
    for ks in range(32):
        x = vr(XF + 4 * (ks % NXF), 4)
        for j, (acc, wb, w_is_a) in enumerate(tiles):
            wr = ur(wb + 4 * ks, 4)
            c = "0" if ks == 0 else vr(acc, 16)
            A_, B_ = (wr, x) if w_is_a else (x, wr)
            a(f"v_mfma_f32_32x32x16_bf16 {vr(acc, 16)}, {A_}, {B_}, {c}")
            if j == 0 and ks + ahead < 32:
                rd(ks + ahead)
        if ks in hooks:
            hooks[ks]()


def pack16(a, acc):
    for i in range(8):
        a(f"v_cvt_pk_bf16_f32 v{acc + i}, v{acc + 2 * i}, v{acc + 2 * i + 1}")


def poll_ge(a, s_off, target, vt, limit=0x400000, target_is_sgpr=False, strict=False):
    top, out = a.newlabel("poll"), a.newlabel("poll_out")
    a(f"s_mov_b32 s{S_TMP}, {hex(limit)}")
    a.label(top)
    a(f"buffer_load_dword v{vt}, off, {sr(S_WS, 4)}, s{s_off} sc1")
    a(f"v_readfirstlane_b32 s{S_TMP + 1}, v{vt}")
    t = f"s{target}" if target_is_sgpr else str(target)
    a(f"s_cmp_{'gt' if strict else 'ge'}_u32 s{S_TMP + 1}, {t}")
    a(f"s_cbranch_scc1 {out}")
    a(f"s_sub_u32 s{S_TMP}, s{S_TMP}, 1")
    a(f"s_cmp_lg_u32 s{S_TMP}, 0")
    a(f"s_cbranch_scc1 {top}")
    a.label(out)
```

```python
import sys
from asmlib import *
from common import *
import chain, hrole, frole
from build import build, KNAME

LDS = 163840


def gen(force_fallback=False, stamps=False):
    a = Asm()
    a.label(KNAME)
    entry(a, lds_scratch=0)
    expect = 33 if force_fallback else 32
    a(f"s_mov_b32 s{S_MODE}, 0")
    a(f"s_lshl_b32 s{S_ROLE}, s{S_XCC}, 5")
    a(f"s_add_u32 s{S_ROLE}, s{S_ROLE}, s{S_TICKET}")
    a(f"s_cmp_lt_u32 s{S_TICKET}, 32")
    a("s_cbranch_scc1 L_dispatch")
    wait_ready(a, 2)
    a.label("L_fallback")
    a("s_waitcnt vmcnt(0) lgkmcnt(0)")
    a("s_barrier")
    a(f"s_mov_b32 s{S_MODE}, 1")
    a(f"s_mov_b32 s{S_ROLE}, s2")
    a.label("L_dispatch")
    a(f"s_cmp_ge_u32 s{S_ROLE}, 128")
    a("s_cbranch_scc1 L_f")
    a(f"s_cmp_ge_u32 s{S_ROLE}, 32")
    a("s_cbranch_scc1 L_h")
    a(f"s_mov_b32 s{chain.S_H}, s{S_ROLE}")
    chain.chain_pre(a, stamps)
    mode_check(a, chain.T + 2, "L_fallback", expect)
    a(f"s_cmp_lg_u32 s{S_MODE}, 0")
    a("s_cbranch_scc1 L_chain_agent")
    chain.chain_body(a, "", True, stamps)
    a("s_branch L_end")
    a.label("L_chain_agent")
    chain.chain_body(a, " sc1", True, stamps)
    a("s_branch L_end")
    a.label("L_h")
    hrole.h_prologue(a)
    mode_check(a, 20, "L_fallback", expect)
    hrole.h_phase1(a)
    hrole.h_phase2(a)
    a("s_branch L_end")
    a.label("L_f")
    frole.f_prologue(a)
    mode_check(a, 24, "L_fallback", expect)
    frole.f_hidden(a)
    frole.f_gate(a)
    frole.f_weights(a)
    frole.f_main(a)
    a.label("L_end")
    a("s_waitcnt vmcnt(0)")
    a.label("L_exit")
    a("s_endpgm")
    n = a.finalize()
    print("instructions", a.count(), "nops", n)
    return a.text()


def wrap(body, lds=LDS):
    ref = open('cdna_kernels/' + KNAME[:-7] + '.s.ref').read()
    head = ref[:ref.index('; @launch')]
    return head + HEADER.format(name=KNAME, lds=lds) + body + FOOTER.format(name=KNAME)


if __name__ == "__main__":
    fb = 'fb' in sys.argv
    txt = wrap(gen(force_fallback=fb, stamps='ts' in sys.argv))
    out = "out_main" + ("_fb" if fb else "")
    print("ok", build(txt, out), len(txt))
    if 'install' in sys.argv:
        open('cdna_kernels/' + KNAME[:-7] + '.s', 'w').write(txt)
```

```python
import re

REG_RE = re.compile(r'^(-|abs\()?\s*([vas])(?:(\d+)|\[(\d+):(\d+)\])\)?$')


def vr(b, n=1):
    return f"v{b}" if n == 1 else f"v[{b}:{b + n - 1}]"


def ar(b, n=1):
    return f"a{b}" if n == 1 else f"a[{b}:{b + n - 1}]"


def sr(b, n=1):
    return f"s{b}" if n == 1 else f"s[{b}:{b + n - 1}]"


def ur(b, n=1):
    if b >= 256:
        assert b + n <= 512
        return ar(b - 256, n)
    assert b + n <= 256
    return vr(b, n)


def parse_reg(tok):
    tok = tok.strip()
    if tok == 'vcc':
        return [('s', 'vcc')]
    if tok == 'exec':
        return [('s', 'exec')]
    if tok == 'm0':
        return [('s', 'm0')]
    m = REG_RE.match(tok)
    if not m:
        return []
    kind = m.group(2)
    if m.group(3) is not None:
        lo = hi = int(m.group(3))
    else:
        lo, hi = int(m.group(4)), int(m.group(5))
    if kind == 'a':
        return [('v', 256 + i) for i in range(lo, hi + 1)]
    return [(kind, i) for i in range(lo, hi + 1)]


TRANS = ('v_exp_f32', 'v_log_f32', 'v_rcp_f32', 'v_rsq_f32', 'v_sqrt_f32', 'v_sin_f32', 'v_cos_f32',
         'v_rcp_iflag_f32')
NO_DST_S = ('s_cmp', 's_cbranch', 's_waitcnt', 's_barrier', 's_nop', 's_setprio', 's_sleep', 's_endpgm',
            's_branch', 's_bitcmp', 's_setreg')


def mfma_passes(op):
    if '32x32' in op:
        return 8
    if '16x16' in op:
        return 4
    raise ValueError(op)


class Ins:
    __slots__ = ('text', 'op', 'ops', 'mods', 'defs', 'uses', 'kind', 'cdef', 'ause', 'buse', 'cuse', 'target',
                 'nop', 'wait', 'auto', 'nowait')

    def __init__(self, text, tag=None):
        self.text = text
        self.auto = False
        self.nowait = False
        if text.startswith('@need'):
            self.op = '@need'
            self.ops = []
            self.mods = ''
            self.kind = 'need'
            self.defs = []
            self.uses = [('t', x) for x in text.split()[1:]]
            self.ause = self.buse = self.cuse = ()
            self.target = None
            self.nop = None
            self.wait = None
            return
        if text.startswith('@clear'):
            self.op = '@clear'
            self.ops = []
            self.mods = ''
            self.kind = 'clear'
            self.defs = []
            self.uses = []
            for x in text.split()[1:]:
                self.uses += parse_reg(x)
            self.ause = self.buse = self.cuse = ()
            self.target = None
            self.nop = None
            self.wait = None
            return
        self._init(text)
        if tag is not None:
            self.defs = list(self.defs) + [('t', tag)]

    def _init(self, text):
        t = text.strip()
        sp = t.split(None, 1)
        self.op = op = sp[0]
        rest = sp[1] if len(sp) > 1 else ''
        parts = [p.strip() for p in rest.split(',')] if rest else []
        mods = ''
        if parts:
            last = parts[-1].split(None, 1)
            if len(last) > 1 and not parts[-1].startswith(('vmcnt', 'lgkmcnt', 'expcnt', 'hwreg')):
                parts[-1] = last[0]
                mods = last[1]
        self.ops = parts
        self.mods = mods
        self.defs, self.uses = [], []
        self.ause = self.buse = self.cuse = ()
        self.target = None
        self.nop = None
        self.wait = None
        P = [parse_reg(p) for p in parts]

        def allregs(lst):
            r = []
            for x in lst:
                r += x
            return r

        if op == 's_nop':
            self.kind = 'nop'
            self.nop = int(parts[0], 0) + 1
        elif op == 's_waitcnt':
            self.kind = 'wait'
            w = {}
            for name, n in re.findall(r'(vmcnt|lgkmcnt|expcnt)\((\d+)\)', rest):
                w[name] = int(n)
            self.wait = w
        elif op in ('s_branch',) or op.startswith('s_cbranch'):
            self.kind = 'branch'
            self.target = parts[0]
            if 'vcc' in op:
                self.uses = [('s', 'vcc')]
        elif op == 's_endpgm':
            self.kind = 'end'
        elif op.startswith('s_load') or op.startswith('s_buffer_load'):
            self.kind = 'smem'
            self.defs = P[0]
            self.uses = allregs(P[1:])
        elif op in ('s_memtime', 's_memrealtime'):
            self.kind = 'smem'
            self.defs = P[0]
        elif op.startswith('s_'):
            self.kind = 'salu'
            if op.startswith(NO_DST_S):
                self.uses = allregs(P)
            else:
                self.defs = list(P[0])
                self.uses = allregs(P[1:])
                if 'saveexec' in op:
                    self.defs.append(('s', 'exec'))
                    self.uses.append(('s', 'exec'))
                if op in ('s_addk_i32', 's_mulk_i32'):
                    self.uses += P[0]
        elif op.startswith('v_smfmac'):
            self.kind = 'mfma'
            self.defs = P[0]
            self.ause, self.buse = P[1], P[2]
            self.cuse = P[0]
            self.uses = P[0] + P[1] + P[2] + P[3]
        elif op.startswith('v_mfma'):
            self.kind = 'mfma'
            self.defs = P[0]
            self.ause, self.buse, self.cuse = P[1], P[2], P[3]
            self.uses = P[1] + P[2] + P[3]
        elif op.startswith('v_cmp'):
            self.kind = 'valu'
            self.defs = P[0]
            self.uses = allregs(P[1:])
            assert not op.startswith('v_cmpx')
        elif op.startswith('v_readfirstlane') or op.startswith('v_readlane'):
            self.kind = 'valu'
            self.defs = P[0]
            self.uses = allregs(P[1:])
        elif op.startswith('v_permlane') and 'swap' in op:
            self.kind = 'valu'
            self.defs = P[0] + P[1]
            self.uses = P[0] + P[1]
        elif op.startswith('v_'):
            self.kind = 'valu'
            self.defs = list(P[0])
            srcs = P[1:]
            if op.startswith(('v_add_co', 'v_sub_co', 'v_addc_co', 'v_subb_co', 'v_subrev_co')):
                self.defs += P[1]
                srcs = P[2:]
            self.uses = allregs(srcs)
            if op.startswith(('v_fmac', 'v_mac', 'v_dot2c', 'v_writelane', 'v_pk_fmac')) or 'dpp' in op or \
                    'row_' in mods or 'quad_perm' in mods or 'sdwa' in op or 'dst_sel' in mods:
                self.uses += P[0]
            if op.startswith('v_cndmask') and len(parts) == 3:
                self.uses.append(('s', 'vcc'))
        elif op.startswith('ds_'):
            self.kind = 'ds'
            if op.startswith(('ds_read', 'ds_bpermute', 'ds_permute', 'ds_swizzle')) or '_rtn' in op:
                self.defs = P[0]
                self.uses = allregs(P[1:])
            else:
                self.uses = allregs(P)
        elif op.startswith('buffer_'):
            self.kind = 'vmem'
            is_lds = bool(re.search(r'\blds\b', mods))
            if op.startswith('buffer_load'):
                if is_lds:
                    self.uses = allregs(P) + [('s', 'm0')]
                else:
                    self.defs = P[0]
                    self.uses = allregs(P[1:])
            elif op.startswith('buffer_store'):
                self.uses = allregs(P)
            elif op.startswith('buffer_atomic'):
                self.uses = allregs(P)
                if re.search(r'\bsc0\b', mods):
                    self.defs = P[0]
            else:
                raise ValueError(text)
        elif op.startswith('global_'):
            self.kind = 'vmem'
            is_lds = '_lds_' in op
            if op.startswith('global_load'):
                if is_lds:
                    self.uses = allregs(P) + [('s', 'm0')]
                else:
                    self.defs = P[0]
                    self.uses = allregs(P[1:])
            elif op.startswith('global_store'):
                self.uses = allregs(P)
            elif op.startswith('global_atomic'):
                if re.search(r'\bsc0\b', mods):
                    self.defs = P[0]
                    self.uses = allregs(P[1:])
                else:
                    self.uses = allregs(P)
            else:
                raise ValueError(text)
        else:
            raise ValueError("unknown instruction: " + text)

    def is_wide_store(self):
        return self.kind == 'vmem' and ('store_dwordx3' in self.op or 'store_dwordx4' in self.op)

    def store_data(self):
        if self.op.startswith('buffer_store'):
            return parse_reg(self.ops[0])
        return parse_reg(self.ops[1])

    def is_dpp(self):
        return self.kind == 'valu' and ('dpp' in self.op or 'row_' in self.mods or 'quad_perm' in self.mods)

    def slots(self):
        if self.kind in ('need', 'clear'):
            return 0
        if self.kind == 'mfma' and '16x16' in self.op:
            return 3 if self.op.startswith('v_smfmac') else 2
        return self.nop if self.kind == 'nop' else 1


class Label:
    __slots__ = ('name',)

    def __init__(self, name):
        self.name = name


class Raw:
    __slots__ = ('text',)

    def __init__(self, text):
        self.text = text


def need_states(prod, cons):
    n = 0
    pk, ck = prod.kind, cons.kind
    if pk == 'valu':
        pd = set(prod.defs)
        pds = {r for r in pd if r[0] == 's'}
        pdv = {r for r in pd if r[0] == 'v'}
        cu = set(cons.uses)
        if pds:
            if ck == 'vmem' and pds & cu:
                n = max(n, 5)
            if ck == 'valu' and pds & cu:
                if cons.op.startswith(('v_readlane', 'v_writelane')):
                    n = max(n, 4)
                n = max(n, 2)
            if ck == 'branch' and pds & cu:
                n = max(n, 0)
        if pdv:
            if ck == 'mfma' and pdv & cu:
                n = max(n, 2)
            if ck == 'valu':
                if cons.is_dpp() and pdv & cu:
                    n = max(n, 2)
                if cons.op.startswith('v_permlane') and pdv & cu:
                    n = max(n, 2)
                if cons.op.startswith(('v_readlane', 'v_readfirstlane')) and pdv & cu:
                    n = max(n, 1)
                if prod.op.startswith(TRANS) and pdv & cu and not cons.op.startswith(TRANS):
                    n = max(n, 1)
                if prod.op.startswith(TRANS) and pdv & cu:
                    n = max(n, 1)
                if ('op_sel' in prod.mods or 'dst_sel' in prod.mods or 'sdwa' in prod.op) and \
                        pdv & (cu | set(cons.defs)):
                    n = max(n, 1)
                if prod.op.startswith('v_dot') and pdv & (cu | set(cons.defs)):
                    same = prod.op == cons.op
                    if not same:
                        n = max(n, 3)
                    else:
                        srcc = set(parse_reg(cons.ops[0])) if cons.op.startswith('v_dot2c') else \
                            set(parse_reg(cons.ops[3]))
                        ab = set(parse_reg(cons.ops[1])) | set(parse_reg(cons.ops[2]))
                        if pdv & ab:
                            n = max(n, 3)
            if prod.op.startswith('v_dot') and ck in ('vmem', 'ds', 'mfma') and pdv & cu:
                n = max(n, 3)
    elif pk == 'mfma':
        p = mfma_passes(prod.op)
        pd = set(prod.defs)
        if ck == 'mfma':
            cc = set(cons.cuse)
            if pd & cc:
                if cc == pd and cons.op == prod.op:
                    n = max(n, 0)
                else:
                    n = max(n, {4: 6, 8: 10}[p])
            if pd & (set(cons.ause) | set(cons.buse)):
                n = max(n, {4: 8, 8: 12}[p])
            if cons.op.startswith('v_smfmac') and pd & set(parse_reg(cons.ops[3])):
                n = max(n, {4: 8, 8: 12}[p])
            if pd & set(cons.defs) and not (pd & cc):
                n = max(n, {4: 8, 8: 12}[p])
        elif ck in ('valu', 'vmem', 'ds'):
            if pd & (set(cons.uses) | set(cons.defs)):
                n = max(n, {4: 8, 8: 12}[p])
            if ck == 'valu' and set(prod.cuse) & set(cons.defs):
                n = max(n, {4: 3, 8: 7}[p])
    elif pk == 'vmem':
        if prod.is_wide_store() and ck in ('valu', 'mfma', 'ds', 'vmem'):
            if set(prod.store_data()) & set(cons.defs):
                n = max(n, 2)
    elif pk == 'salu':
        if ('s', 'm0') in prod.defs and ck == 'vmem' and ('s', 'm0') in cons.uses:
            n = max(n, 1)
    return n


MAXWIN = 13


class Asm:
    def __init__(self):
        self.items = []
        self.uid = 0

    def __call__(self, text, tag=None, nowait=False):
        for line in text.strip().split('\n'):
            line = line.split(';')[0].strip()
            if not line:
                continue
            t = tag
            if '#' in line:
                line, t = [x.strip() for x in line.split('#')]
            if line.endswith(':'):
                self.items.append(Label(line[:-1]))
            else:
                x = Ins(line, t)
                x.nowait = nowait
                self.items.append(x)

    def need(self, *tags):
        self.items.append(Ins('@need ' + ' '.join(tags)))

    def clear(self, *regs):
        self.items.append(Ins('@clear ' + ' '.join(regs)))

    def label(self, name):
        self.items.append(Label(name))

    def newlabel(self, stem):
        self.uid += 1
        return f"L_{stem}_{self.uid}"

    def raw(self, text):
        self.items.append(Raw(text))

    def comment(self, text):
        self.items.append(Raw("; " + text))

    def _cfg(self, items):
        labels = {}
        for i, it in enumerate(items):
            if isinstance(it, Label):
                labels[it.name] = i
        return labels

    def insert_waits(self):
        items = self.items
        labels = self._cfg(items)
        n = len(items)
        succ = [[] for _ in range(n)]
        for i, it in enumerate(items):
            if isinstance(it, Ins):
                if it.kind == 'end':
                    continue
                if it.kind == 'branch':
                    if it.target not in labels:
                        raise ValueError("unknown label " + it.target)
                    succ[i].append(labels[it.target])
                    if it.op == 's_branch':
                        continue
            if i + 1 < n:
                succ[i].append(i + 1)

        def merge(a, b):
            if a is None:
                return b, True
            changed = False
            vm, lg = dict(a[0]), dict(a[1])
            for src, dst in ((b[0], vm), (b[1], lg)):
                for r, k in src.items():
                    if r not in dst or k < dst[r]:
                        dst[r] = k
                        changed = True
            sm = a[2] or b[2]
            if sm != a[2]:
                changed = True
            return (vm, lg, sm), changed

        def transfer(it, st, record):
            vm, lg, sm = dict(st[0]), dict(st[1]), st[2]
            if not isinstance(it, Ins):
                return (vm, lg, sm)
            if it.kind == 'clear':
                for r in it.uses:
                    vm.pop(r, None)
                if record is not None:
                    record.append((None, None))
                return (vm, lg, sm)
            need_vm = need_lg = None
            touched = set(it.uses) | set(it.defs)
            if it.kind != 'wait' and it.nowait is not True:
                for r in touched:
                    if r in vm and it.nowait != 'vm':
                        k = min(vm[r], 63)
                        need_vm = k if need_vm is None else min(need_vm, k)
                    if r in lg:
                        k = 0 if sm else min(lg[r], 15)
                        need_lg = k if need_lg is None else min(need_lg, k)
                if it.kind == 'vmem' and need_vm is not None:
                    if not any(r in vm for r in it.uses):
                        need_vm = None
                if it.kind == 'ds' and need_lg is not None and not sm:
                    if not any(r in lg for r in it.uses):
                        need_lg = None
            if record is not None:
                record.append((need_vm, need_lg))
            if need_vm is not None:
                vm = {r: k for r, k in vm.items() if k < need_vm}
            if need_lg is not None:
                lg = {r: k for r, k in lg.items() if k < need_lg}
                if need_lg == 0:
                    sm = False
            if it.kind == 'wait':
                w = it.wait
                if 'vmcnt' in w:
                    vm = {r: k for r, k in vm.items() if k < w['vmcnt']}
                if 'lgkmcnt' in w:
                    if w['lgkmcnt'] == 0:
                        lg = {}
                        sm = False
                    elif not sm:
                        lg = {r: k for r, k in lg.items() if k < w['lgkmcnt']}
            elif it.kind == 'vmem':
                vm = {r: min(k + 1, 64) for r, k in vm.items()}
                for r in it.defs:
                    vm[r] = 0
            elif it.kind == 'ds':
                lg = {r: min(k + 1, 16) for r, k in lg.items()}
                for r in it.defs:
                    lg[r] = 0
            elif it.kind == 'smem':
                lg = {r: min(k + 1, 16) for r, k in lg.items()}
                for r in it.defs:
                    lg[r] = 0
                sm = True
            return (vm, lg, sm)

        instate = [None] * n
        instate[0] = ({}, {}, False)
        work = [0]
        for name, i in labels.items():
            if name.endswith('_kernel'):
                instate[i] = ({}, {}, False)
                work.append(i)
        leaders = set([0]) | set(labels.values())
        for i, it in enumerate(items):
            if isinstance(it, Ins) and it.kind in ('branch', 'end') and i + 1 < n:
                leaders.add(i + 1)
        work = sorted(set(work))
        inwork = set(work)
        while work:
            b = work.pop(0)
            inwork.discard(b)
            st = instate[b]
            i = b
            while True:
                st = transfer(items[i], st, None)
                ss = succ[i]
                nxt_lin = None
                for s_ in ss:
                    if s_ in leaders:
                        m, ch = merge(instate[s_], st)
                        if ch:
                            instate[s_] = m
                            if s_ not in inwork:
                                work.append(s_)
                                inwork.add(s_)
                    else:
                        nxt_lin = s_
                if nxt_lin is None:
                    break
                i = nxt_lin
        out = []
        st = None
        for i, it in enumerate(items):
            if i in leaders:
                st = instate[i]
            if st is None:
                out.append(it)
                continue
            rec = []
            st = transfer(it, st, rec)
            if rec:
                nv, nl = rec[0]
                if nv is not None or nl is not None:
                    w = "s_waitcnt"
                    if nv is not None:
                        w += f" vmcnt({nv})"
                    if nl is not None:
                        w += f" lgkmcnt({nl})"
                    x = Ins(w)
                    x.auto = True
                    out.append(x)
            out.append(it)
            if isinstance(it, Ins) and (it.kind == 'end' or it.op == 's_branch'):
                st = None
        self.items = out

    def insert_nops(self):
        total = 0
        while True:
            items = self.items
            labels = self._cfg(items)
            br_to = {}
            for i, it in enumerate(items):
                if isinstance(it, Ins) and it.kind == 'branch':
                    br_to.setdefault(labels[it.target], []).append(i)

            def back(i, dist, cons, best):
                stack = [(i, dist)]
                seen = {}
                while stack:
                    j, d = stack.pop()
                    if d >= MAXWIN:
                        continue
                    if seen.get(j, 99) <= d:
                        continue
                    seen[j] = d
                    if j in br_to:
                        for b in br_to[j]:
                            it = items[b]
                            best = max(best, need_states(it, cons) - d)
                            stack.append((b, d + 1))
                    p = j - 1
                    if p < 0:
                        continue
                    it = items[p]
                    if isinstance(it, Ins):
                        if it.kind == 'end' or it.op == 's_branch':
                            continue
                        best = max(best, need_states(it, cons) - d)
                        stack.append((p, d + it.slots()))
                    else:
                        stack.append((p, d))
                return best

            out = []
            added = 0
            for i, it in enumerate(items):
                if isinstance(it, Ins) and it.kind in ('valu', 'mfma', 'vmem', 'ds'):
                    k = back(i, 0, it, 0)
                    if k > 0:
                        x = Ins(f"s_nop {k - 1}")
                        x.auto = True
                        out.append(x)
                        added += 1
                        out.append(it)
                        out.extend(items[i + 1:])
                        break
                out.append(it)
            self.items = out
            total += added
            if not added:
                break
        return total

    def insert_nops_fast(self):
        items = self.items
        labels = self._cfg(items)
        br_src = {}
        for i, it in enumerate(items):
            if isinstance(it, Ins) and it.kind == 'branch':
                br_src.setdefault(it.target, []).append(i)
        extra = [0] * (len(items) + 1)

        def is16(it):
            return it.kind == 'mfma' and '16x16' in it.op

        def back(i, cons):
            best = 0
            stack = [(i, 0, 0 if is16(cons) else None)]
            seen = {}
            while stack:
                j, d, sm = stack.pop()
                if j != i:
                    d += extra[j]
                    if sm is not None:
                        sm += extra[j]
                key = (j, sm if sm is None or sm < 4 else 4)
                if d >= MAXWIN or seen.get(key, 99) <= d:
                    continue
                seen[key] = d
                itj = items[j]
                if isinstance(itj, Label) and itj.name in br_src:
                    for b in br_src[itj.name]:
                        stack.append((b, d + 1, None if sm is None else sm + 1))
                p = j - 1
                if p < 0:
                    continue
                it = items[p]
                if isinstance(it, Ins):
                    if it.kind == 'end' or it.op == 's_branch':
                        continue
                    c = it.slots()
                    gap = 0
                    if is16(it) and sm is not None:
                        gap = max(0, 4 - sm - c)
                    best = max(best, need_states(it, cons) - d - gap)
                    if is16(it):
                        stack.append((p, d + c + gap, 0))
                    else:
                        stack.append((p, d + c, None if sm is None else sm + c))
                else:
                    stack.append((p, d, sm))
            return best

        changed = True
        rounds = 0
        while changed:
            changed = False
            rounds += 1
            for i, it in enumerate(items):
                if isinstance(it, Ins) and it.kind in ('valu', 'mfma', 'vmem', 'ds'):
                    k = back(i, it) - extra[i]
                    if k > 0:
                        extra[i] += k
                        changed = True
            if rounds > 5:
                raise RuntimeError("nop insertion did not converge")
        out = []
        cnt = 0
        for i, it in enumerate(items):
            k = extra[i]
            while k > 0:
                c = min(k, 16)
                x = Ins(f"s_nop {c - 1}")
                x.auto = True
                out.append(x)
                k -= c
                cnt += 1
            out.append(it)
        self.items = out
        return cnt

    def finalize(self):
        self.insert_waits()
        return self.insert_nops_fast()

    def text(self):
        o = []
        for it in self.items:
            if isinstance(it, Label):
                o.append(it.name + ":")
            elif isinstance(it, Raw):
                o.append(it.text)
            elif it.kind not in ('need', 'clear'):
                o.append("  " + it.text)
        return "\n".join(o) + "\n"

    def count(self):
        return sum(1 for it in self.items if isinstance(it, Ins) and it.kind not in ('need', 'clear'))
```

```python
import re
from collections import deque
from asmlib import *
from layout import *
from common import *

L_M = 0
L_KX = 8192
L_QK = 16384
QKROW = 320
L_K = L_QK + 8 * QKROW
L_O = L_K + 8 * QKROW
L_DUMMY = L_O + 8 * QKROW
L_W = L_DUMMY + 256
NLF = 17
WSTRIDE = NLF * 2048
CHAIN_LDS = L_W + 4 * WSTRIDE

(V_FL, V_IDX, V_MP, V_MA, V_W, V_QKW, V_QB, V_KW, V_KX0, V_KX1, V_KXG, V_VXG, V_PF, V_OW, V_OA, V_PS, V_IN, V_MS,
 V_KMP, V_VMP) = range(20)
V_VSW, V_PUBL, V_PUBG = V_IN, V_KMP, V_VMP
A = 20
ACC = 52
R = 84
VX = 124
T = 132
RES0 = 136

S_WQ, S_WK, S_WV, S_WO, S_M0 = 24, 28, 32, 36, 40
S_H = 44
S_STEP = 45
S_TAGM = 46
S_TAG = 47
S_RETRY = 48
S_MOFF = 49
S_MST = 50
S_KMO = 51
S_VMO = 52
S_KFO = 53
S_VFO = 54
S_FLKV = 55
S_FLMEM = 56
S_T0 = 57
S_HI = 58
S_ONES = 60
S_SELLO = 62
S_SELHI = 63
S_SC = 64
S_NSC = 66
S_M0KX = 67
S_PS = 68
S_FLEX = 72
S_IN = 76
S_CLS = 77
S_FLV = 78
S_KMP = 79
S_T1 = 80
S_TS = 82
S_T2 = 84
S_PH = 86
PHASES = False
OPT = dict(inbox='spin', mpoll='spin', ackd=2, mdelay=0, pf='none', mfirst='', mdepth=3, msleep=0, idepth=2,
           isleep=0, ifirst='ack', mpf=1, mmask=0, mfast=2, mslow=1, mslowack=0, mfastack=1,
           imask=0, abl='', pub='late', kxgpos='v', vxpos='q', pfd=1, flag='one', pubpos=12, flagpos=8,
           pfpos=4, vxq=2, pfreg=0, pfmod='', pfs=64)


def abl(name):
    return name in str(OPT['abl']).split(',')


def cnt_begin(a, s_):
    if PHASES:
        a(f"s_mov_b32 s{s_}, s{S_RETRY}")


def cnt_end(a, s_):
    if PHASES:
        a(f"s_sub_u32 s{s_}, s{s_}, s{S_RETRY}")


XPH = {8: 74}


def ph(a, k):
    if PHASES:
        a(f"s_memtime {sr(XPH.get(k, S_PH + 2 * k), 2)}")


def ph_flush(a):
    if not PHASES:
        return
    a("s_waitcnt lgkmcnt(0)")
    for k in range(7):
        a(f"v_writelane_b32 v{T + 1}, s{S_PH + 2 * k}, {k}")
    a(f"v_writelane_b32 v{T + 1}, s100, 8")
    a(f"v_writelane_b32 v{T + 1}, s101, 9")
    for k, r in XPH.items():
        a(f"v_writelane_b32 v{T + 1}, s{r}, {k + 3}")
    a(f"s_lshl_b32 s{S_T1}, s{S_H}, 2")
    a(f"s_add_u32 s{S_T1}, s{S_T1}, s{S_WAVE}")
    a(f"s_lshl_b32 s{S_T1}, s{S_T1}, 6")
    a(f"s_add_u32 s{S_T1}, s{S_T1}, s{S_STEP}")
    a(f"s_lshl_b32 s{S_T1}, s{S_T1}, 8")
    a(f"s_add_u32 s{S_T1}, s{S_T1}, {hex(WS_TS2)}")
    a(f"buffer_store_dword v{T + 1}, v{V_FL}, {sr(S_WS, 4)}, s{S_T1} offen")

SCALE_LOG2E = 128 ** -0.5 * 1.4426950408889634


def f32hex(x):
    import struct
    return hex(struct.unpack('<I', struct.pack('<f', x))[0])


def placement():
    pl = {}
    res = []
    for mat in 'qkv':
        for J in range(8):
            for c in range(2):
                p = 2 * J + c
                if mat == 'q' and p < 5:
                    pl[(mat, c, J)] = ('lds', p)
                elif mat == 'q' and p >= 12:
                    pl[(mat, c, J)] = ('lds', p - 7)
                else:
                    res.append((mat, c, J))
    for t in range(8):
        for J2 in range(2):
            if t >= 4:
                pl[('o', t, J2)] = ('lds', 9 + 2 * (t - 4) + J2)
            else:
                res.append(('o', t, J2))
    assert len(res) == 47
    for i, f in enumerate(res):
        pl[f] = ('reg', RES0 + 8 * i if i < 15 else 256 + 8 * (i - 15))
    return pl


PL = placement()


def mu(i):
    return 2 * (i >> 2) + (i & 1)


def half(i):
    return (i >> 1) & 1


def consts(a, vtid):
    t0, t1, st = T, T + 1, S_T0

    def F(dst, f):
        lanefn(a, dst, lambda t: f(t & 63, t >> 6), vtid, t0, t1, st)

    n = lambda l: l & 15
    g = lambda l: l >> 4
    F(V_IDX, lambda l, w: 0xEEEE if half(n(l)) else 0x4444)
    F(V_MP, lambda l, w: w * 2048 + l * 16)
    F(V_MA, lambda l, w: L_M + g(l) * 256 + mu(n(l)) * 32 + half(n(l)) * 16)
    F(V_W, lambda l, w: L_W + w * WSTRIDE + l * 16)
    F(V_QKW, lambda l, w: L_QK + 2 * g(l) * QKROW + 64 * w + 4 * n(l))
    a(f"v_add_u32 v{V_KW}, {L_K - L_QK}, v{V_QKW}")
    a(f"v_add_u32 v{V_OW}, {L_O - L_QK}, v{V_QKW}")
    F(V_QB, lambda l, w: L_QK + mu(n(l)) * QKROW + g(l) * 16)

    def kx(l, Tt):
        rho = n(l)
        tok = 16 * (rho >> 3) + 8 * Tt + (rho & 7)
        slot = (g(l) & 1) * 32 + tok
        slot ^= ((slot >> 4) & 1) << 3
        return L_KX + (g(l) >> 1) * 1024 + slot * 16

    F(V_KX0, lambda l, w: kx(l, 0))
    F(V_KX1, lambda l, w: kx(l, 1))
    F(V_KXG, lambda l, w: w * 2048 + (l ^ (((l >> 4) & 1) << 3)) * 16)
    F(V_VXG, lambda l, w: (w >> 1) * 4096 + (g(l) >> 1) * 1024 + (g(l) & 1) * 512 + (w & 1) * 256 + n(l) * 16)
    if OPT['pf'] == 'none':
        pass
    elif OPT['pf'] == 'kv':
        if OPT['pfs'] == 64:
            F(V_PF, lambda l, w: (l >> 5) * (WS_VF - WS_KF) + w * 2048 + (l & 31) * 64)
        else:
            F(V_PF, lambda l, w: ((l >> 4) * (WS_VF - WS_KF) + w * 2048 + (l & 15) * 128) if l < 32 else OOB)
    else:
        F(V_PF, lambda l, w: w * 2048 + l * 32)
    F(V_OA, lambda l, w: L_O + mu(n(l)) * QKROW + (2 * g(l) + half(n(l))) * 16)
    F(V_PS, lambda l, w: (n(l) >> 3) * 8192 + g(l) * 2048 + (n(l) & 7) * 8)
    F(V_MS, lambda l, w: ((2 * w + (g(l) & 1)) * 32 + (2 * (l & 3) + (g(l) >> 1)) * 4) if (l & 12) == 0 else OOB)
    if OPT['pub'] == 'late':
        F(V_VSW, lambda l, w: L_QK + (n(l) >> 2) * QKROW + 64 * w + (n(l) & 3) * 16 + g(l) * 4)
        F(V_PUBL, lambda l, w: (L_K if l < 32 else L_QK) + ((l >> 2) & 7) * QKROW + 64 * w + (l & 3) * 16)
        F(V_PUBG, lambda l, w: (l >> 2) * 256 + 64 * w + (l & 3) * 16 if l < 32 else
          WS_VM - WS_KM + ((w >> 1) * 64 + ((l >> 4) & 1) * 32 + 16 * (w & 1) + n(l)) * 16)
    else:
        F(V_KMP, lambda l, w: 2 * g(l) * 256 + 64 * w + 4 * n(l))
        F(V_VMP, lambda l, w: ((w >> 1) * 64 + 16 * (w & 1) + n(l)) * 16 + g(l) * 4)
    a(f"v_and_b32 v{T}, 63, v{vtid}")
    a(f"v_lshlrev_b32 v{V_FL}, 2, v{T}")
    for d in range(4):
        F(A + d, lambda l, w: (0x3f800000 if mu(n(l)) & 1 else 0x3f80) if (mu(n(l)) >> 1) == d else 0)
    a(f"ds_write_b128 v{V_QB}, {vr(A, 4)} offset:256")


def dest_frag4(a, frag, rbh, tmp):
    kind, where = PL[frag]
    if kind == 'reg' and where < 256:
        base = where + 4 * rbh
        return [base + i for i in range(4)], []
    regs = [tmp + i for i in range(4)]
    if kind == 'reg':
        fin = [f"v_accvgpr_write_b32 a{where - 256 + 4 * rbh + i}, v{tmp + i}" for i in range(4)]
    else:
        fin = [f"ds_write_b128 v{V_W}, {vr(tmp, 4)} offset:{where * 2048 + rbh * 1024}"]
    return regs, fin


def load_weights(a, vtid):
    vWQ, vWO = V_KX0, V_KX1
    t0, t1, st = T, T + 1, S_T0
    n = lambda l: l & 15
    gb = lambda l: l >> 4
    lrow = lambda l: 16 * (gb(l) >> 1) + 4 * (gb(l) & 1)
    lanefn(a, vWQ, lambda t: lrow(t & 63) * 8192 + 64 * (t >> 6) + 4 * n(t & 63), vtid, t0, t1, st)
    lanefn(a, vWO, lambda t: lrow(t & 63) * 1024 + 64 * (t >> 6) + 4 * n(t & 63), vtid, t0, t1, st)
    lanefn(a, V_W, lambda t: L_W + (t >> 6) * WSTRIDE + (t & 63) * 16, vtid, t0, t1, st)
    sHq, sHo, so = S_T1, S_T1 + 1, S_T2
    a(f"s_lshl_b32 s{sHq}, s{S_H}, 8")
    a(f"s_lshl_b32 s{sHo}, s{S_H}, 17")
    srd = {'q': S_WQ, 'k': S_WK, 'v': S_WV}
    groups = []
    for mat in 'qkv':
        for J in range(8):
            for rbh in range(2):
                groups.append(('qkv', mat, J, rbh))
    for k in range(4):
        for J2 in range(2):
            for rbh in range(2):
                groups.append(('o', k, J2, rbh))
    ring0, ringn = A, 104
    tmps = [VX, VX + 4]
    state = dict(head=0, tmp=0)
    pend = deque()

    def issue(gp, base):
        kind, mat, J, rbh = gp
        for i in range(4):
            rb = 4 * rbh + i
            for b in range(2):
                row = 64 * J + 32 * (rb >> 2) + 8 * (rb & 1) + 2 * ((rb >> 1) & 1) + b
                if kind == 'qkv':
                    a(f"s_add_u32 s{so}, s{sHq}, {hex(row * 8192)}")
                    a(f"buffer_load_dword v{base + 2 * i + b}, v{vWQ}, {sr(srd[mat], 4)}, s{so} offen")
                else:
                    a(f"s_add_u32 s{so}, s{sHo}, {hex(row * 1024 + 256 * mat)}")
                    a(f"buffer_load_dword v{base + 2 * i + b}, v{vWO}, {sr(S_WO, 4)}, s{so} offen")

    def process(gp, base):
        kind, mat, J, rbh = gp
        for c in range(2):
            tmp = tmps[state['tmp']]
            state['tmp'] ^= 1
            regs, fin = dest_frag4(a, (mat, c, J) if kind == 'qkv' else ('o', 2 * mat + c, J), rbh, tmp)
            for i in range(4):
                a(f"v_perm_b32 v{regs[i]}, v{base + 2 * i + 1}, v{base + 2 * i}, s{S_SELHI if c else S_SELLO}")
            for x in fin:
                a(x)

    def fits(base, size):
        for _, b, s in pend:
            if base < b + s and b < base + size:
                return False
        return True

    for gp in groups:
        size = 8
        while True:
            base = state['head']
            if base + size > ringn:
                base = 0
            if fits(base, size) and 8 * len(pend) + 8 <= 60:
                break
            g0, b0, _ = pend.popleft()
            process(g0, ring0 + b0)
        issue(gp, ring0 + base)
        pend.append((gp, base, size))
        state['head'] = base + size
    while pend:
        g0, b0, _ = pend.popleft()
        process(g0, ring0 + b0)


def load_mem0(a, vtid):
    t0, t1, st = T, T + 1, S_T0
    va = V_OA
    lanefn(a, va, lambda t: (((t & 63) >> 1) & 7) * 1024 + 32 * (8 * (t >> 6) + ((t & 63) >> 4)) + 16 * (t & 1),
           vtid, t0, t1, st)
    P8 = ACC + 24
    for i in range(2):
        a(f"buffer_load_dwordx4 {vr(P8 + 4 * i, 4)}, v{va}, {sr(S_M0, 4)}, 0 offen offset:{128 * i}")


def frag_b(frag, ldsreg):
    kind, where = PL[frag]
    if kind == 'reg':
        return ur(where, 8)
    return vr(ldsreg[frag], 8)


def smf(d, areg, b):
    return f"v_smfmac_f32_16x16x64_bf16 {vr(d, 4)}, {vr(areg, 4)}, {b}, v{V_IDX}"


def ldsfrag_reads(slot, reg):
    return [f"ds_read_b128 {vr(reg, 4)}, v{V_W} offset:{slot * 2048}",
            f"ds_read_b128 {vr(reg + 4, 4)}, v{V_W} offset:{slot * 2048 + 1024}"]


def xy_adds(acc):
    return [f"v_add_f32 v{acc}, v{acc}, v{acc + 2}", f"v_add_f32 v{acc + 4}, v{acc + 4}, v{acc + 6}",
            f"v_add_f32 v{acc + 1}, v{acc + 1}, v{acc + 3}", f"v_add_f32 v{acc + 5}, v{acc + 5}, v{acc + 7}"]


def retry_tail(a, top, out):
    a(f"s_cmp_eq_u32 s{S_RETRY}, 0")
    a(f"s_cbranch_scc1 {out}")
    a(f"s_sub_u32 s{S_RETRY}, s{S_RETRY}, 1")
    a(f"s_branch {top}")


def phase_w(a):
    for i in range(5):
        for x in ldsfrag_reads(i, R + 8 * i):
            a(x)
    for i in range(0, 24, 2):
        a(f"v_mov_b64 {vr(ACC + i, 2)}, 0")


def spin(a, stem, issue, check, depth, masked, sleep=0, also=''):
    top, out = spin_label_pair(a, stem)
    expired = a.newlabel(stem + "_expired")
    a.label(top)
    if masked:
        a("s_mov_b64 exec, vcc")
    issue()
    if masked:
        a("s_mov_b64 exec, -1")
    if sleep:
        a(f"s_sleep {sleep}")
    a(f"s_sub_u32 s{S_RETRY}, s{S_RETRY}, 1")
    a(f"s_cbranch_scc1 {expired}")
    a(f"s_waitcnt vmcnt({2 * (depth - 1)}){also}")
    check()
    a(f"s_cbranch_vccnz {top}", nowait=True)
    a(f"s_branch {out}")
    a.label(expired)
    a(f"s_mov_b32 s{S_RETRY}, 0")
    a(f"s_waitcnt vmcnt(0){also}")
    a.label(out)


def poll_m(a):
    P8 = ACC + 24
    cnt_begin(a, 101)

    def issue_():
        a(f"buffer_load_dwordx4 {vr(P8, 4)}, v{V_MP}, {sr(S_WS, 4)}, s{S_MOFF} offen sc1", nowait=True)
        a(f"buffer_load_dwordx4 {vr(P8 + 4, 4)}, v{V_MP}, {sr(S_WS, 4)}, s{S_MOFF} offen offset:1024 sc1", nowait=True)

    def check_():
        a(f"v_max3_u32 v{T + 1}, v{P8}, v{P8 + 1}, v{P8 + 2}", nowait=True)
        a(f"v_max3_u32 v{T + 2}, v{P8 + 3}, v{P8 + 4}, v{P8 + 5}", nowait=True)
        a(f"v_max3_u32 v{T + 1}, v{T + 1}, v{P8 + 6}, v{P8 + 7}", nowait=True)
        a(f"v_max_u32 v{T + 1}, v{T + 1}, v{T + 2}")
        a(f"v_cmp_eq_u32 vcc, -1, v{T + 1}")

    if OPT['mmask']:
        a("s_mov_b64 vcc, -1")
    done = a.newlabel("pm_done")
    fast = a.newlabel("pm_fast")
    a(f"s_cmp_ge_u32 s{S_WAVE}, {OPT['mfast']}")
    a(f"s_cbranch_scc1 {fast}")
    if OPT['mslowack']:
        a("s_waitcnt vmcnt(0)")
    spin(a, "pms", issue_, check_, OPT['mslow'], OPT['mmask'])
    a(f"s_branch {done}")
    a.label(fast)
    if OPT['mfastack'] >= 0:
        now = a.newlabel("pm_now")
        a(f"s_cmp_gt_u32 s{S_CLS}, {OPT['mfastack']}")
        a(f"s_cbranch_scc1 {now}")
        a("s_waitcnt vmcnt(0)")
        a.label(now)
    spin(a, "pmf", issue_, check_, OPT['mdepth'], OPT['mmask'], OPT['msleep'])
    a.label(done)
    cnt_end(a, 101)
    a(f"ds_write_b128 v{V_MP}, {vr(P8, 4)} offset:{L_M}", nowait=True)
    a(f"ds_write_b128 v{V_MP}, {vr(P8 + 4, 4)} offset:{L_M + 1024}", nowait=True)
    a.clear(vr(A, 8))


def kv_flag_check(a, use_flags):
    if not use_flags:
        return
    top, out = spin_label_pair(a, "kvf")
    a(f"s_add_u32 s{S_T1}, s{S_STEP}, 1")
    a.label(top)
    a(f"v_cmp_le_u32 vcc, 4, v{T}")
    a(f"s_bitcmp1_b64 vcc, s{S_T1}")
    a(f"s_cbranch_scc1 {out}")
    a(f"buffer_load_dword v{T}, v{V_FL}, {sr(S_WS, 4)}, s{S_FLKV} offen sc1")
    a("s_waitcnt vmcnt(0)")
    retry_tail(a, top, out)
    a.label(out)


def put(fills, pos, *ins):
    fills.setdefault(pos, []).extend(ins)


def flag_store():
    val = S_FLV if OPT['pub'] == 'late' else S_STEP
    st = f"buffer_store_dword v{T + 2}, off, {sr(S_WS, 4)}, s{S_FLMEM} sc1"
    if OPT['flag'] == 'one':
        return [f"v_mov_b32 v{T + 2}, s{val}", f"s_mov_b64 exec, {sr(S_FLEX, 2)}", st, "s_mov_b64 exec, -1"]
    return [f"v_mov_b32 v{T + 2}, s{val}", st]


def kxg_loads():
    return [f"s_mov_b32 m0, s{S_M0KX}",
            f"buffer_load_dwordx4 v{V_KXG}, {sr(S_WS, 4)}, s{S_KFO} offen sc1 lds",
            f"buffer_load_dwordx4 v{V_KXG}, {sr(S_WS, 4)}, s{S_KFO} offen offset:1024 sc1 lds"]


def vx_loads():
    return [f"buffer_load_dwordx4 {vr(VX, 4)}, v{V_VXG}, {sr(S_WS, 4)}, s{S_VFO} offen sc1",
            f"buffer_load_dwordx4 {vr(VX + 4, 4)}, v{V_VXG}, {sr(S_WS, 4)}, s{S_VFO} offen offset:2048 sc1"]


def step(a, st_mod, use_flags, last=False):
    qa, ka, va = ACC, ACC + 8, ACC + 16
    late = OPT['pub'] == 'late'
    nopub = abl('pub')
    a("s_waitcnt lgkmcnt(0)")
    ph(a, 0)
    a("s_barrier")
    for J in range(8):
        a(f"ds_read_b128 {vr(A + 4 * J, 4)}, v{V_MA} offset:{J * 1024}")
    ldsreg = {}
    for p in range(5):
        ldsreg[('q', p & 1, p >> 1)] = R + 8 * p
    for p in range(12, 16):
        ldsreg[('q', p & 1, p >> 1)] = R + 8 * (p - 12)

    PUB = R + 32
    pub_read = f"ds_read_b128 {vr(PUB, 4)}, v{V_PUBL}"

    def pub_store(so):
        return f"buffer_store_dwordx4 {vr(PUB, 4)}, v{V_PUBG}, {sr(S_WS, 4)}, s{so} offen sc1"

    stage_v = f"ds_write2st64_b32 v{V_VSW}, v{va}, v{va + 4} offset0:0 offset1:5"

    if not last:
        mq = [smf(qa + 4 * (p & 1), A + 4 * (p >> 1), frag_b(('q', p & 1, p >> 1), ldsreg)) for p in range(16)]
        fq = {}
        for i in range(4):
            fq[i] = ldsfrag_reads(5 + i, R + 8 * i)
        put(fq, OPT['pfpos'], f"s_mov_b32 m0, {L_DUMMY}")
        if not abl('pf') and OPT['pf'] != 'none':
            so = S_KFO if OPT['pf'] == 'kv' else S_VFO
            if OPT['pfd'] > 1:
                put(fq, OPT['pfpos'], f"s_add_u32 s{S_T1}, s{so}, {hex((OPT['pfd'] - 1) * 0x40000)}")
                so = S_T1
            if OPT['pfreg']:
                put(fq, OPT['pfpos'], f"buffer_load_dword v{V_IN}, v{V_PF}, {sr(S_WS, 4)}, s{so} offen{OPT['pfmod']}")
            else:
                put(fq, OPT['pfpos'], f"buffer_load_dword v{V_PF}, {sr(S_WS, 4)}, s{so} offen{OPT['pfmod']} lds")
        if OPT['mpf']:
            put(fq, OPT['pfpos'] + 1, f"buffer_load_dword v{V_MS}, {sr(S_WS, 4)}, s{S_MST} offen lds")
        if use_flags:
            put(fq, 6, f"buffer_load_dword v{T}, v{V_FL}, {sr(S_WS, 4)}, s{S_FLKV} offen sc1")
        if not (nopub or abl('flag')):
            put(fq, OPT['flagpos'], *flag_store())
        if late and not nopub:
            put(fq, 5, pub_read)
        if OPT['vxpos'] == 'q' and not abl('vx'):
            put(fq, OPT['vxq'], vx_loads()[0])
            put(fq, OPT['vxq'] + 1, vx_loads()[1])
        weave(a, mq, fq)

    mk = [smf(ka + 4 * (p & 1), A + 4 * (p >> 1), frag_b(('k', p & 1, p >> 1), ldsreg)) for p in range(16)]
    fk = {}
    if not last:
        kx = []
        for ks in range(4):
            for Tt in range(2):
                kx.append(f"ds_read_b128 {vr(R + 16 * Tt + 4 * ks, 4)}, v{V_KX1 if Tt else V_KX0} offset:{ks * 2048}")
        kx.sort(key=lambda s_: int(re.search(r'v\[(\d+)', s_).group(1)))
        spread(fk, kx, 0, 2)
        spread(fk, xy_adds(qa), 2, 1)
        put(fk, 6, f"v_cvt_pk_bf16_f32 v{qa + 2}, v{qa}, v{qa + 4}")
        put(fk, 7, f"v_cvt_pk_bf16_f32 v{qa + 3}, v{qa + 1}, v{qa + 5}")
        put(fk, 9, f"ds_write2_b32 v{V_QKW}, v{qa + 2}, v{qa + 3} offset0:0 offset1:{QKROW // 4}")
        if late and not nopub:
            put(fk, OPT['pubpos'] - 12, pub_store(S_KMP))
    else:
        put(fk, 0, *flag_store())
        if late:
            put(fk, 1, pub_read)
            put(fk, 8, pub_store(S_KMP))
    weave(a, mk, fk)

    mv = [smf(va + 4 * (p & 1), A + 4 * (p >> 1), frag_b(('v', p & 1, p >> 1), ldsreg)) for p in range(16)]
    fv = {}
    spread(fv, xy_adds(ka), 1, 2)
    put(fv, 3, f"v_cvt_pk_bf16_f32 v{T + 2}, v{ka}, v{ka + 4}", f"v_cvt_pk_bf16_f32 v{T + 3}, v{ka + 1}, v{ka + 5}")
    pubk = [f"buffer_store_dword v{T + 2}, v{V_KMP}, {sr(S_WS, 4)}, s{S_KMO} offen sc1",
            f"buffer_store_dword v{T + 3}, v{V_KMP}, {sr(S_WS, 4)}, s{S_KMO} offen offset:256 sc1"]
    kmreg = [R + 32, R + 36, ka, ka + 4]
    if not last or late:
        put(fv, 4, f"ds_write2_b32 v{V_KW}, v{T + 2}, v{T + 3} offset0:0 offset1:{QKROW // 4}")
    if not last:
        put(fv, 7, "s_waitcnt lgkmcnt(0)", "s_barrier")
        rd = [f"ds_read_b128 {vr(A + 4 * ks, 4)}, v{V_QB} offset:{ks * 64}" for ks in range(4)]
        rd += [f"ds_read_b128 {vr(kmreg[ks], 4)}, v{V_QB} offset:{L_K - L_QK + ks * 64}" for ks in range(4)]
        spread(fv, rd, 8, 2)
        if not late and not nopub and not abl('pubk'):
            put(fv, 12, pubk[0])
            put(fv, 13, pubk[1])
        if OPT['kxgpos'] == 'v' and not abl('kxg'):
            x = kxg_loads()
            put(fv, 14, x[0], x[1])
            put(fv, 15, x[2])
    elif not late:
        put(fv, 5, pubk[0])
        put(fv, 6, pubk[1])
    weave(a, mv, fv)

    vadd = xy_adds(va)
    vcvt = [f"v_cvt_pk_bf16_f32 v{va}, v{va}, v{va + 1}", f"v_cvt_pk_bf16_f32 v{va + 4}, v{va + 4}, v{va + 5}"]
    pubv = [f"buffer_store_dword v{va}, v{V_VMP}, {sr(S_WS, 4)}, s{S_VMO} offen sc1",
            f"buffer_store_dword v{va + 4}, v{V_VMP}, {sr(S_WS, 4)}, s{S_VMO} offen offset:512 sc1"]
    if last:
        for x in vadd + vcvt:
            a(x)
        if late:
            a(stage_v)
            a(pub_read)
            a(pub_store(S_KMO))
        else:
            for x in pubv:
                a(x)
        return

    ph(a, 1)
    sT0, sT1, sM = ACC, ACC + 4, ACC + 24
    PT, PM = ACC + 8, ACC + 28
    ones = R + 32
    tm, tu = T + 2, T + 1
    ms = []
    for d, src in ((sT0, lambda ks: R + 4 * ks), (sT1, lambda ks: R + 16 + 4 * ks), (sM, lambda ks: kmreg[ks])):
        for ks in range(4):
            ms.append(f"v_mfma_f32_16x16x32_bf16 {vr(d, 4)}, {vr(src(ks), 4)}, {vr(A + 4 * ks, 4)}, "
                      f"{'0' if ks == 0 else vr(d, 4)}")
    oreg = {('o', 4, 0): A + 16, ('o', 4, 1): A + 24, ('o', 5, 0): A, ('o', 5, 1): A + 8,
            ('o', 6, 0): R, ('o', 6, 1): R + 8, ('o', 7, 0): R + 16, ('o', 7, 1): R + 24}
    rdo = {f: ldsfrag_reads(PL[f][1], r) for f, r in oreg.items()}
    fs = {}
    spread(fs, rdo[('o', 4, 0)] + rdo[('o', 4, 1)], 0, 2)
    spread(fs, vadd, 1, 2)
    put(fs, 3, *vcvt)
    put(fs, 4, f"v_mov_b32 v{va + 1}, 0", f"v_mov_b64 {vr(va + 2, 2)}, 0")
    put(fs, 5, f"v_mov_b32 v{va + 5}, 0", f"v_mov_b64 {vr(va + 6, 2)}, 0")
    put(fs, 6, f"v_max3_f32 v{tm}, v{sT0}, v{sT0 + 1}, v{sT0 + 2}", f"v_mov_b32 v{PM + 1}, 0")
    put(fs, 7, f"v_max_f32 v{tm}, v{tm}, v{sT0 + 3}", f"v_mov_b64 {vr(PM + 2, 2)}, 0")
    if not late and not nopub and not abl('pubv'):
        put(fs, 8, pubv[0])
        put(fs, 9, pubv[1])
    if OPT['kxgpos'] == 's' and not abl('kxg'):
        x = kxg_loads()
        put(fs, 8, x[0], x[1])
        put(fs, 9, x[2])
    put(fs, 10, f"v_max3_f32 v{tm}, v{tm}, v{sT1}, v{sT1 + 1}", f"v_mov_b64 {vr(ones, 2)}, {sr(S_ONES, 2)}")
    put(fs, 11, f"v_max3_f32 v{tm}, v{tm}, v{sT1 + 2}, v{sT1 + 3}", f"v_mov_b64 {vr(ones + 2, 2)}, {sr(S_ONES, 2)}")
    weave(a, ms, fs)
    for x in rdo[('o', 6, 0)] + rdo[('o', 6, 1)] + rdo[('o', 5, 0)] + rdo[('o', 5, 1)]:
        a(x)

    sv = [sT0 + i for i in range(4)] + [sT1 + i for i in range(4)] + [sM, sM + 1]
    a(f"v_max3_f32 v{tm}, v{tm}, v{sM}, v{sM + 1}")
    a(f"v_mov_b32 v{tu}, v{tm}")
    a(rdo[('o', 7, 0)][0])
    a(rdo[('o', 7, 0)][1])
    a(f"v_permlane32_swap_b32 v{tm}, v{tu}")
    a(f"v_max_f32 v{tm}, v{tm}, v{tu}")
    a(f"v_mov_b32 v{tu}, v{tm}")
    a(rdo[('o', 7, 1)][0])
    a(rdo[('o', 7, 1)][1])
    a(f"v_permlane16_swap_b32 v{tm}, v{tu}")
    a(f"v_max_f32 v{tm}, v{tm}, v{tu}")
    a(f"v_mul_f32 v{tm}, s{S_NSC}, v{tm}")
    for i in (0, 2, 4, 6, 8):
        a(f"v_pk_fma_f32 {vr(sv[i], 2)}, {vr(sv[i], 2)}, {sr(S_SC, 2)}, {vr(tm, 2)} op_sel_hi:[1,1,0]")
    ex = [f"v_exp_f32 v{sv[i]}, v{sv[i]}" for i in range(10)]
    cv = [f"v_cvt_pk_bf16_f32 v{PT + j}, v{sv[2 * j]}, v{sv[2 * j + 1]}" for j in range(4)]
    cv.append(f"v_cvt_pk_bf16_f32 v{PM}, v{sv[8]}, v{sv[9]}")
    for x in ex[0:3] + [cv[0]] + ex[3:5] + [cv[1]] + ex[5:7] + [cv[2]] + ex[7:9] + [cv[3]] + [ex[9]]:
        a(x)

    ph(a, 2)
    o0, o1, lsum = ACC, ACC + 4, ACC + 24
    a(f"v_mfma_f32_16x16x32_bf16 {vr(o0, 4)}, {vr(PT, 4)}, {vr(VX, 4)}, 0")
    a(cv[4])
    a(f"v_mfma_f32_16x16x32_bf16 {vr(o1, 4)}, {vr(PT, 4)}, {vr(VX + 4, 4)}, 0")
    a(f"v_mfma_f32_16x16x32_bf16 {vr(lsum, 4)}, {vr(PT, 4)}, {vr(ones, 4)}, 0")
    a(f"v_mfma_f32_16x16x32_bf16 {vr(lsum, 4)}, {vr(PM, 4)}, {vr(ones, 4)}, {vr(lsum, 4)}")
    a(f"v_mfma_f32_16x16x32_bf16 {vr(o0, 4)}, {vr(PM, 4)}, {vr(va, 4)}, {vr(o0, 4)}")
    a(f"v_mfma_f32_16x16x32_bf16 {vr(o1, 4)}, {vr(PM, 4)}, {vr(va + 4, 4)}, {vr(o1, 4)}")
    la, lb = T + 2, T + 3
    if OPT['kxgpos'] == 'pv' and not abl('kxg'):
        for x in kxg_loads():
            a(x)
    a(f"v_rcp_f32 v{la}, v{lsum}")
    a(f"v_rcp_f32 v{lb}, v{lsum + 1}")
    if OPT['vxpos'] == 'pv' and not abl('vx'):
        for x in vx_loads():
            a(x)
    for i in range(8, 16, 2):
        a(f"v_mov_b64 {vr(ACC + i, 2)}, 0")
    a(f"v_mul_f32 v{o0}, v{o0}, v{la}")
    a(f"v_mul_f32 v{o0 + 1}, v{o0 + 1}, v{lb}")
    a(f"v_mul_f32 v{o1}, v{o1}, v{la}")
    a(f"v_mul_f32 v{o1 + 1}, v{o1 + 1}, v{lb}")
    a(f"v_cvt_pk_bf16_f32 v{la}, v{o0}, v{o1}")
    a(f"v_cvt_pk_bf16_f32 v{lb}, v{o0 + 1}, v{o1 + 1}")
    a(f"ds_write2_b32 v{V_OW}, v{la}, v{lb} offset0:0 offset1:{QKROW // 4}")
    for i in range(0, 8, 2):
        a(f"v_mov_b64 {vr(ACC + i, 2)}, 0")
    a("s_waitcnt lgkmcnt(0)")
    ph(a, 3)
    a("s_barrier")
    oA = R + 32
    a(f"ds_read_b128 {vr(oA, 4)}, v{V_OA}")
    a(f"ds_read_b128 {vr(oA + 4, 4)}, v{V_OA} offset:128")
    if late and not nopub:
        a(stage_v)
    for i in range(16, 32, 2):
        a(f"v_mov_b64 {vr(ACC + i, 2)}, 0")

    mo = []
    for k in range(4):
        for J2 in range(2):
            for c in range(2):
                t = 2 * k + c
                mo.append(smf(ACC + 4 * t, oA + 4 * J2, frag_b(('o', t, J2), oreg)))

    def post(k, packed=False):
        d0 = ACC + 8 * k
        d1 = d0 + 4
        if packed:
            adds = [f"v_pk_add_f32 {vr(d0, 2)}, {vr(d0, 2)}, {vr(d0 + 2, 2)}",
                    f"v_pk_add_f32 {vr(d1, 2)}, {vr(d1, 2)}, {vr(d1 + 2, 2)}"]
        else:
            adds = [f"v_add_f32 v{d0}, v{d0}, v{d0 + 2}", f"v_add_f32 v{d0 + 1}, v{d0 + 1}, v{d0 + 3}",
                    f"v_add_f32 v{d1}, v{d1}, v{d1 + 2}", f"v_add_f32 v{d1 + 1}, v{d1 + 1}, v{d1 + 3}"]
        return adds + [f"v_cvt_pk_bf16_f32 v{d0 + 2}, v{d0}, v{d1}", f"v_cvt_pk_bf16_f32 v{d0 + 3}, v{d0 + 1}, v{d1 + 1}",
                       f"v_and_or_b32 v{d0 + 3}, v{d0 + 3}, -2, s{S_TAG}",
                       f"buffer_store_dwordx2 {vr(d0 + 2, 2)}, v{V_PS}, {sr(S_WS, 4)}, s{S_PS + k} offen{st_mod}"]

    fo = {}
    for k in range(3):
        x = post(k)
        put(fo, 4 * k + 4, x[0])
        put(fo, 4 * k + 5, x[1], x[2])
        put(fo, 4 * k + 6, x[3], x[4])
        put(fo, 4 * k + 7, x[5], x[6], x[7])
    pre = []
    for i in range(5):
        pre += ldsfrag_reads(i, R + 8 * i)
    SEL = A + 16
    put(fo, 15, f"ds_read_b128 {vr(SEL, 4)}, v{V_QB} offset:256", *pre[:6])
    put(fo, 15, *post(3, packed=True))
    weave(a, mo, fo)
    nside = 0
    if OPT['kxgpos'] == 'wo' and not abl('kxg'):
        for x in kxg_loads():
            a(x)
        nside += 2
    if OPT['vxpos'] == 'wo' and not abl('vx'):
        for x in vx_loads():
            a(x)
        nside += 2
    for y in pre[6:]:
        a(y)

    ph(a, 4)
    X, D = A, A + 20
    P8 = ACC + 24
    u = T + 2
    cnt_begin(a, 100)
    for i in range(0, 24, 2):
        a(f"v_mov_b64 {vr(ACC + i, 2)}, 0")
    for i in (1, 3, 5, 7):
        a(f"v_not_b32 v{X + i}, s{S_TAGM}")
    for i in range(8):
        a(f"v_mov_b32 v{P8 + i}, -1")
    if OPT['imask']:
        a("s_mov_b64 vcc, -1")
    if OPT['ifirst'] == 'ack':
        go = a.newlabel("pi_go")
        d = OPT['ackd'] + nside
        for k in range(4):
            a(f"s_waitcnt vmcnt({min(max(3 - k + d, 0), 63)})")
            if k < 3:
                a(f"s_cmp_eq_u32 s{S_CLS}, {k}")
                a(f"s_cbranch_scc1 {go}")
        a.label(go)

    def issue_():
        a(f"buffer_load_dwordx4 {vr(X, 4)}, v{V_MP}, {sr(S_WS, 4)}, s{S_IN} offen sc1", nowait=True)
        a(f"buffer_load_dwordx4 {vr(X + 4, 4)}, v{V_MP}, {sr(S_WS, 4)}, s{S_IN} offen offset:1024 sc1", nowait=True)

    def check_():
        a(f"v_bitop3_b32 v{u}, v{X + 1}, v{X + 3}, s{S_TAGM} bitop3:0x7e", nowait=True)
        a(f"v_bitop3_b32 v{u + 1}, v{X + 5}, v{X + 7}, s{S_TAGM} bitop3:0x7e", nowait=True)
        a(f"v_bitop3_b32 v{u}, v{u}, v{u + 1}, 1 bitop3:0xa8")
        a(f"v_cmp_ne_u32 vcc, 0, v{u}")

    ph(a, 8)
    spin(a, "pi", issue_, check_, OPT['idepth'], OPT['imask'], OPT['isleep'], also=" lgkmcnt(0)")
    a(f"v_mfma_f32_16x16x32_bf16 {vr(D, 4)}, {vr(SEL, 4)}, {vr(X, 4)}, 0", nowait=True)
    a(f"v_mfma_f32_16x16x32_bf16 {vr(D, 4)}, {vr(SEL, 4)}, {vr(X + 4, 4)}, {vr(D, 4)}", nowait=True)
    cnt_end(a, 100)
    ph(a, 5)
    for rot in (8, 4):
        for i in range(2):
            a(f"v_add_f32_dpp v{D + i}, v{D + i}, v{D + i} row_ror:{rot} row_mask:0xf bank_mask:0xf")
    a(f"v_cvt_pk_bf16_f32 v{D}, v{D}, v{D + 1}")
    a(f"v_min_u32 v{D}, -2, v{D}")
    a(f"buffer_store_dword v{D}, v{V_MS}, {sr(S_WS, 4)}, s{S_MST} offen{st_mod}")
    ph(a, 6)
    ph_flush(a)
    a(f"s_mov_b32 s{S_FLV}, s{S_STEP}")
    a(f"s_mov_b32 s{S_KMP}, s{S_KMO}")
    a(f"s_add_u32 s{S_STEP}, s{S_STEP}, 1")
    a(f"s_add_u32 s{S_MOFF}, s{S_MOFF}, 8192")
    a(f"s_add_u32 s{S_MST}, s{S_MST}, 8192")
    a(f"s_add_u32 s{S_KMO}, s{S_KMO}, 65536")
    if not late:
        a(f"s_add_u32 s{S_VMO}, s{S_VMO}, 65536")
    a(f"s_add_u32 s{S_KFO}, s{S_KFO}, 0x40000")
    a(f"s_add_u32 s{S_VFO}, s{S_VFO}, 0x40000")
    a(f"s_xor_b32 s{S_TAG}, s{S_TAG}, 1")
    a(f"s_not_b32 s{S_TAGM}, s{S_TAGM}")


def stamp(a, slot, enable):
    if not enable:
        return
    l = a.newlabel("ts")
    a(f"s_cmp_lg_u32 s{S_WAVE}, 0")
    a(f"s_cbranch_scc1 {l}")
    for op, off in (("s_memtime", 0), ("s_memrealtime", 128)):
        a(f"{op} {sr(S_TS, 2)}")
        a("s_waitcnt lgkmcnt(0)")
        a(f"v_mov_b32 v{T + 2}, s{S_TS}")
        a(f"v_mov_b32 v{T + 3}, s{S_TS + 1}")
        a(f"s_lshl_b32 s{S_T1}, s{S_H}, 8")
        a(f"s_add_u32 s{S_T1}, s{S_T1}, {hex(WS_TS + slot * 8 + off)}")
        a(f"buffer_store_dwordx2 {vr(T + 2, 2)}, off, {sr(S_WS, 4)}, s{S_T1}")
    a.label(l)


def chain_role(a, st_mod="", use_flags=True, stamps=False, nsteps=63, dump=False):
    chain_pre(a, stamps)
    chain_body(a, st_mod, use_flags, stamps, nsteps, dump)


def chain_pre(a, stamps=False):
    vtid = 0
    make_srd(a, S_WQ, 'wq')
    make_srd(a, S_WK, 'wk')
    make_srd(a, S_WV, 'wv')
    make_srd(a, S_WO, 'wo')
    make_srd(a, S_M0, 'mem0')
    a(f"s_mov_b32 s{S_SELLO}, 0x05040100")
    a(f"s_mov_b32 s{S_SELHI}, 0x07060302")
    a("s_waitcnt lgkmcnt(0)")
    stamp(a, 0, stamps)
    load_weights(a, vtid)
    stamp(a, 1, stamps)


def chain_body(a, st_mod="", use_flags=True, stamps=False, nsteps=63, dump=False):
    vtid = 0
    load_mem0(a, vtid)
    a(f"v_mov_b32 v{R}, v{vtid}")
    P8 = ACC + 24
    consts(a, R)
    a(f"ds_write_b128 v{V_MP}, {vr(P8, 4)} offset:{L_M}")
    a(f"ds_write_b128 v{V_MP}, {vr(P8 + 4, 4)} offset:{L_M + 1024}")
    a(f"s_mov_b32 s{S_STEP}, 0")
    a(f"s_mov_b32 s{S_TAG}, 0")
    a(f"s_mov_b32 s{S_TAGM}, 0")
    a(f"s_mov_b32 s{S_RETRY}, 0x100000")
    a(f"s_mov_b32 s{S_MOFF}, {hex(WS_M)}")
    a(f"s_lshl_b32 s{S_T0}, s{S_H}, 8")
    a(f"s_add_u32 s{S_MST}, s{S_T0}, {hex(WS_M + 8192)}")
    a(f"s_add_u32 s{S_FLKV}, s{S_T0}, {hex(WS_FLAG + FL_KV)}")
    a(f"s_add_u32 s{S_FLMEM}, s{S_T0}, {hex(WS_FLAG + FL_MEM)}")
    a(f"s_lshl_b32 s{S_T0}, s{S_H}, 11")
    a(f"s_add_u32 s{S_KMO}, s{S_T0}, {hex(WS_KM)}")
    a(f"s_add_u32 s{S_KMP}, s{S_T0}, {hex(WS_DUMMY)}")
    a(f"s_mov_b32 s{S_FLV}, 0")
    a(f"s_cmp_eq_u32 s{S_WAVE}, 0")
    a(f"s_cselect_b32 s{S_FLEX}, 1, 0")
    a(f"s_mov_b32 s{S_FLEX + 1}, 0")
    a(f"s_add_u32 s{S_VMO}, s{S_T0}, {hex(WS_VM)}")
    a(f"s_lshl_b32 s{S_T0}, s{S_H}, 13")
    a(f"s_add_u32 s{S_KFO}, s{S_T0}, {hex(WS_KF)}")
    a(f"s_add_u32 s{S_VFO}, s{S_T0}, {hex(WS_VF)}")
    a(f"s_mov_b32 s{S_HI}, 0")
    a(f"s_mov_b32 s{S_HI + 1}, -1")
    a(f"s_mov_b32 s{S_ONES}, 0x3f803f80")
    a(f"s_mov_b32 s{S_ONES + 1}, 0x3f803f80")
    a(f"s_mov_b32 s{S_SC}, {f32hex(SCALE_LOG2E)}")
    a(f"s_mov_b32 s{S_SC + 1}, {f32hex(SCALE_LOG2E)}")
    a(f"s_mov_b32 s{S_NSC}, {f32hex(-SCALE_LOG2E)}")
    a(f"s_lshl_b32 s{S_M0KX}, s{S_WAVE}, 11")
    a(f"s_add_u32 s{S_M0KX}, s{S_M0KX}, {L_KX}")
    a(f"s_lshl_b32 s{S_T0}, s{S_WAVE}, 14")
    a(f"s_lshl_b32 s{S_T1}, s{S_H}, 6")
    a(f"s_add_u32 s{S_T0}, s{S_T0}, s{S_T1}")
    for k in range(4):
        a(f"s_add_u32 s{S_PS + k}, s{S_T0}, {hex(WS_IN + k * 65536)}")
    a(f"s_lshl_b32 s{S_T0}, s{S_H}, 13")
    a(f"s_add_u32 s{S_IN}, s{S_T0}, {hex(WS_IN)}")
    a(f"s_lshr_b32 s{S_CLS}, s{S_H}, 3")
    wait_ready(a, T + 2)
    if use_flags:
        a(f"s_mov_b32 s{S_STEP}, -1")
        a(f"buffer_load_dword v{T}, v{V_FL}, {sr(S_WS, 4)}, s{S_FLKV} offen sc1")
        kv_flag_check(a, True)
        a(f"s_mov_b32 s{S_STEP}, 0")
    a(f"s_mov_b32 m0, s{S_M0KX}")
    a(f"buffer_load_dwordx4 v{V_KXG}, {sr(S_WS, 4)}, s{S_KFO} offen sc1 lds")
    a(f"buffer_load_dwordx4 v{V_KXG}, {sr(S_WS, 4)}, s{S_KFO} offen offset:1024 sc1 lds")
    a(f"buffer_load_dwordx4 {vr(VX, 4)}, v{V_VXG}, {sr(S_WS, 4)}, s{S_VFO} offen sc1")
    a(f"buffer_load_dwordx4 {vr(VX + 4, 4)}, v{V_VXG}, {sr(S_WS, 4)}, s{S_VFO} offen offset:2048 sc1")
    a(f"s_add_u32 s{S_KFO}, s{S_KFO}, 0x40000")
    if OPT['vxpos'] != 'q':
        a(f"s_add_u32 s{S_VFO}, s{S_VFO}, 0x40000")
    a("s_waitcnt vmcnt(0) lgkmcnt(0)")
    phase_w(a)
    kv_flag_check(a, use_flags)
    stamp(a, 2, stamps)
    dstamp(a, 12, 0)
    loop, entry_l = a.newlabel("step"), a.newlabel("step_in")
    a(f"s_branch {entry_l}")
    a.label(loop)
    kv_flag_check(a, use_flags)
    poll_m(a)
    a.label(entry_l)
    step(a, st_mod, use_flags)
    a(f"s_cmp_lt_u32 s{S_STEP}, {nsteps}")
    a(f"s_cbranch_scc1 {loop}")
    stamp(a, 3, stamps)
    poll_m(a)
    step(a, st_mod, use_flags, last=True)
    a("s_waitcnt vmcnt(0)")
    a("s_barrier")
    l = a.newlabel("fin")
    a(f"s_cmp_lg_u32 s{S_WAVE}, 0")
    a(f"s_cbranch_scc1 {l}")
    a(f"v_mov_b32 v{T + 2}, 64")
    a(f"v_mov_b32 v{T + 3}, 0")
    a(f"buffer_store_dword v{T + 2}, v{T + 3}, {sr(S_WS, 4)}, s{S_FLMEM} offen sc1")
    a.label(l)
    stamp(a, 4, stamps)
    if dump:
        a("s_barrier")
        a(f"s_lshl_b32 s{S_T0}, s{S_H}, 15")
        a(f"s_add_u32 s{S_T0}, s{S_T0}, {hex(WS_DBG)}")
        a(f"v_lshrrev_b32 v{A}, 2, v{V_FL}")
        a(f"v_lshlrev_b32 v{A}, 4, v{A}")
        a(f"s_lshl_b32 s{S_T1}, s{S_WAVE}, 10")
        a(f"v_add_u32 v{A}, s{S_T1}, v{A}")
        for i in range(6):
            a(f"ds_read_b128 {vr(A + 4, 4)}, v{A} offset:{i * 4096}")
            a(f"buffer_store_dwordx4 {vr(A + 4, 4)}, v{A}, {sr(S_WS, 4)}, s{S_T0} offen")
            a(f"s_add_u32 s{S_T0}, s{S_T0}, 4096")
            a("s_waitcnt vmcnt(0)")
```

```python
from asmlib import *
from layout import *

KA = dict(x=0, mem0=8, wq=16, wk=24, wv=32, wo=40, seglen=48, bx=56, wg=64, wu=72, wd=80, gw=88, out=96, dbg=104,
          ws=112)
SIZE = dict(x=2048 * 512 * 2, mem0=8 * 512 * 2, wq=512 * 4096 * 2, wk=512 * 4096 * 2, wv=512 * 4096 * 2,
            wo=4096 * 512 * 2, bx=2048 * 512 * 2, wg=512 * 1376 * 2, wu=512 * 1376 * 2, wd=1376 * 512 * 2,
            gw=512 * 2, out=2048 * 512 * 2, dbg=256, ws=WS_SIZE)

S_WS = 4
S_DBG = 8
S_XCC = 12
S_TICKET = 13
S_WAVE = 14
S_TMP = 15
S_ROLE = 20
S_MODE = 21
S_EXEC = 22
S_FREE = 24

OOB = 0x40000000


def make_srd(a, s, name):
    a(f"s_load_dwordx2 {sr(s, 2)}, s[0:1], {KA[name]}")
    a(f"s_mov_b32 s{s + 2}, {hex(SIZE[name])}")
    a(f"s_mov_b32 s{s + 3}, 0x20000")


def spin_label_pair(a, stem):
    return a.newlabel(stem + "_top"), a.newlabel(stem + "_out")


def entry(a, nwg=256, lds_scratch=0):
    a(f"s_cmp_ge_u32 s2, {nwg}")
    a("s_cbranch_scc1 L_exit")
    if DSTAMPS:
        a("s_memrealtime s[96:97]")
    make_srd(a, S_WS, 'ws')
    make_srd(a, S_DBG, 'dbg')
    a(f"s_getreg_b32 s{S_XCC}, hwreg(HW_REG_XCC_ID)")
    a(f"s_and_b32 s{S_XCC}, s{S_XCC}, 7")
    a("v_lshrrev_b32 v1, 6, v0")
    a("s_nop 0")
    a(f"v_readfirstlane_b32 s{S_WAVE}, v1")
    a("v_mov_b32 v2, -1")
    a("v_mov_b32 v3, -1")
    a("v_mov_b32 v4, 0")
    a("v_lshlrev_b32 v1, 3, v0")
    a(f"s_lshl_b32 s{S_TMP}, s2, 11")
    a(f"s_add_u32 s{S_TMP + 1}, s{S_TMP}, {hex(WS_IN)}")
    a(f"s_add_u32 s{S_TMP + 2}, s{S_TMP}, {hex(WS_M)}")
    a(f"s_lshl_b32 s{S_TMP + 3}, s2, 7")
    a(f"s_add_u32 s{S_TMP + 3}, s{S_TMP + 3}, {hex(WS_FLAG)}")
    a("v_lshlrev_b32 v5, 2, v0")
    a(f"v_mov_b32 v6, {hex(OOB)}")
    a("v_cmp_gt_u32 vcc, 32, v0")
    a("v_cndmask_b32 v5, v6, v5, vcc")
    a("s_waitcnt lgkmcnt(0)")
    a(f"buffer_store_dwordx2 v[2:3], v1, {sr(S_WS, 4)}, s{S_TMP + 1} offen sc1")
    a(f"buffer_store_dwordx2 v[2:3], v1, {sr(S_WS, 4)}, s{S_TMP + 2} offen sc1")
    a(f"buffer_store_dword v4, v5, {sr(S_WS, 4)}, s{S_TMP + 3} offen sc1")
    l_skip = a.newlabel("tk_skip")
    a(f"s_cmp_lg_u32 s{S_WAVE}, 0")
    a(f"s_cbranch_scc1 {l_skip}")
    a(f"s_lshl_b32 s{S_TMP}, s{S_XCC}, 2")
    a("v_mov_b32 v6, 1")
    a(f"v_mov_b32 v7, {hex(OOB)}")
    a("v_cmp_eq_u32 vcc, 0, v0")
    a(f"v_cndmask_b32 v7, v7, v4, vcc")
    a(f"buffer_atomic_add v6, v7, {sr(S_DBG, 4)}, s{S_TMP} offen sc0 sc1")
    a("s_waitcnt vmcnt(0)")
    a(f"v_mov_b32 v7, {lds_scratch}")
    a(f"s_mov_b64 {sr(S_EXEC, 2)}, exec")
    a("s_mov_b64 exec, 1")
    a("ds_write_b32 v7, v6")
    a(f"s_mov_b64 exec, {sr(S_EXEC, 2)}")
    a.label(l_skip)
    a("s_waitcnt vmcnt(0) lgkmcnt(0)")
    a("s_barrier")
    l_skip2 = a.newlabel("rd_skip")
    a(f"s_cmp_lg_u32 s{S_WAVE}, 0")
    a(f"s_cbranch_scc1 {l_skip2}")
    a("v_mov_b32 v6, 1")
    a(f"v_mov_b32 v7, {hex(OOB)}")
    a("v_cmp_eq_u32 vcc, 0, v0")
    a(f"v_cndmask_b32 v7, v7, v4, vcc")
    a(f"buffer_atomic_add v6, v7, {sr(S_DBG, 4)}, 0 offen offset:{DBG_READY * 4} sc1")
    a.label(l_skip2)
    a(f"v_mov_b32 v7, {lds_scratch}")
    a("ds_read_b32 v6, v7")
    a("s_waitcnt lgkmcnt(0)")
    a(f"v_readfirstlane_b32 s{S_TICKET}, v6")
    a("s_barrier")


def wait_ready(a, vt, nwg=256, limit=200000):
    top, out = spin_label_pair(a, "rdy")
    a(f"s_mov_b32 s{S_TMP}, {limit}")
    a(f"v_mov_b32 v{vt + 1}, {DBG_READY * 4}")
    a.label(top)
    a(f"buffer_load_dword v{vt}, v{vt + 1}, {sr(S_DBG, 4)}, 0 offen sc1")
    a("s_waitcnt vmcnt(0)")
    a(f"v_readfirstlane_b32 s{S_TMP + 1}, v{vt}")
    a(f"s_cmp_ge_u32 s{S_TMP + 1}, {nwg}")
    a(f"s_cbranch_scc1 {out}")
    a(f"s_sub_u32 s{S_TMP}, s{S_TMP}, 1")
    a(f"s_cmp_lg_u32 s{S_TMP}, 0")
    a(f"s_cbranch_scc1 {top}")
    a.label(out)


def mode_check(a, vt, fallback, expect=32):
    ok = a.newlabel("mode_ok")
    a(f"s_cmp_lg_u32 s{S_MODE}, 0")
    a(f"s_cbranch_scc1 {ok}")
    wait_ready(a, vt)
    a(f"v_and_b32 v{vt + 1}, 63, v0")
    a(f"v_lshlrev_b32 v{vt + 1}, 2, v{vt + 1}")
    a(f"buffer_load_dword v{vt}, v{vt + 1}, {sr(S_DBG, 4)}, 0 offen sc1")
    a(f"v_cmp_ne_u32 vcc, {expect}, v{vt}")
    a(f"s_and_b32 s{S_TMP}, vcc_lo, 0xff")
    a(f"s_cmp_lg_u32 s{S_TMP}, 0")
    a(f"s_cbranch_scc1 {fallback}")
    a.label(ok)


RSTAMPS = False
DSTAMPS = False


def dstamp(a, slot, role, first=False):
    if not DSTAMPS:
        return
    l = a.newlabel("dts")
    a(f"s_cmp_lg_u32 s{S_WAVE}, 0")
    a(f"s_cbranch_scc1 {l}")
    a(f"s_cmp_lg_u32 s{S_ROLE}, {role}")
    a(f"s_cbranch_scc1 {l}")
    if not first:
        a("s_memrealtime s[98:99]")
        a("s_waitcnt lgkmcnt(0)")
        a("v_mov_b32 v31, s98")
    else:
        a("v_mov_b32 v31, s96")
    a(f"buffer_store_dword v31, off, {sr(S_DBG, 4)}, 0 offset:{slot * 4}")
    a.label(l)

WS_RT = 0x4180000


def rstamp(a, slot, sreg=None):
    if not RSTAMPS:
        return
    l = a.newlabel("rts")
    a(f"s_cmp_lg_u32 s{S_WAVE}, 0")
    a(f"s_cbranch_scc1 {l}")
    a("s_memrealtime s[98:99]")
    a(f"s_lshl_b32 s100, s{S_ROLE}, 8")
    a(f"s_add_u32 s100, s100, {hex(WS_RT + slot * 4)}")
    if sreg is not None:
        a(f"s_lshl_b32 s101, s{sreg}, 2")
        a("s_add_u32 s100, s100, s101")
    a("s_waitcnt lgkmcnt(0)")
    a("v_mov_b32 v31, s98")
    a(f"buffer_store_dword v31, off, {sr(S_WS, 4)}, s100")
    a.label(l)


HEADER = """; @launch grid=(256,1,1) block=(256,1,1) lds={lds}
.amdgcn_target "amdgcn-amd-amdhsa--gfx950"
.text
.globl {name}
.p2align 8
.type {name},@function
"""

FOOTER = """.section .rodata,"a"
.p2align 6
.amdhsa_kernel {name}
  .amdhsa_next_free_vgpr 512
  .amdhsa_next_free_sgpr 102
  .amdhsa_accum_offset 256
  .amdhsa_group_segment_fixed_size 0
  .amdhsa_kernarg_size 120
  .amdhsa_user_sgpr_count 2
  .amdhsa_user_sgpr_kernarg_segment_ptr 1
  .amdhsa_system_sgpr_workgroup_id_x 1
.end_amdhsa_kernel
"""


def lanefn(a, dst, f, vtid, t0, t1, stmp, nbits=8):
    N = 1 << nbits
    c = [int(f(t)) for t in range(N)]
    for i in range(nbits):
        for m in range(N):
            if m >> i & 1:
                c[m] -= c[m ^ (1 << i)]
    first = True

    def acc(coef, treg):
        nonlocal first
        coef32 = coef & 0xFFFFFFFF
        small = -(1 << 23) <= coef < (1 << 23)
        if small and -16 <= coef <= 64:
            k = str(coef)
        else:
            a(f"s_mov_b32 s{stmp}, {hex(coef32)}")
            k = f"s{stmp}"
        if small:
            a(f"v_mad_i32_i24 v{dst}, v{treg}, {k}, v{dst}")
        else:
            a(f"v_mul_lo_u32 v{t1}, v{treg}, {k}")
            a(f"v_add_u32 v{dst}, v{dst}, v{t1}")

    a(f"v_mov_b32 v{dst}, {hex(c[0] & 0xFFFFFFFF)}")
    done = set([0])
    i = 0
    while i < nbits:
        ci = c[1 << i]
        if ci == 0:
            i += 1
            continue
        j = i
        while j + 1 < nbits and c[1 << (j + 1)] == ci * (1 << (j + 1 - i)):
            j += 1
        a(f"v_bfe_u32 v{t0}, v{vtid}, {i}, {j - i + 1}")
        acc(ci, t0)
        i = j + 1
    for m in range(1, N):
        if bin(m).count('1') < 2 or c[m] == 0:
            continue
        bits = [b for b in range(nbits) if m >> b & 1]
        a(f"v_bfe_u32 v{t0}, v{vtid}, {bits[0]}, 1")
        for b in bits[1:]:
            a(f"v_bfe_u32 v{t1}, v{vtid}, {b}, 1")
            a(f"v_and_b32 v{t0}, v{t0}, v{t1}")
        acc(c[m], t0)


def weave(a, main, fills):
    for x in fills.get(-1, []):
        a(x)
    for i, m in enumerate(main):
        a(m)
        for x in fills.get(i, []):
            a(x)


def spread(fills, lst, start, per=2):
    p = start
    i = 0
    while i < len(lst):
        fills.setdefault(p, []).extend(lst[i:i + per])
        i += per
        p += 1
    return p
```

```python
import sys
from asmlib import *
from common import *
import chain, hrole, frole
from build import build, KNAME

LDS = 163840


def gen(force_fallback=False, stamps=False):
    a = Asm()
    a.label(KNAME)
    entry(a, lds_scratch=0)
    expect = 33 if force_fallback else 32
    a(f"s_mov_b32 s{S_MODE}, 0")
    a(f"s_lshl_b32 s{S_ROLE}, s{S_XCC}, 5")
    a(f"s_add_u32 s{S_ROLE}, s{S_ROLE}, s{S_TICKET}")
    a(f"s_cmp_lt_u32 s{S_TICKET}, 32")
    a("s_cbranch_scc1 L_dispatch")
    wait_ready(a, 2)
    a.label("L_fallback")
    a("s_waitcnt vmcnt(0) lgkmcnt(0)")
    a("s_barrier")
    a(f"s_mov_b32 s{S_MODE}, 1")
    a(f"s_mov_b32 s{S_ROLE}, s2")
    a.label("L_dispatch")
    rstamp(a, 0)
    dstamp(a, 9, 0, first=True)
    dstamp(a, 10, 0)
    a(f"s_cmp_ge_u32 s{S_ROLE}, 128")
    a("s_cbranch_scc1 L_f")
    a(f"s_cmp_ge_u32 s{S_ROLE}, 32")
    a("s_cbranch_scc1 L_h")
    a(f"s_mov_b32 s{chain.S_H}, s{S_ROLE}")
    chain.chain_pre(a, stamps)
    rstamp(a, 1)
    dstamp(a, 11, 0)
    mode_check(a, chain.T + 2, "L_fallback", expect)
    a(f"s_cmp_lg_u32 s{S_MODE}, 0")
    a("s_cbranch_scc1 L_chain_agent")
    chain.chain_body(a, "", True, stamps)
    rstamp(a, 3)
    dstamp(a, 13, 0)
    a("s_branch L_end")
    a.label("L_chain_agent")
    chain.chain_body(a, " sc1", True, stamps)
    a("s_branch L_end")
    a.label("L_h")
    hrole.h_prologue(a)
    rstamp(a, 1)
    dstamp(a, 15, 32)
    mode_check(a, 20, "L_fallback", expect)
    hrole.h_phase1(a)
    rstamp(a, 2)
    hrole.h_phase2(a)
    rstamp(a, 3)
    a("s_branch L_end")
    a.label("L_f")
    frole.f_prologue(a)
    rstamp(a, 1)
    mode_check(a, 24, "L_fallback", expect)
    frole.f_hidden(a)
    rstamp(a, 2)
    frole.f_gate(a)
    rstamp(a, 4)
    frole.f_weights(a)
    rstamp(a, 5)
    frole.f_main(a)
    rstamp(a, 3)
    dstamp(a, 14, 255)
    a.label("L_end")
    a("s_waitcnt vmcnt(0)")
    a.label("L_exit")
    a("s_endpgm")
    n = a.finalize()
    print("instructions", a.count(), "nops", n)
    return a.text()


def wrap(body, lds=LDS):
    ref = open('cdna_kernels/' + KNAME[:-7] + '.s.ref').read()
    head = ref[:ref.index('; @launch')]
    return head + HEADER.format(name=KNAME, lds=lds) + body + FOOTER.format(name=KNAME)


if __name__ == "__main__":
    fb = 'fb' in sys.argv
    name = None
    for x in sys.argv[1:]:
        if '=' in x:
            k, v = x.split('=')
            if k == 'name':
                name = v
            else:
                assert k in chain.OPT, k
                chain.OPT[k] = int(v) if v.lstrip('-').isdigit() else (' ' + v[1:] if v.startswith('_') else v)
    import common
    common.RSTAMPS = 'rts' in sys.argv
    common.DSTAMPS = 'dts' in sys.argv
    txt = wrap(gen(force_fallback=fb, stamps='ts' in sys.argv))
    out = "out_main" + ("_fb" if fb else "") + ("_dts" if 'dts' in sys.argv else "")
    if name:
        out = "gen/" + name
    print("ok", build(txt, out), len(txt))
    if 'install' in sys.argv:
        open('cdna_kernels/' + KNAME[:-7] + '.s', 'w').write(txt)
```

```python
import re
from collections import deque
from asmlib import *
from layout import *
from common import *

L_M = 0
L_KX = 8192
L_QK = 16384
QKROW = 320
L_K = L_QK + 8 * QKROW
L_O = L_K + 8 * QKROW
L_DUMMY = L_O + 8 * QKROW
L_W = L_DUMMY + 256
NLF = 17
WSTRIDE = NLF * 2048
CHAIN_LDS = L_W + 4 * WSTRIDE

(V_FL, V_IDX, V_MP, V_MA, V_W, V_QKW, V_QB, V_KW, V_KX0, V_KX1, V_KXG, V_VXG, V_PF, V_OW, V_OA, V_PS, V_IN, V_MS,
 V_KMP, V_VMP) = range(20)
V_VSW, V_PUBL, V_PUBG = V_IN, V_KMP, V_VMP
V_MQ = (V_MA, V_PF, V_KW)
A = 20
ACC = 52
R = 84
VX = 124
T = 132
RES0 = 136

S_WQ, S_WK, S_WV, S_WO, S_M0 = 24, 28, 32, 36, 40
S_H = 44
S_STEP = 45
S_TAGM = 46
S_TAG = 47
S_RETRY = 48
S_MOFF = 49
S_MST = 50
S_KMO = 51
S_VMO = 52
S_KFO = 53
S_VFO = 54
S_FLKV = 55
S_FLMEM = 56
S_T0 = 57
S_HI = 58
S_ONES = 60
S_SELLO = 62
S_SELHI = 63
S_SC = 64
S_NSC = 66
S_M0KX = 67
S_PS = 68
S_FLEX = 72
S_IN = 76
S_CLS = 77
S_FLV = 78
S_KMP = 79
S_T1 = 80
S_TS = 82
S_T2 = 84
S_PH = 86
PHASES = False
OPT = dict(inbox='spin', mpoll='spin', ackd=1, mdelay=0, pf='none', mfirst='', mdepth=2, msleep=0, idepth=2,
           isleep=0, ifirst='ack', mpf=1, mmask=0, mfast=0, mslow=1, mslowack=0, mfastack=1,
           imask=0, abl='', pub='late', kxgpos='v', vxpos='q', pfd=1, flag='one', pubpos=12, flagpos=8,
           pfpos=4, vxq=2, pfreg=0, pfmod='', pfs=64, pts='', noex=0, o1='qk', b2pos=7, refq=5, refper=1, aper=1, kxper=1, wos=1, pres=2, wint=0, rdper=1, pvo=1, stv=0, wop=1, gapn=2, nvf=1, qpf='m', mpre=0, mpeel=0, mgapn=0, igapn=0, mdly=0, iramp=0, icls=3, irgap=0, ifront=1, ackt='')


def abl(name):
    return name in str(OPT['abl']).split(',')


def cnt_begin(a, s_):
    if PHASES:
        a(f"s_mov_b32 s{s_}, s{S_RETRY}")


def cnt_end(a, s_):
    if PHASES:
        a(f"s_sub_u32 s{s_}, s{s_}, s{S_RETRY}")


XPH = {8: 74}
S_ACC = 24


def pts():
    return [x for x in str(OPT['pts']).split(',') if x]


def pt(a, name):
    if name in pts():
        a.raw(f"  s_memtime {sr(S_PH + 2 * pts().index(name), 2)}")


def pt_accumulate(a):
    if not pts():
        return
    skip = a.newlabel("pt_skip")
    a(f"s_cmp_lt_u32 s{S_STEP}, 5")
    a(f"s_cbranch_scc1 {skip}")
    a("s_waitcnt lgkmcnt(0)")
    for i in range(1, len(pts())):
        a(f"s_sub_u32 s{S_T1}, s{S_PH + 2 * i}, s{S_PH + 2 * i - 2}")
        a(f"s_add_u32 s{S_ACC + i}, s{S_ACC + i}, s{S_T1}")
    a(f"s_add_u32 s{S_ACC}, s{S_ACC}, 1")
    a.label(skip)


def pt_store(a):
    if not pts():
        return
    for i in range(8):
        a(f"v_writelane_b32 v{T + 1}, s{S_ACC + i}, {i}")
    a(f"s_lshl_b32 s{S_T1}, s{S_H}, 2")
    a(f"s_add_u32 s{S_T1}, s{S_T1}, s{S_WAVE}")
    a(f"s_lshl_b32 s{S_T1}, s{S_T1}, 8")
    a(f"s_add_u32 s{S_T1}, s{S_T1}, {hex(WS_TS2)}")
    a(f"buffer_store_dword v{T + 1}, v{V_FL}, {sr(S_WS, 4)}, s{S_T1} offen")


def pt_fills(fills, letter):
    for nm in pts():
        m = re.fullmatch(letter + r'(\d+)', nm)
        if m:
            put(fills, int(m.group(1)), '@pt ' + nm)


def emit(a, x):
    if x.startswith('@pt '):
        pt(a, x[4:])
    elif x.startswith('@ph '):
        ph(a, int(x[4:]))
    elif x.startswith('@nv '):
        a(x[4:], nowait='vm')
    else:
        a(x)


def order_gap(lst):
    if not OPT['nvf']:
        return lst
    out = []
    for x in lst:
        if x.startswith('@') and not x.startswith('@nv '):
            out.append(x)
            continue
        ins = Ins(x[4:] if x.startswith('@nv ') else x)
        pos = len(out)
        if ins.kind in ('ds', 'vmem'):
            while pos > 0:
                y = out[pos - 1]
                if y.startswith('@'):
                    break
                p = Ins(y)
                if p.kind != 'valu':
                    break
                if set(p.defs) & (set(ins.uses) | set(ins.defs)) or set(p.uses) & set(ins.defs):
                    break
                pos -= 1
        out.insert(pos, x)
    return out


def weave(a, main, fills):
    for x in fills.get(-1, []):
        emit(a, x)
    for i, m in enumerate(main):
        emit(a, m)
        for x in order_gap(fills.get(i, [])):
            emit(a, x)


def ph(a, k):
    if PHASES:
        a(f"s_memtime {sr(XPH.get(k, S_PH + 2 * k), 2)}")


def ph_flush(a):
    if not PHASES:
        return
    a("s_waitcnt lgkmcnt(0)")
    for k in range(7):
        a(f"v_writelane_b32 v{T + 1}, s{S_PH + 2 * k}, {k}")
    a(f"v_writelane_b32 v{T + 1}, s100, 8")
    a(f"v_writelane_b32 v{T + 1}, s101, 9")
    for k, r in XPH.items():
        a(f"v_writelane_b32 v{T + 1}, s{r}, {k + 3}")
    a(f"s_lshl_b32 s{S_T1}, s{S_H}, 2")
    a(f"s_add_u32 s{S_T1}, s{S_T1}, s{S_WAVE}")
    a(f"s_lshl_b32 s{S_T1}, s{S_T1}, 6")
    a(f"s_add_u32 s{S_T1}, s{S_T1}, s{S_STEP}")
    a(f"s_lshl_b32 s{S_T1}, s{S_T1}, 8")
    a(f"s_add_u32 s{S_T1}, s{S_T1}, {hex(WS_TS2)}")
    a(f"buffer_store_dword v{T + 1}, v{V_FL}, {sr(S_WS, 4)}, s{S_T1} offen")

SCALE_LOG2E = 128 ** -0.5 * 1.4426950408889634


def f32hex(x):
    import struct
    return hex(struct.unpack('<I', struct.pack('<f', x))[0])


def placement():
    pl = {}
    res = []
    for mat in 'qkv':
        for J in range(8):
            for c in range(2):
                p = 2 * J + c
                if mat == 'q' and p < 5:
                    pl[(mat, c, J)] = ('lds', p)
                elif mat == 'q' and p >= 12:
                    pl[(mat, c, J)] = ('lds', p - 7)
                else:
                    res.append((mat, c, J))
    for k in range(4):
        for j in range(4):
            if k >= 2:
                pl[('o', k, j)] = ('lds', 9 + 4 * (k - 2) + j)
            else:
                res.append(('o', k, j))
    assert len(res) == 47
    for i, f in enumerate(res):
        pl[f] = ('reg', RES0 + 8 * i if i < 15 else 256 + 8 * (i - 15))
    return pl


PL = placement()


def mu(i):
    return 2 * (i >> 2) + (i & 1)


def half(i):
    return (i >> 1) & 1


def consts(a, vtid):
    t0, t1, st = T, T + 1, S_T0

    def F(dst, f):
        lanefn(a, dst, lambda t: f(t & 63, t >> 6), vtid, t0, t1, st)

    n = lambda l: l & 15
    g = lambda l: l >> 4
    F(V_IDX, lambda l, w: 0xEEEE if half(n(l)) else 0x4444)
    assert L_M == 0
    F(V_MP, lambda l, w: w * 2048 + g(l) * 256 + mu(n(l)) * 32 + half(n(l)) * 16)
    for p, r in enumerate(V_MQ):
        a(f"v_xor_b32 v{r}, {hex((p + 1) << 11)}, v{V_MP}")
    F(V_W, lambda l, w: L_W + w * WSTRIDE + l * 16)
    F(V_QKW, lambda l, w: L_QK + 2 * g(l) * QKROW + 64 * w + 4 * n(l))
    a(f"v_add_u32 v{V_OW}, {L_O - L_QK}, v{V_QKW}")
    F(V_QB, lambda l, w: L_QK + mu(n(l)) * QKROW + g(l) * 16)

    def kx(l, Tt):
        rho = n(l)
        tok = 16 * (rho >> 3) + 8 * Tt + (rho & 7)
        slot = (g(l) & 1) * 32 + tok
        slot ^= ((slot >> 4) & 1) << 3
        return L_KX + (g(l) >> 1) * 1024 + slot * 16

    F(V_KX0, lambda l, w: kx(l, 0))
    F(V_KX1, lambda l, w: kx(l, 1))
    F(V_KXG, lambda l, w: w * 2048 + (l ^ (((l >> 4) & 1) << 3)) * 16)
    F(V_VXG, lambda l, w: (w >> 1) * 4096 + (g(l) >> 1) * 1024 + (g(l) & 1) * 512 + (w & 1) * 256 + n(l) * 16)
    assert OPT['pf'] == 'none'
    F(V_PS, lambda l, w: (n(l) >> 3) * 8192 + g(l) * 2048 + (n(l) & 7) * 8)
    piece = lambda l: 2 * (l & 1) + ((l >> 1) & 1)
    F(V_MS, lambda l, w: ((2 * w + (g(l) & 1)) * 32 + (2 * piece(l) + (g(l) >> 1)) * 4) if (l & 12) == 0 else OOB)
    if OPT['pub'] == 'late':
        F(V_VSW, lambda l, w: L_QK + (n(l) >> 2) * QKROW + 64 * w + (n(l) & 3) * 16 + g(l) * 4)
        F(V_PUBL, lambda l, w: (L_K if l < 32 else L_QK) + ((l >> 2) & 7) * QKROW + 64 * w + (l & 3) * 16)
        F(V_PUBG, lambda l, w: (l >> 2) * 256 + 64 * w + (l & 3) * 16 if l < 32 else
          WS_VM - WS_KM + ((w >> 1) * 64 + ((l >> 4) & 1) * 32 + 16 * (w & 1) + n(l)) * 16)
    else:
        F(V_KMP, lambda l, w: 2 * g(l) * 256 + 64 * w + 4 * n(l))
        F(V_VMP, lambda l, w: ((w >> 1) * 64 + 16 * (w & 1) + n(l)) * 16 + g(l) * 4)
    a(f"v_and_b32 v{T}, 63, v{vtid}")
    a(f"v_lshlrev_b32 v{V_FL}, 2, v{T}")
    for d in range(4):
        F(A + d, lambda l, w: (0x3f800000 if mu(n(l)) & 1 else 0x3f80) if (mu(n(l)) >> 1) == d else 0)
    a(f"ds_write_b128 v{V_QB}, {vr(A, 4)} offset:256")


def dest_frag4(a, frag, rbh, tmp):
    kind, where = PL[frag]
    if kind == 'reg' and where < 256:
        base = where + 4 * rbh
        return [base + i for i in range(4)], []
    regs = [tmp + i for i in range(4)]
    if kind == 'reg':
        fin = [f"v_accvgpr_write_b32 a{where - 256 + 4 * rbh + i}, v{tmp + i}" for i in range(4)]
    else:
        fin = [f"ds_write_b128 v{V_W}, {vr(tmp, 4)} offset:{where * 2048 + rbh * 1024}"]
    return regs, fin


def load_weights(a, vtid):
    vWQ, vWO = V_KX0, V_KX1
    t0, t1, st = T, T + 1, S_T0
    n = lambda l: l & 15
    gb = lambda l: l >> 4
    lrow = lambda l: 16 * (gb(l) >> 1) + 4 * (gb(l) & 1)
    lanefn(a, vWQ, lambda t: lrow(t & 63) * 8192 + 64 * (t >> 6) + 4 * n(t & 63), vtid, t0, t1, st)
    lrow_o = lambda l: 8 * (gb(l) >> 1) + 4 * (gb(l) & 1)
    lanefn(a, vWO, lambda t: lrow_o(t & 63) * 1024 + 64 * (t >> 6) + 4 * n(t & 63), vtid, t0, t1, st)
    lanefn(a, V_W, lambda t: L_W + (t >> 6) * WSTRIDE + (t & 63) * 16, vtid, t0, t1, st)
    sHq, sHo, so = S_T1, S_T1 + 1, S_T2
    a(f"s_lshl_b32 s{sHq}, s{S_H}, 8")
    a(f"s_lshl_b32 s{sHo}, s{S_WAVE}, 20")
    a(f"s_or_b32 s{sHq}, s{sHq}, s{sHo}")
    a(f"s_lshl_b32 s{sHo}, s{S_H}, 17")
    srd = {'q': S_WQ, 'k': S_WK, 'v': S_WV}
    groups = []
    for mat in 'qkv':
        for J in range(8):
            for rbh in range(2):
                groups.append(('qkv', mat, J, rbh))
    for k in range(4):
        for j in range(4):
            groups.append(('o', k, j, None))
    ring0, ringn = A, 104
    tmps = [VX, VX + 4]
    state = dict(head=0, tmp=0)
    pend = deque()

    def issue(gp, base):
        kind, mat, J, rbh = gp
        for i in range(4):
            for b in range(2):
                if kind == 'qkv':
                    rb = 4 * rbh + i
                    row = 64 * J + 32 * (rb >> 2) + 8 * (rb & 1) + 2 * ((rb >> 1) & 1) + b
                    a(f"s_xor_b32 s{so}, s{sHq}, {hex(row * 8192)}")
                    a(f"buffer_load_dword v{base + 2 * i + b}, v{vWQ}, {sr(srd[mat], 4)}, s{so} offen")
                else:
                    row = 32 * J + 16 * (i >> 1) + 2 * (i & 1) + b
                    a(f"s_add_u32 s{so}, s{sHo}, {hex(row * 1024 + 256 * mat)}")
                    a(f"buffer_load_dword v{base + 2 * i + b}, v{vWO}, {sr(S_WO, 4)}, s{so} offen")

    def process(gp, base):
        kind, mat, J, rbh = gp
        for c in range(2):
            tmp = tmps[state['tmp']]
            state['tmp'] ^= 1
            if kind == 'qkv':
                regs, fin = dest_frag4(a, (mat, c, J), rbh, tmp)
                for i in range(4):
                    a(f"v_perm_b32 v{regs[i]}, v{base + 2 * i + 1}, v{base + 2 * i}, s{S_SELHI if c else S_SELLO}")
            else:
                regs, fin = dest_frag4(a, ('o', mat, J), c, tmp)
                for x in range(4):
                    i = 2 * c + (x >> 1)
                    a(f"v_perm_b32 v{regs[x]}, v{base + 2 * i + 1}, v{base + 2 * i}, s{S_SELHI if x & 1 else S_SELLO}")
            for x in fin:
                a(x)

    def fits(base, size):
        for _, b, s in pend:
            if base < b + s and b < base + size:
                return False
        return True

    for gp in groups:
        size = 8
        while True:
            base = state['head']
            if base + size > ringn:
                base = 0
            if fits(base, size) and 8 * len(pend) + 8 <= 60:
                break
            g0, b0, _ = pend.popleft()
            process(g0, ring0 + b0)
        issue(gp, ring0 + base)
        pend.append((gp, base, size))
        state['head'] = base + size
    while pend:
        g0, b0, _ = pend.popleft()
        process(g0, ring0 + b0)


def load_mem0(a, vtid):
    t0, t1, st = T, T + 1, S_T0
    va = V_OA
    lanefn(a, va, lambda t: mu(t & 15) * 1024 + 32 * (8 * (t >> 6) + ((t & 63) >> 4)) + 16 * half(t & 15),
           vtid, t0, t1, st)
    P8 = ACC + 24
    for i in range(2):
        a(f"buffer_load_dwordx4 {vr(P8 + 4 * i, 4)}, v{va}, {sr(S_M0, 4)}, 0 offen offset:{128 * i}")


def frag_b(frag, ldsreg):
    kind, where = PL[frag]
    if kind == 'reg':
        return ur(where, 8)
    return vr(ldsreg[frag], 8)


def smf(d, areg, b):
    return f"v_smfmac_f32_16x16x64_bf16 {vr(d, 4)}, {vr(areg, 4)}, {b}, v{V_IDX}"


def ldsfrag_reads(slot, reg):
    return [f"ds_read_b128 {vr(reg, 4)}, v{V_W} offset:{slot * 2048}",
            f"ds_read_b128 {vr(reg + 4, 4)}, v{V_W} offset:{slot * 2048 + 1024}"]


def xy_adds(acc):
    return [f"v_add_f32 v{acc}, v{acc}, v{acc + 2}", f"v_add_f32 v{acc + 4}, v{acc + 4}, v{acc + 6}",
            f"v_add_f32 v{acc + 1}, v{acc + 1}, v{acc + 3}", f"v_add_f32 v{acc + 5}, v{acc + 5}, v{acc + 7}"]


def retry_tail(a, top, out):
    a(f"s_cmp_eq_u32 s{S_RETRY}, 0")
    a(f"s_cbranch_scc1 {out}")
    a(f"s_sub_u32 s{S_RETRY}, s{S_RETRY}, 1")
    a(f"s_branch {top}")


def phase_w(a):
    for i in range(5):
        for x in ldsfrag_reads(i, R + 8 * i):
            a(x)
    for i in range(0, 24, 2):
        a(f"v_mov_b64 {vr(ACC + i, 2)}, 0")


def spin(a, stem, issue, check, depth, masked, sleep=0, also='', shadow=None, first=False):
    top, out = spin_label_pair(a, stem)
    expired, wait = a.newlabel(stem + "_expired"), a.newlabel(stem + "_wait")
    if shadow:
        for chunk in (shadow if isinstance(shadow, list) else [shadow]):
            issue()
            chunk()
        if first:
            a(f"s_branch {wait}")
    a.label(top)
    if masked:
        a("s_mov_b64 exec, vcc")
    issue()
    if masked:
        a("s_mov_b64 exec, -1")
    if sleep:
        a(f"s_sleep {sleep}")
    a(f"s_sub_u32 s{S_RETRY}, s{S_RETRY}, 1")
    a(f"s_cbranch_scc1 {expired}")
    a.label(wait)
    a(f"s_waitcnt vmcnt({2 * (depth - 1)}){also}")
    check()
    a(f"s_cbranch_vccnz {top}", nowait=True)
    a(f"s_branch {out}")
    a.label(expired)
    a(f"s_mov_b32 s{S_RETRY}, 0")
    a(f"s_waitcnt vmcnt(0){also}")
    a.label(out)


def q_prefetch():
    pre = []
    for i in range(5):
        pre += ldsfrag_reads(i, R + 8 * i)
    return pre


def poll_m(a):
    P8 = ACC + 24
    reads = q_prefetch() if OPT['qpf'] == 'm' else []
    if OPT['noex']:
        for x in reads:
            a(x)
        a.clear(vr(A, 8))
        return
    cnt_begin(a, 101)

    def issue_():
        a(f"buffer_load_dwordx4 {vr(P8, 4)}, v{V_MP}, {sr(S_WS, 4)}, s{S_MOFF} offen sc1", nowait=True)
        a(f"buffer_load_dwordx4 {vr(P8 + 4, 4)}, v{V_MP}, {sr(S_WS, 4)}, s{S_MOFF} offen offset:1024 sc1", nowait=True)

    def check_():
        a(f"v_max3_u32 v{T + 1}, v{P8}, v{P8 + 1}, v{P8 + 2}", nowait=True)
        a(f"v_max3_u32 v{T + 2}, v{P8 + 3}, v{P8 + 4}, v{P8 + 5}", nowait=True)
        a(f"v_max3_u32 v{T + 1}, v{T + 1}, v{P8 + 6}, v{P8 + 7}", nowait=True)
        a(f"v_max_u32 v{T + 1}, v{T + 1}, v{T + 2}")
        a(f"v_cmp_eq_u32 vcc, -1, v{T + 1}")

    if OPT['mmask']:
        a("s_mov_b64 vcc, -1")

    def chunks(lst, n, nops):
        out = []
        for i in range(n):
            part = lst[len(lst) * i // n:len(lst) * (i + 1) // n]
            out.append(lambda part=part: [a(x) for x in part + ["s_nop 3"] * nops])
        return out

    done = a.newlabel("pm_done")
    if OPT['mfast']:
        fast = a.newlabel("pm_fast")
        a(f"s_cmp_ge_u32 s{S_WAVE}, {OPT['mfast']}")
        a(f"s_cbranch_scc1 {fast}")
        for x in reads:
            a(x)
        if OPT['mslowack']:
            a("s_waitcnt vmcnt(0)")
        spin(a, "pms", issue_, check_, OPT['mslow'], OPT['mmask'])
        a(f"s_branch {done}")
        a.label(fast)
    pre, mid = reads[:OPT['mpre']], reads[OPT['mpre']:]
    for x in pre:
        a(x)
    if not OPT['mpeel']:
        for x in mid + ["s_nop 3"] * OPT['mgapn']:
            a(x)
    if OPT['mfastack'] >= 0:
        now = a.newlabel("pm_now")
        a(f"s_cmp_gt_u32 s{S_CLS}, {OPT['mfastack']}")
        a(f"s_cbranch_scc1 {now}")
        a("s_waitcnt vmcnt(0)")
        a.label(now)
    if OPT['mdly']:
        now = a.newlabel("pm_dly")
        for c in range(3):
            a(f"s_cmp_gt_u32 s{S_CLS}, {c}")
            a(f"s_cbranch_scc1 {now}")
            for i in range(OPT['mdly']):
                a("s_nop 3")
        a.label(now)
    spin(a, "pmf", issue_, check_, OPT['mdepth'], OPT['mmask'], OPT['msleep'],
         shadow=chunks(mid, OPT['mpeel'], OPT['mgapn']) if OPT['mpeel'] else None)
    a.label(done)
    cnt_end(a, 101)
    pt(a, 'mp')
    a.clear(vr(A, 8))


def kv_flag_check(a, use_flags):
    if not use_flags:
        return
    top, out = spin_label_pair(a, "kvf")
    a(f"s_add_u32 s{S_T1}, s{S_STEP}, 1")
    a.label(top)
    a(f"v_cmp_le_u32 vcc, 4, v{T}")
    a(f"s_bitcmp1_b64 vcc, s{S_T1}")
    a(f"s_cbranch_scc1 {out}")
    a(f"buffer_load_dword v{T}, v{V_FL}, {sr(S_WS, 4)}, s{S_FLKV} offen sc1")
    a("s_waitcnt vmcnt(0)")
    retry_tail(a, top, out)
    a.label(out)


def put(fills, pos, *ins):
    fills.setdefault(pos, []).extend(ins)


def flag_store():
    val = S_FLV if OPT['pub'] == 'late' else S_STEP
    st = f"buffer_store_dword v{T + 2}, off, {sr(S_WS, 4)}, s{S_FLMEM} sc1"
    if OPT['flag'] == 'one':
        return [f"v_mov_b32 v{T + 2}, s{val}", f"s_mov_b64 exec, {sr(S_FLEX, 2)}", st, "s_mov_b64 exec, -1"]
    return [f"v_mov_b32 v{T + 2}, s{val}", st]


def kxg_loads():
    return [f"s_mov_b32 m0, s{S_M0KX}",
            f"buffer_load_dwordx4 v{V_KXG}, {sr(S_WS, 4)}, s{S_KFO} offen sc1 lds",
            f"buffer_load_dwordx4 v{V_KXG}, {sr(S_WS, 4)}, s{S_KFO} offen offset:1024 sc1 lds"]


def vx_loads():
    return [f"buffer_load_dwordx4 {vr(VX, 4)}, v{V_VXG}, {sr(S_WS, 4)}, s{S_VFO} offen sc1",
            f"buffer_load_dwordx4 {vr(VX + 4, 4)}, v{V_VXG}, {sr(S_WS, 4)}, s{S_VFO} offen offset:2048 sc1"]


def step(a, st_mod, use_flags, last=False):
    qa, ka, va = ACC, ACC + 8, ACC + 16
    late = OPT['pub'] == 'late'
    nopub = abl('pub')
    P8 = ACC + 24
    areg = lambda J: P8 + 4 * J if J < 2 else A + 4 * J
    ldsreg = {}
    for p in range(5):
        ldsreg[('q', p & 1, p >> 1)] = R + 8 * p
    for p in range(12, 16):
        ldsreg[('q', p & 1, p >> 1)] = R + 8 * (p - 12)

    PUB = A
    pub_read = f"ds_read_b128 {vr(PUB, 4)}, v{V_PUBL}"

    def pub_store(so):
        return f"buffer_store_dwordx4 {vr(PUB, 4)}, v{V_PUBG}, {sr(S_WS, 4)}, s{so} offen sc1"

    stage_v = f"ds_write2st64_b32 v{V_VSW}, v{va}, v{va + 4} offset0:0 offset1:5"

    acc = {'q': qa, 'k': ka, 'v': va}
    mats = 'kv' if last else 'qkv'
    early = [m for m in str(OPT['o1']) if m in mats]
    assert last or not early or early[0] == 'q'
    seq = [(m, p) for m in early for p in range(4)]
    nb = 4 if early else 0
    first = {}
    for m in mats:
        first[m] = len(seq)
        seq += [(m, p) for p in range(4 if m in early else 0, 16)]
    main = [('@nv ' if p < 4 else '') + smf(acc[m] + 4 * (p & 1), areg(p >> 1), frag_b((m, p & 1, p >> 1), ldsreg))
            for m, p in seq]
    areads = [f"ds_read_b128 {vr(A + 4 * J, 4)}, v{V_MQ[(J >> 1) - 1]} offset:{(J & 1) * 1024}" for J in range(2, 8)]
    fl = {}
    wm = [f"@nv ds_write_b128 v{V_MP}, {vr(P8 + 4 * i, 4)} offset:{L_M + 1024 * i}" for i in range(2)]
    w = OPT['wint'] if nb else 0
    put(fl, -1 if w < 2 else 0, wm[0])
    put(fl, (-1, 0, 1, 0)[w], wm[1])
    put(fl, nb - 1, '@ph 0', "s_waitcnt lgkmcnt(0)", '@pt b1', "s_barrier", '@pt b1p')
    spread(fl, areads, nb - 1, OPT['aper'])
    k0, v0 = first['k'], first['v']
    if not last:
        ref = []
        for i in range(4):
            ref += ldsfrag_reads(5 + i, R + 8 * i)
        spread(fl, ref, nb + OPT['refq'], OPT['refper'])
        put(fl, nb + OPT['pfpos'], f"s_mov_b32 m0, {L_DUMMY}")
        if OPT['mpf']:
            put(fl, nb + OPT['pfpos'] + 1, f"buffer_load_dword v{V_MS}, {sr(S_WS, 4)}, s{S_MST} offen lds")
        if use_flags:
            put(fl, nb + 6, f"buffer_load_dword v{T}, v{V_FL}, {sr(S_WS, 4)}, s{S_FLKV} offen sc1")
        if not (nopub or abl('flag')):
            put(fl, nb + OPT['flagpos'], *flag_store())
        if late and not nopub:
            put(fl, nb + 5, pub_read)
        if OPT['vxpos'] == 'q' and not abl('vx'):
            put(fl, nb + OPT['vxq'], vx_loads()[0])
            put(fl, nb + OPT['vxq'] + 1, vx_loads()[1])
        kx = []
        for ks in range(4):
            for Tt in range(2):
                kx.append(f"ds_read_b128 {vr(R + 16 * Tt + 4 * ks, 4)}, v{V_KX1 if Tt else V_KX0} offset:{ks * 2048}")
        kx.sort(key=lambda s_: int(re.search(r'v\[(\d+)', s_).group(1)))
        spread(fl, kx, k0, OPT['kxper'])
        spread(fl, xy_adds(qa), k0 + 2, 1)
        put(fl, k0 + 6, f"v_cvt_pk_bf16_f32 v{qa + 2}, v{qa}, v{qa + 4}")
        put(fl, k0 + 7, f"v_cvt_pk_bf16_f32 v{qa + 3}, v{qa + 1}, v{qa + 5}")
        put(fl, k0 + 9, f"ds_write2_b32 v{V_QKW}, v{qa + 2}, v{qa + 3} offset0:0 offset1:{QKROW // 4}")
        if late and not nopub:
            put(fl, nb + OPT['pubpos'], pub_store(S_KMP))
    else:
        put(fl, nb, *flag_store())
        if late:
            put(fl, nb + 1, pub_read)
            put(fl, nb + 8, pub_store(S_KMP))

    spread(fl, xy_adds(ka), v0 + 1, 2)
    put(fl, v0 + 3, f"v_cvt_pk_bf16_f32 v{T + 2}, v{ka}, v{ka + 4}", f"v_cvt_pk_bf16_f32 v{T + 3}, v{ka + 1}, v{ka + 5}")
    pubk = [f"buffer_store_dword v{T + 2}, v{V_KMP}, {sr(S_WS, 4)}, s{S_KMO} offen sc1",
            f"buffer_store_dword v{T + 3}, v{V_KMP}, {sr(S_WS, 4)}, s{S_KMO} offen offset:256 sc1"]
    kmreg = [R + 32, R + 36, ka, ka + 4]
    if not last or late:
        put(fl, v0 + 4, f"ds_write_b32 v{V_QKW}, v{T + 2} offset:{L_K - L_QK}",
            f"ds_write_b32 v{V_QKW}, v{T + 3} offset:{L_K - L_QK + QKROW}")
    end = len(seq) - 1
    if not last:
        put(fl, v0 + OPT['b2pos'], '@pt b2a', "s_waitcnt lgkmcnt(0)", '@pt b2w', "s_barrier", '@pt b2b')
        rd = [f"ds_read_b128 {vr(A + 4 * ks, 4)}, v{V_QB} offset:{ks * 64}" for ks in range(4)]
        rd += [f"ds_read_b128 {vr(kmreg[ks], 4)}, v{V_QB} offset:{L_K - L_QK + ks * 64}" for ks in range(4)]
        spread(fl, rd, v0 + OPT['b2pos'] + 1, OPT['rdper'])
        if not late and not nopub and not abl('pubk'):
            put(fl, end - 3, pubk[0])
            put(fl, end - 2, pubk[1])
        if OPT['kxgpos'] == 'v' and not abl('kxg'):
            x = kxg_loads()
            put(fl, end - 1, x[0], x[1])
            put(fl, end, x[2])
    elif not late:
        put(fl, v0 + 5, pubk[0])
        put(fl, v0 + 6, pubk[1])
    if not last:
        for nm in pts():
            m = re.fullmatch(r'([qkv])(\d+)', nm)
            if m:
                put(fl, seq.index((m.group(1), int(m.group(2)))), '@pt ' + nm)
    weave(a, main, fl)

    vadd = xy_adds(va)
    vcvt = [f"v_cvt_pk_bf16_f32 v{va}, v{va}, v{va + 1}", f"v_cvt_pk_bf16_f32 v{va + 4}, v{va + 4}, v{va + 5}"]
    pubv = [f"buffer_store_dword v{va}, v{V_VMP}, {sr(S_WS, 4)}, s{S_VMO} offen sc1",
            f"buffer_store_dword v{va + 4}, v{V_VMP}, {sr(S_WS, 4)}, s{S_VMO} offen offset:512 sc1"]
    if last:
        for x in vadd + vcvt:
            a(x)
        if late:
            a(stage_v)
            a(pub_read)
            a(pub_store(S_KMO))
        else:
            for x in pubv:
                a(x)
        return

    ph(a, 1)
    sT0, sT1, sM = ACC, ACC + 4, ACC + 24
    PT, PM = ACC + 8, ACC + 28
    ones = R + 32
    tm, tu = T + 2, T + 1
    ms = []
    for d, src in ((sT0, lambda ks: R + 4 * ks), (sT1, lambda ks: R + 16 + 4 * ks), (sM, lambda ks: kmreg[ks])):
        for ks in range(4):
            ms.append(f"v_mfma_f32_16x16x32_bf16 {vr(d, 4)}, {vr(src(ks), 4)}, {vr(A + 4 * ks, 4)}, "
                      f"{'0' if ks == 0 else vr(d, 4)}")
    oreg = {('o', 2, 0): A + 16, ('o', 2, 1): A + 24, ('o', 2, 2): A, ('o', 2, 3): A + 8,
            ('o', 3, 0): R, ('o', 3, 1): R + 8, ('o', 3, 2): R + 16, ('o', 3, 3): R + 24}
    rdo = {f: ldsfrag_reads(PL[f][1], r) for f, r in oreg.items()}
    fs = {}
    wos = OPT['wos']
    rd4, rd5 = rdo[('o', 2, 0)] + rdo[('o', 2, 1)], rdo[('o', 2, 2)] + rdo[('o', 2, 3)]
    rd67 = rdo[('o', 3, 0)] + rdo[('o', 3, 1)] + rdo[('o', 3, 2)] + rdo[('o', 3, 3)]
    inits = [f"v_mov_b32 v{va + 1}, 0", f"v_mov_b64 {vr(va + 2, 2)}, 0",
             f"v_mov_b32 v{va + 5}, 0", f"v_mov_b64 {vr(va + 6, 2)}, 0",
             f"v_mov_b32 v{PM + 1}, 0", f"v_mov_b64 {vr(PM + 2, 2)}, 0",
             f"v_mov_b64 {vr(ones, 2)}, {sr(S_ONES, 2)}", f"v_mov_b64 {vr(ones + 2, 2)}, {sr(S_ONES, 2)}"]
    if wos:
        for i in range(4):
            put(fs, 2 * i + 1, rd4[i])
    else:
        spread(fs, rd4, 0, 2)
    spread(fs, vadd, 1, 2)
    put(fs, 3, *vcvt)
    put(fs, 6, f"v_max3_f32 v{tm}, v{sT0}, v{sT0 + 1}, v{sT0 + 2}")
    put(fs, 7, f"v_max_f32 v{tm}, v{tm}, v{sT0 + 3}")
    if not late and not nopub and not abl('pubv'):
        put(fs, 8, pubv[0])
        put(fs, 9, pubv[1])
    if OPT['kxgpos'] == 's' and not abl('kxg'):
        x = kxg_loads()
        put(fs, 8, x[0], x[1])
        put(fs, 9, x[2])
    put(fs, 10, f"v_max3_f32 v{tm}, v{tm}, v{sT1}, v{sT1 + 1}")
    put(fs, 11, f"v_max3_f32 v{tm}, v{tm}, v{sT1 + 2}, v{sT1 + 3}")
    if not wos:
        for pos, i in ((4, 0), (4, 1), (5, 2), (5, 3), (6, 4), (7, 5), (10, 6), (11, 7)):
            put(fs, pos, inits[i])
    pt_fills(fs, 's')
    weave(a, ms, fs)
    if wos:
        for x in inits:
            a(x)
    else:
        for x in rd67[:4] + rd5:
            a(x)

    sv = [sT0 + i for i in range(4)] + [sT1 + i for i in range(4)] + [sM, sM + 1]
    a(f"v_max3_f32 v{tm}, v{tm}, v{sM}, v{sM + 1}")
    a(f"v_mov_b32 v{tu}, v{tm}")
    for x in (rd67[4:6] if not wos else rd5[0:1] if wos == 2 else []):
        a(x)
    a(f"v_permlane32_swap_b32 v{tm}, v{tu}")
    a(f"v_max_f32 v{tm}, v{tm}, v{tu}")
    a(f"v_mov_b32 v{tu}, v{tm}")
    for x in (rd67[6:8] if not wos else rd5[1:2] if wos == 2 else []):
        a(x)
    a(f"v_permlane16_swap_b32 v{tm}, v{tu}")
    a(f"v_max_f32 v{tm}, v{tm}, v{tu}")
    a(f"v_mul_f32 v{tm}, s{S_NSC}, v{tm}")
    pt(a, 'mx')
    for i in ((8, 0, 2, 4, 6) if OPT['pvo'] else (0, 2, 4, 6, 8)):
        a(f"v_pk_fma_f32 {vr(sv[i], 2)}, {vr(sv[i], 2)}, {sr(S_SC, 2)}, {vr(tm, 2)} op_sel_hi:[1,1,0]")
    ex = [f"v_exp_f32 v{sv[i]}, v{sv[i]}" for i in range(10)]
    cv = [f"v_cvt_pk_bf16_f32 v{PT + j}, v{sv[2 * j]}, v{sv[2 * j + 1]}" for j in range(4)]
    cv.append(f"v_cvt_pk_bf16_f32 v{PM}, v{sv[8]}, v{sv[9]}")
    r5 = [[x] for x in (rd5 if wos == 1 else rd5[2:] if wos == 2 else [])]
    r5 += [[]] * (4 - len(r5))
    o0, o1, lsum = ACC, ACC + 4, ACC + 24
    mf = lambda d, x, y, c: f"v_mfma_f32_16x16x32_bf16 {vr(d, 4)}, {vr(x, 4)}, {vr(y, 4)}, {'0' if c is None else vr(c, 4)}"
    if OPT['pvo']:
        o0, o1 = R, R + 4
        seq_ = (ex[8:10] + ex[0:1] + [cv[4]] + ex[1:2] + r5[0] + ex[2:3] + [cv[0]] + [mf(lsum, PM, ones, None)] +
                ex[3:4] + r5[1] + ex[4:5] + [cv[1]] + [mf(o0, PM, va, None)] + ex[5:6] + r5[2] + ex[6:7] +
                [mf(o1, PM, va + 4, None)] + ex[7:8] + [cv[2]] + r5[3] + [cv[3]])
        for x in seq_:
            a(x)
        ph(a, 2)
        pt(a, 'pv')
        a(mf(lsum, PT, ones, lsum))
        a(mf(o0, PT, VX, o0))
        a(mf(o1, PT, VX + 4, o1))
    else:
        for x in (ex[0:2] + r5[0] + ex[2:3] + [cv[0]] + ex[3:4] + r5[1] + ex[4:5] + [cv[1]] + ex[5:6] + r5[2] +
                  ex[6:7] + [cv[2]] + ex[7:8] + r5[3] + ex[8:9] + [cv[3]] + [ex[9]]):
            a(x)
        ph(a, 2)
        pt(a, 'pv')
        a(mf(o0, PT, VX, None))
        a(cv[4])
        a(mf(o1, PT, VX + 4, None))
        a(mf(lsum, PT, ones, None))
        a(mf(lsum, PM, ones, lsum))
        a(mf(o0, PM, va, o0))
        a(mf(o1, PM, va + 4, o1))
    la, lb = T + 2, T + 3
    pt(a, 'pve')
    if OPT['kxgpos'] == 'pv' and not abl('kxg'):
        for x in kxg_loads():
            a(x)
    a(f"v_rcp_f32 v{la}, v{lsum}")
    a(f"v_rcp_f32 v{lb}, v{lsum + 1}")
    if OPT['vxpos'] == 'pv' and not abl('vx'):
        for x in vx_loads():
            a(x)
    for i in range(8, 16, 2):
        a(f"v_mov_b64 {vr(ACC + i, 2)}, 0")
    if OPT['pvo'] == 2:
        for i in range(0, 4, 2):
            a(f"v_mov_b64 {vr(ACC + i, 2)}, 0")
    a(f"v_mul_f32 v{o0}, v{o0}, v{la}")
    a(f"v_mul_f32 v{o0 + 1}, v{o0 + 1}, v{lb}")
    a(f"v_mul_f32 v{o1}, v{o1}, v{la}")
    a(f"v_mul_f32 v{o1 + 1}, v{o1 + 1}, v{lb}")
    a(f"v_cvt_pk_bf16_f32 v{la}, v{o0}, v{o1}")
    a(f"v_cvt_pk_bf16_f32 v{lb}, v{o0 + 1}, v{o1 + 1}")
    a(f"ds_write2_b32 v{V_OW}, v{la}, v{lb} offset0:0 offset1:{QKROW // 4}")
    if OPT['kxgpos'] == 'b3' and not abl('kxg'):
        for x in kxg_loads():
            a(x)
    for i in range(4 if OPT['pvo'] == 2 else 0, 8, 2):
        a(f"v_mov_b64 {vr(ACC + i, 2)}, 0")
    a("s_waitcnt lgkmcnt(0)")
    ph(a, 3)
    pt_accumulate(a)
    pt(a, 'b3')
    a("s_barrier")
    pt(a, 'b3p')
    oA = [R + 32, R + 36, VX, VX + 4]
    for j in range(4):
        a(f"ds_read_b128 {vr(oA[j], 4)}, v{V_QB} offset:{L_O - L_QK + 64 * j}")
    stv = OPT['stv']
    if late and not nopub and not stv:
        a(stage_v)
    if OPT['kxgpos'] == 'b3p' and not abl('kxg'):
        for x in kxg_loads():
            a(x)

    mo = []
    for k in range(4):
        for j in range(4):
            mo.append(smf(ACC + 4 * k, oA[j], frag_b(('o', k, j), oreg)))

    def post(k):
        d = ACC + 4 * k
        return [f"v_cvt_pk_bf16_f32 v{d}, v{d}, v{d + 2}", f"v_cvt_pk_bf16_f32 v{d + 1}, v{d + 1}, v{d + 3}",
                f"v_and_or_b32 v{d + 1}, v{d + 1}, -2, s{S_TAG}",
                f"buffer_store_dwordx2 {vr(d, 2)}, v{V_PS}, {sr(S_WS, 4)}, s{S_PS + k} offen{st_mod}"]

    fo = {}
    tail = []
    for k in range(3):
        x = post(k)
        if abl('wopost'):
            continue
        if abl('wost'):
            x[3] = "s_nop 0"
        if OPT['wop'] == 0:
            put(fo, 4 * k + 5, x[0])
            put(fo, 4 * k + 6, x[1])
            put(fo, 4 * k + 7, x[2])
            if k < 2:
                fo.setdefault(4 * k + 8, []).insert(0, x[3])
            else:
                put(fo, 15, x[3])
        else:
            put(fo, 4 * k + 5, x[0], x[1])
            put(fo, 4 * k + 6, x[2])
            fo.setdefault(4 * k + 7, []).insert(0, x[3])
    pre = q_prefetch() if OPT['qpf'] == 'i' else []
    SEL = A + 16
    X, D = A, A + 20
    P8 = ACC + 24
    u = T + 2
    if stv and late and not nopub:
        put(fo, stv - 1, stage_v)
    if wos and not abl('rd67'):
        spread(fo, rd67, 0, 1)
    sel_read = f"ds_read_b128 {vr(SEL, 4)}, v{V_QB} offset:256"
    clears = [f"v_mov_b64 {vr(ACC + i, 2)}, 0" for i in range(0, 24, 2)]
    marks = [f"v_not_b32 v{X + i}, s{S_TAGM}" for i in (1, 3, 5, 7)]
    marks_m = [f"v_mov_b32 v{P8 + i}, {0 if OPT['noex'] else -1}" for i in range(8)]
    shadow = []
    if OPT['pres']:
        put(fo, 15, *(marks + clears[:OPT['gapn']]), *post(3))
        rest = []
        todo = clears[OPT['gapn']:] + marks_m
        for y in [sel_read] + pre:
            rest += [y] + todo[:2]
            todo = todo[2:]
        rest += todo
        if OPT['pres'] == 2:
            rest, shadow = [], rest + ["s_nop 3"] * (0 if OPT['iramp'] else OPT['igapn'])
    else:
        put(fo, 15, sel_read, *pre[:6])
        put(fo, 15, *post(3))
        rest = pre[6:] + ['@woe'] + clears + marks + marks_m
    pt_fills(fo, 'o')
    put(fo, 15, '@pt lst')
    weave(a, mo, fo)
    nside = 0
    if OPT['kxgpos'] == 'wo' and not abl('kxg'):
        for x in kxg_loads():
            a(x)
        nside += 2
    if OPT['vxpos'] == 'wo' and not abl('vx'):
        for x in vx_loads():
            a(x)
        nside += 2
    if '@woe' not in rest:
        rest = ['@woe'] + rest
    cnt_begin(a, 100)
    for y in rest:
        if y == '@woe':
            ph(a, 4)
            pt(a, 'woe')
        else:
            a(y)
    if OPT['imask']:
        a("s_mov_b64 vcc, -1")
    if OPT['ifirst'] == 'ack' and not OPT['noex']:
        go = a.newlabel("pi_go")
        d = OPT['ackd'] + nside
        for k in range(4):
            cnt = int(str(OPT['ackt'])[k]) if str(OPT['ackt']) else min(max(3 - k + d, 0), 63)
            a(f"s_waitcnt vmcnt({cnt})")
            if k < 3:
                a(f"s_cmp_eq_u32 s{S_CLS}, {k}")
                a(f"s_cbranch_scc1 {go}")
        a.label(go)

    def issue_():
        a(f"buffer_load_dwordx4 {vr(X, 4)}, v{V_MP}, {sr(S_WS, 4)}, s{S_IN} offen sc1", nowait=True)
        a(f"buffer_load_dwordx4 {vr(X + 4, 4)}, v{V_MP}, {sr(S_WS, 4)}, s{S_IN} offen offset:1024 sc1", nowait=True)

    def check_():
        a(f"v_bitop3_b32 v{u}, v{X + 1}, v{X + 3}, s{S_TAGM} bitop3:0x7e", nowait=True)
        a(f"v_bitop3_b32 v{u + 1}, v{X + 5}, v{X + 7}, s{S_TAGM} bitop3:0x7e", nowait=True)
        a(f"v_bitop3_b32 v{u}, v{u}, v{u + 1}, 1 bitop3:0xa8")
        a(f"v_cmp_ne_u32 vcc, 0, v{u}")

    ph(a, 8)
    pt(a, 'ack')
    if OPT['noex']:
        for y in shadow:
            a(y)
        for i in range(8):
            a("s_nop 15")
        a("s_waitcnt lgkmcnt(0)")
    else:
        also = " lgkmcnt(0)"

        def ramp(stem, n, gap):
            parts = [shadow[len(shadow) * i // n:len(shadow) * (i + 1) // n] + (["s_nop 3"] * gap if i < n - 1 else [])
                     for i in range(n)]
            if OPT['ifront']:
                parts = [shadow + ["s_nop 3"] * gap] + [[]] * (n - 1)
            spin(a, stem, issue_, check_, n, OPT['imask'], 0, also=also,
                 shadow=[(lambda p=p: [a(y) for y in p]) for p in parts], first=True)

        if OPT['iramp']:
            slow, done = a.newlabel("pi_slow"), a.newlabel("pi_done")
            a(f"s_cmp_lt_u32 s{S_CLS}, {OPT['icls']}")
            a(f"s_cbranch_scc1 {slow}")
            ramp("pif", OPT['iramp'], OPT['irgap'])
            a(f"s_branch {done}")
            a.label(slow)
            ramp("pis", OPT['idepth'], OPT['igapn'])
            a.label(done)
        else:
            spin(a, "pi", issue_, check_, OPT['idepth'], OPT['imask'], OPT['isleep'], also=also,
                 shadow=(lambda: [a(y) for y in shadow]) if shadow else None)
    a(f"v_mfma_f32_16x16x32_bf16 {vr(D, 4)}, {vr(SEL, 4)}, {vr(X, 4)}, 0", nowait=True)
    a(f"v_mfma_f32_16x16x32_bf16 {vr(D, 4)}, {vr(SEL, 4)}, {vr(X + 4, 4)}, {vr(D, 4)}", nowait=True)
    cnt_end(a, 100)
    ph(a, 5)
    pt(a, 'inb')
    for rot in (8, 4):
        for i in range(2):
            a(f"v_add_f32_dpp v{D + i}, v{D + i}, v{D + i} row_ror:{rot} row_mask:0xf bank_mask:0xf")
    a(f"v_cvt_pk_bf16_f32 v{D}, v{D}, v{D + 1}")
    a(f"v_min_u32 v{D}, -2, v{D}")
    a(f"buffer_store_dword v{D}, v{V_MS}, {sr(S_WS, 4)}, s{S_MST} offen{st_mod}")
    ph(a, 6)
    pt(a, 'mst')
    ph_flush(a)
    a(f"s_mov_b32 s{S_FLV}, s{S_STEP}")
    a(f"s_mov_b32 s{S_KMP}, s{S_KMO}")
    a(f"s_add_u32 s{S_STEP}, s{S_STEP}, 1")
    a(f"s_add_u32 s{S_MOFF}, s{S_MOFF}, 8192")
    a(f"s_add_u32 s{S_MST}, s{S_MST}, 8192")
    a(f"s_add_u32 s{S_KMO}, s{S_KMO}, 65536")
    if not late:
        a(f"s_add_u32 s{S_VMO}, s{S_VMO}, 65536")
    a(f"s_add_u32 s{S_KFO}, s{S_KFO}, 0x40000")
    a(f"s_add_u32 s{S_VFO}, s{S_VFO}, 0x40000")
    a(f"s_xor_b32 s{S_TAG}, s{S_TAG}, 1")
    a(f"s_not_b32 s{S_TAGM}, s{S_TAGM}")


def stamp(a, slot, enable):
    if not enable:
        return
    l = a.newlabel("ts")
    a(f"s_cmp_lg_u32 s{S_WAVE}, 0")
    a(f"s_cbranch_scc1 {l}")
    for op, off in (("s_memtime", 0), ("s_memrealtime", 128)):
        a(f"{op} {sr(S_TS, 2)}")
        a("s_waitcnt lgkmcnt(0)")
        a(f"v_mov_b32 v{T + 2}, s{S_TS}")
        a(f"v_mov_b32 v{T + 3}, s{S_TS + 1}")
        a(f"s_lshl_b32 s{S_T1}, s{S_H}, 8")
        a(f"s_add_u32 s{S_T1}, s{S_T1}, {hex(WS_TS + slot * 8 + off)}")
        a(f"buffer_store_dwordx2 {vr(T + 2, 2)}, off, {sr(S_WS, 4)}, s{S_T1}")
    a.label(l)


def chain_role(a, st_mod="", use_flags=True, stamps=False, nsteps=63, dump=False):
    chain_pre(a, stamps)
    chain_body(a, st_mod, use_flags, stamps, nsteps, dump)


def chain_pre(a, stamps=False):
    vtid = 0
    make_srd(a, S_WQ, 'wq')
    make_srd(a, S_WK, 'wk')
    make_srd(a, S_WV, 'wv')
    make_srd(a, S_WO, 'wo')
    make_srd(a, S_M0, 'mem0')
    a(f"s_mov_b32 s{S_SELLO}, 0x05040100")
    a(f"s_mov_b32 s{S_SELHI}, 0x07060302")
    a("s_waitcnt lgkmcnt(0)")
    stamp(a, 0, stamps)
    load_weights(a, vtid)
    stamp(a, 1, stamps)


def chain_body(a, st_mod="", use_flags=True, stamps=False, nsteps=63, dump=False):
    vtid = 0
    load_mem0(a, vtid)
    a(f"v_mov_b32 v{R}, v{vtid}")
    P8 = ACC + 24
    consts(a, R)
    a(f"s_mov_b32 s{S_STEP}, 0")
    a(f"s_mov_b32 s{S_TAG}, 0")
    a(f"s_mov_b32 s{S_TAGM}, 0")
    a(f"s_mov_b32 s{S_RETRY}, 0x100000")
    a(f"s_mov_b32 s{S_MOFF}, {hex(WS_M)}")
    a(f"s_lshl_b32 s{S_T0}, s{S_H}, 8")
    a(f"s_add_u32 s{S_MST}, s{S_T0}, {hex(WS_M + 8192)}")
    a(f"s_add_u32 s{S_FLKV}, s{S_T0}, {hex(WS_FLAG + FL_KV)}")
    a(f"s_add_u32 s{S_FLMEM}, s{S_T0}, {hex(WS_FLAG + FL_MEM)}")
    a(f"s_lshl_b32 s{S_T0}, s{S_H}, 11")
    a(f"s_add_u32 s{S_KMO}, s{S_T0}, {hex(WS_KM)}")
    a(f"s_add_u32 s{S_KMP}, s{S_T0}, {hex(WS_DUMMY)}")
    a(f"s_mov_b32 s{S_FLV}, 0")
    a(f"s_cmp_eq_u32 s{S_WAVE}, 0")
    a(f"s_cselect_b32 s{S_FLEX}, 1, 0")
    a(f"s_mov_b32 s{S_FLEX + 1}, 0")
    a(f"s_add_u32 s{S_VMO}, s{S_T0}, {hex(WS_VM)}")
    a(f"s_lshl_b32 s{S_T0}, s{S_H}, 13")
    a(f"s_add_u32 s{S_KFO}, s{S_T0}, {hex(WS_KF)}")
    a(f"s_add_u32 s{S_VFO}, s{S_T0}, {hex(WS_VF)}")
    a(f"s_mov_b32 s{S_HI}, 0")
    a(f"s_mov_b32 s{S_HI + 1}, -1")
    a(f"s_mov_b32 s{S_ONES}, 0x3f803f80")
    a(f"s_mov_b32 s{S_ONES + 1}, 0x3f803f80")
    a(f"s_mov_b32 s{S_SC}, {f32hex(SCALE_LOG2E)}")
    a(f"s_mov_b32 s{S_SC + 1}, {f32hex(SCALE_LOG2E)}")
    a(f"s_mov_b32 s{S_NSC}, {f32hex(-SCALE_LOG2E)}")
    a(f"s_lshl_b32 s{S_M0KX}, s{S_WAVE}, 11")
    a(f"s_add_u32 s{S_M0KX}, s{S_M0KX}, {L_KX}")
    a(f"s_lshl_b32 s{S_T0}, s{S_WAVE}, 14")
    a(f"s_lshl_b32 s{S_T1}, s{S_H}, 6")
    a(f"s_add_u32 s{S_T0}, s{S_T0}, s{S_T1}")
    for k in range(4):
        a(f"s_add_u32 s{S_PS + k}, s{S_T0}, {hex(WS_IN + k * 65536)}")
    a(f"s_lshl_b32 s{S_T0}, s{S_H}, 13")
    a(f"s_add_u32 s{S_IN}, s{S_T0}, {hex(WS_IN)}")
    a(f"s_lshr_b32 s{S_CLS}, s{S_H}, 3")
    wait_ready(a, T + 2)
    if use_flags:
        a(f"s_mov_b32 s{S_STEP}, -1")
        a(f"buffer_load_dword v{T}, v{V_FL}, {sr(S_WS, 4)}, s{S_FLKV} offen sc1")
        kv_flag_check(a, True)
        a(f"s_mov_b32 s{S_STEP}, 0")
    a(f"s_mov_b32 m0, s{S_M0KX}")
    a(f"buffer_load_dwordx4 v{V_KXG}, {sr(S_WS, 4)}, s{S_KFO} offen sc1 lds")
    a(f"buffer_load_dwordx4 v{V_KXG}, {sr(S_WS, 4)}, s{S_KFO} offen offset:1024 sc1 lds")
    a(f"buffer_load_dwordx4 {vr(VX, 4)}, v{V_VXG}, {sr(S_WS, 4)}, s{S_VFO} offen sc1")
    a(f"buffer_load_dwordx4 {vr(VX + 4, 4)}, v{V_VXG}, {sr(S_WS, 4)}, s{S_VFO} offen offset:2048 sc1")
    a(f"s_add_u32 s{S_KFO}, s{S_KFO}, 0x40000")
    if OPT['vxpos'] != 'q':
        a(f"s_add_u32 s{S_VFO}, s{S_VFO}, 0x40000")
    a("s_waitcnt vmcnt(0) lgkmcnt(0)")
    phase_w(a)
    a("s_waitcnt lgkmcnt(0)")
    kv_flag_check(a, use_flags)
    stamp(a, 2, stamps)
    dstamp(a, 12, 0)
    if pts():
        for i in range(8):
            a(f"s_mov_b32 s{S_ACC + i}, 0")
    loop, entry_l = a.newlabel("step"), a.newlabel("step_in")
    a(f"s_branch {entry_l}")
    a.label(loop)
    kv_flag_check(a, use_flags)
    poll_m(a)
    a.label(entry_l)
    step(a, st_mod, use_flags)
    a(f"s_cmp_lt_u32 s{S_STEP}, {nsteps}")
    a(f"s_cbranch_scc1 {loop}")
    stamp(a, 3, stamps)
    pt_store(a)
    poll_m(a)
    step(a, st_mod, use_flags, last=True)
    a("s_waitcnt vmcnt(0)")
    a("s_barrier")
    l = a.newlabel("fin")
    a(f"s_cmp_lg_u32 s{S_WAVE}, 0")
    a(f"s_cbranch_scc1 {l}")
    a(f"v_mov_b32 v{T + 2}, 64")
    a(f"v_mov_b32 v{T + 3}, 0")
    a(f"buffer_store_dword v{T + 2}, v{T + 3}, {sr(S_WS, 4)}, s{S_FLMEM} offen sc1")
    a.label(l)
    stamp(a, 4, stamps)
    if dump:
        a("s_barrier")
        a(f"s_lshl_b32 s{S_T0}, s{S_H}, 15")
        a(f"s_add_u32 s{S_T0}, s{S_T0}, {hex(WS_DBG)}")
        a(f"v_lshrrev_b32 v{A}, 2, v{V_FL}")
        a(f"v_lshlrev_b32 v{A}, 4, v{A}")
        a(f"s_lshl_b32 s{S_T1}, s{S_WAVE}, 10")
        a(f"v_add_u32 v{A}, s{S_T1}, v{A}")
        for i in range(6):
            a(f"ds_read_b128 {vr(A + 4, 4)}, v{A} offset:{i * 4096}")
            a(f"buffer_store_dwordx4 {vr(A + 4, 4)}, v{A}, {sr(S_WS, 4)}, s{S_T0} offen")
            a(f"s_add_u32 s{S_T0}, s{S_T0}, 4096")
            a("s_waitcnt vmcnt(0)")
```

```python
from asmlib import *
from layout import *

KA = dict(x=0, mem0=8, wq=16, wk=24, wv=32, wo=40, seglen=48, bx=56, wg=64, wu=72, wd=80, gw=88, out=96, dbg=104,
          ws=112)
SIZE = dict(x=2048 * 512 * 2, mem0=8 * 512 * 2, wq=512 * 4096 * 2, wk=512 * 4096 * 2, wv=512 * 4096 * 2,
            wo=4096 * 512 * 2, bx=2048 * 512 * 2, wg=512 * 1376 * 2, wu=512 * 1376 * 2, wd=1376 * 512 * 2,
            gw=512 * 2, out=2048 * 512 * 2, dbg=256, ws=WS_SIZE)

S_WS = 4
S_DBG = 8
S_XCC = 12
S_TICKET = 13
S_WAVE = 14
S_TMP = 15
S_ROLE = 20
S_MODE = 21
S_EXEC = 22
S_FREE = 24

OOB = 0x40000000


def make_srd(a, s, name):
    a(f"s_load_dwordx2 {sr(s, 2)}, s[0:1], {KA[name]}")
    a(f"s_mov_b32 s{s + 2}, {hex(SIZE[name])}")
    a(f"s_mov_b32 s{s + 3}, 0x20000")


def spin_label_pair(a, stem):
    return a.newlabel(stem + "_top"), a.newlabel(stem + "_out")


def entry(a, nwg=256, lds_scratch=0):
    a(f"s_cmp_ge_u32 s2, {nwg}")
    a("s_cbranch_scc1 L_exit")
    if DSTAMPS:
        a("s_memrealtime s[96:97]")
    if RSTAMPS:
        a("s_memrealtime s[94:95]")
        a("s_getreg_b32 s93, hwreg(HW_REG_HW_ID)")
    make_srd(a, S_WS, 'ws')
    make_srd(a, S_DBG, 'dbg')
    a(f"s_getreg_b32 s{S_XCC}, hwreg(HW_REG_XCC_ID)")
    a(f"s_and_b32 s{S_XCC}, s{S_XCC}, 7")
    a("v_lshrrev_b32 v1, 6, v0")
    a("s_nop 0")
    a(f"v_readfirstlane_b32 s{S_WAVE}, v1")
    a("v_mov_b32 v2, -1")
    a("v_mov_b32 v3, -1")
    a("v_mov_b32 v4, 0")
    a("v_lshlrev_b32 v1, 3, v0")
    a(f"s_lshl_b32 s{S_TMP}, s2, 11")
    a(f"s_add_u32 s{S_TMP + 1}, s{S_TMP}, {hex(WS_IN)}")
    a(f"s_add_u32 s{S_TMP + 2}, s{S_TMP}, {hex(WS_M)}")
    a(f"s_lshl_b32 s{S_TMP + 3}, s2, 7")
    a(f"s_add_u32 s{S_TMP + 3}, s{S_TMP + 3}, {hex(WS_FLAG)}")
    a("v_lshlrev_b32 v5, 2, v0")
    a(f"v_mov_b32 v6, {hex(OOB)}")
    a("v_cmp_gt_u32 vcc, 32, v0")
    a("v_cndmask_b32 v5, v6, v5, vcc")
    a("s_waitcnt lgkmcnt(0)")
    a(f"buffer_store_dwordx2 v[2:3], v1, {sr(S_WS, 4)}, s{S_TMP + 1} offen sc1")
    a(f"buffer_store_dwordx2 v[2:3], v1, {sr(S_WS, 4)}, s{S_TMP + 2} offen sc1")
    a(f"buffer_store_dword v4, v5, {sr(S_WS, 4)}, s{S_TMP + 3} offen sc1")
    l_skip = a.newlabel("tk_skip")
    a(f"s_cmp_lg_u32 s{S_WAVE}, 0")
    a(f"s_cbranch_scc1 {l_skip}")
    a(f"s_lshl_b32 s{S_TMP}, s{S_XCC}, 2")
    a("v_mov_b32 v6, 1")
    a(f"v_mov_b32 v7, {hex(OOB)}")
    a("v_cmp_eq_u32 vcc, 0, v0")
    a(f"v_cndmask_b32 v7, v7, v4, vcc")
    a(f"buffer_atomic_add v6, v7, {sr(S_DBG, 4)}, s{S_TMP} offen sc0 sc1")
    a("s_waitcnt vmcnt(0)")
    a(f"v_mov_b32 v7, {lds_scratch}")
    a(f"s_mov_b64 {sr(S_EXEC, 2)}, exec")
    a("s_mov_b64 exec, 1")
    a("ds_write_b32 v7, v6")
    a(f"s_mov_b64 exec, {sr(S_EXEC, 2)}")
    a.label(l_skip)
    a("s_waitcnt vmcnt(0) lgkmcnt(0)")
    a("s_barrier")
    l_skip2 = a.newlabel("rd_skip")
    a(f"s_cmp_lg_u32 s{S_WAVE}, 0")
    a(f"s_cbranch_scc1 {l_skip2}")
    a("v_mov_b32 v6, 1")
    a(f"v_mov_b32 v7, {hex(OOB)}")
    a("v_cmp_eq_u32 vcc, 0, v0")
    a(f"v_cndmask_b32 v7, v7, v4, vcc")
    a(f"buffer_atomic_add v6, v7, {sr(S_DBG, 4)}, 0 offen offset:{DBG_READY * 4} sc1")
    a.label(l_skip2)
    a(f"v_mov_b32 v7, {lds_scratch}")
    a("ds_read_b32 v6, v7")
    a("s_waitcnt lgkmcnt(0)")
    a(f"v_readfirstlane_b32 s{S_TICKET}, v6")
    a("s_barrier")


S_RDY = 22
PF_LOADS = 29


def entry2(a, nwg=256, lds_scratch=0, prefetch=True):
    a(f"s_cmp_ge_u32 s2, {nwg}")
    a("s_cbranch_scc1 L_exit")
    if DSTAMPS:
        a("s_memrealtime s[96:97]")
    if RSTAMPS:
        a("s_memrealtime s[94:95]")
        a("s_getreg_b32 s93, hwreg(HW_REG_HW_ID)")
    make_srd(a, S_WS, 'ws')
    make_srd(a, S_DBG, 'dbg')
    if prefetch:
        for i, n in enumerate(('wq', 'wk', 'wv', 'wo')):
            a(f"s_load_dwordx2 {sr(24 + 2 * i, 2)}, s[0:1], {KA[n]}")
        a("s_getreg_b32 s44, hwreg(HW_REG_HW_ID)")
    a(f"s_getreg_b32 s{S_XCC}, hwreg(HW_REG_XCC_ID)")
    a(f"s_and_b32 s{S_XCC}, s{S_XCC}, 7")
    a("v_lshrrev_b32 v1, 6, v0")
    a("s_nop 0")
    a(f"v_readfirstlane_b32 s{S_WAVE}, v1")
    a("v_mov_b32 v2, -1")
    a("v_mov_b32 v3, -1")
    a("v_mov_b32 v4, 0")
    a("v_lshlrev_b32 v1, 3, v0")
    a(f"s_lshl_b32 s{S_TMP}, s2, 11")
    a(f"s_add_u32 s{S_TMP + 1}, s{S_TMP}, {hex(WS_IN)}")
    a(f"s_add_u32 s{S_TMP + 2}, s{S_TMP}, {hex(WS_M)}")
    a(f"s_lshl_b32 s{S_TMP + 3}, s2, 7")
    a(f"s_add_u32 s{S_TMP + 3}, s{S_TMP + 3}, {hex(WS_FLAG)}")
    a("v_lshlrev_b32 v5, 2, v0")
    a(f"v_mov_b32 v6, {hex(OOB)}")
    a("v_cmp_gt_u32 vcc, 32, v0")
    a("v_cndmask_b32 v5, v6, v5, vcc")
    a(f"v_mov_b32 v7, {hex(OOB)}")
    a("v_cmp_eq_u32 vcc, 0, v0")
    a("v_cndmask_b32 v7, v7, v4, vcc")
    a("v_mov_b32 v6, 1")
    a(f"s_lshl_b32 s{S_TMP + 4}, s{S_XCC}, 2")
    if prefetch:
        a("s_bfe_u32 s45, s44, 0x3000d")
        a("s_mul_i32 s45, s45, 9")
        a("s_bfe_u32 s44, s44, 0x40008")
        a("s_add_u32 s44, s44, s45")
        a(f"s_mul_i32 s44, s44, {114 * 1024}")
        a(f"s_mul_i32 s45, s{S_WAVE}, {PF_LOADS * 1024}")
        a("s_add_u32 s44, s44, s45")
        a("v_and_b32 v12, 63, v0")
        a("v_lshlrev_b32 v12, 4, v12")
    a("s_waitcnt lgkmcnt(0)")
    if prefetch:
        a(f"s_cmp_eq_u32 s{S_XCC}, 5")
        a("s_cselect_b64 s[40:41], s[24:25], s[30:31]")
        a(f"s_cmp_eq_u32 s{S_XCC}, 6")
        a("s_cselect_b64 s[40:41], s[26:27], s[40:41]")
        a(f"s_cmp_eq_u32 s{S_XCC}, 7")
        a("s_cselect_b64 s[40:41], s[28:29], s[40:41]")
        a(f"s_mov_b32 s42, {hex(SIZE['wq'])}")
        a("s_mov_b32 s43, 0x20000")
    tick = f"buffer_atomic_add v6, v7, {sr(S_DBG, 4)}, s{S_TMP + 4} offen sc0 sc1"
    late, nopf, got, skip0, skip1 = (a.newlabel(x) for x in ("en_late", "en_nopf", "en_got", "en_s0", "en_s1"))

    def clear():
        a(f"buffer_store_dwordx2 v[2:3], v1, {sr(S_WS, 4)}, s{S_TMP + 1} offen sc1")
        a(f"buffer_store_dwordx2 v[2:3], v1, {sr(S_WS, 4)}, s{S_TMP + 2} offen sc1")
        a(f"buffer_store_dword v4, v5, {sr(S_WS, 4)}, s{S_TMP + 3} offen sc1")

    a(f"s_cmp_lg_u32 s{S_XCC}, 0")
    a(f"s_cbranch_scc1 {late}")
    a(f"s_mov_b32 s{S_RDY}, 1")
    a(f"s_cmp_lg_u32 s{S_WAVE}, 0")
    a(f"s_cbranch_scc1 {skip0}")
    a(tick, nowait=True)
    a.label(skip0)
    clear()
    a("s_waitcnt vmcnt(3)")
    a(f"s_branch {got}")
    a.label(late)
    a(f"s_mov_b32 s{S_RDY}, 0")
    clear()
    if prefetch:
        a(f"s_cmp_lt_u32 s{S_XCC}, 4")
        a(f"s_cbranch_scc1 {nopf}")
        for i in range(PF_LOADS):
            if i and i % 4 == 0:
                a("s_add_u32 s44, s44, 4096")
            a(f"buffer_load_dwordx4 v[8:11], v12, s[40:43], s44 offen offset:{(i & 3) * 1024}", nowait=True)
        a(f"s_waitcnt vmcnt({PF_LOADS})")
        a("s_barrier")
        a(f"s_branch {skip1}")
    a.label(nopf)
    a("s_waitcnt vmcnt(0)")
    a("s_barrier")
    a.label(skip1)
    a(f"s_cmp_lg_u32 s{S_WAVE}, 0")
    a(f"s_cbranch_scc1 {skip1}b")
    a(tick, nowait=True)
    a.label(skip1 + "b")
    a("s_waitcnt vmcnt(0)")
    a.label(got)
    a.clear("v6")
    a(f"v_readfirstlane_b32 s{S_TICKET}, v6")
    a(f"v_mov_b32 v7, {lds_scratch}")
    a(f"s_cmp_lg_u32 s{S_WAVE}, 0")
    a(f"s_cbranch_scc1 {skip0}b")
    a(f"v_mov_b32 v6, s{S_TICKET}")
    a("ds_write_b32 v7, v6")
    a.label(skip0 + "b")
    a("s_waitcnt lgkmcnt(0)")
    a("s_barrier")
    a("ds_read_b32 v6, v7")
    a("s_waitcnt lgkmcnt(0)")
    a(f"v_readfirstlane_b32 s{S_TICKET}, v6")
    a("s_barrier")


def ready_flush(a, vt, waited=False):
    skip, skipw = a.newlabel("rf_skip"), a.newlabel("rf_w")
    a(f"s_cmp_eq_u32 s{S_RDY}, 0")
    a(f"s_cbranch_scc1 {skip}")
    if not waited:
        a("s_waitcnt vmcnt(0)")
    a("s_barrier")
    a(f"s_mov_b32 s{S_RDY}, 0")
    a(f"s_cmp_lg_u32 s{S_WAVE}, 0")
    a(f"s_cbranch_scc1 {skipw}")
    a(f"v_mov_b32 v{vt}, 1")
    a(f"v_mov_b32 v{vt + 1}, {hex(OOB)}")
    a(f"v_cmp_eq_u32 vcc, 0, v0")
    a(f"v_cndmask_b32 v{vt + 1}, v{vt + 1}, 0, vcc")
    a(f"buffer_atomic_add v{vt}, v{vt + 1}, {sr(S_DBG, 4)}, 0 offen offset:{DBG_READY * 4} sc1")
    a.label(skipw)
    a.label(skip)


def ready_total(a, vt, dst):
    a(f"v_readlane_b32 s{dst}, v{vt}, {DBG_READY}")
    for x in range(1, 8):
        a(f"v_readlane_b32 s{S_TMP + 2}, v{vt}, {x}")
        a(f"s_add_u32 s{dst}, s{dst}, s{S_TMP + 2}")


def dbg_load(a, vt, va, **kw):
    a(f"buffer_load_dword v{vt}, v{va}, {sr(S_DBG, 4)}, 0 offen sc1", **kw)


def wait_ready2(a, vt, nwg=256, limit=200000, lane4=None):
    top, out = spin_label_pair(a, "rdy")
    a(f"s_mov_b32 s{S_TMP}, {limit}")
    if lane4 is None:
        a(f"v_and_b32 v{vt + 1}, 63, v0")
        a(f"v_lshlrev_b32 v{vt + 1}, 2, v{vt + 1}")
    else:
        a(f"v_mov_b32 v{vt + 1}, v{lane4}")
    a.label(top)
    dbg_load(a, vt, vt + 1)
    a("s_waitcnt vmcnt(0)")
    ready_total(a, vt, S_TMP + 1)
    a(f"s_cmp_ge_u32 s{S_TMP + 1}, {nwg}")
    a(f"s_cbranch_scc1 {out}")
    a(f"s_sub_u32 s{S_TMP}, s{S_TMP}, 1")
    a(f"s_cmp_lg_u32 s{S_TMP}, 0")
    a(f"s_cbranch_scc1 {top}")
    a.label(out)


def mode_check2(a, vt, fallback, expect=32, lane4=None):
    ok = a.newlabel("mode_ok")
    a(f"s_cmp_lg_u32 s{S_MODE}, 0")
    a(f"s_cbranch_scc1 {ok}")
    wait_ready2(a, vt, lane4=lane4)
    dbg_load(a, vt, vt + 1)
    a(f"v_cmp_ne_u32 vcc, {expect}, v{vt}")
    a(f"s_and_b32 s{S_TMP}, vcc_lo, 0xff")
    a(f"s_cmp_lg_u32 s{S_TMP}, 0")
    a(f"s_cbranch_scc1 {fallback}")
    a.label(ok)


def wait_ready(a, vt, nwg=256, limit=200000):
    top, out = spin_label_pair(a, "rdy")
    a(f"s_mov_b32 s{S_TMP}, {limit}")
    a(f"v_mov_b32 v{vt + 1}, {DBG_READY * 4}")
    a.label(top)
    a(f"buffer_load_dword v{vt}, v{vt + 1}, {sr(S_DBG, 4)}, 0 offen sc1")
    a("s_waitcnt vmcnt(0)")
    a(f"v_readfirstlane_b32 s{S_TMP + 1}, v{vt}")
    a(f"s_cmp_ge_u32 s{S_TMP + 1}, {nwg}")
    a(f"s_cbranch_scc1 {out}")
    a(f"s_sub_u32 s{S_TMP}, s{S_TMP}, 1")
    a(f"s_cmp_lg_u32 s{S_TMP}, 0")
    a(f"s_cbranch_scc1 {top}")
    a.label(out)


def count_arrival(a, slot, vt):
    skip = a.newlabel("cnt_skip")
    a(f"v_mov_b32 v{vt}, 1")
    a(f"v_mov_b32 v{vt + 1}, {hex(OOB)}")
    a("v_cmp_eq_u32 vcc, 0, v0")
    a(f"v_cndmask_b32 v{vt + 1}, v{vt + 1}, 0, vcc")
    a(f"s_cmp_lg_u32 s{S_WAVE}, 0")
    a(f"s_cbranch_scc1 {skip}")
    a(f"buffer_atomic_add v{vt}, v{vt + 1}, {sr(S_DBG, 4)}, 0 offen offset:{slot * 4} sc1")
    a.label(skip)


def wait_count(a, slot, target, vt, sleep, limit=20000):
    top, out = spin_label_pair(a, "cnt")
    a(f"s_mov_b32 s{S_TMP}, {limit}")
    a(f"v_mov_b32 v{vt + 1}, {slot * 4}")
    a.label(top)
    a(f"buffer_load_dword v{vt}, v{vt + 1}, {sr(S_DBG, 4)}, 0 offen sc1")
    a("s_waitcnt vmcnt(0)")
    a(f"v_readfirstlane_b32 s{S_TMP + 1}, v{vt}")
    a(f"s_cmp_ge_u32 s{S_TMP + 1}, {target}")
    a(f"s_cbranch_scc1 {out}")
    if sleep:
        a(f"s_sleep {sleep}")
    a(f"s_sub_u32 s{S_TMP}, s{S_TMP}, 1")
    a(f"s_cmp_lg_u32 s{S_TMP}, 0")
    a(f"s_cbranch_scc1 {top}")
    a.label(out)


def wave0_wait(a, s_off, target, vt, sleep, limit=20000):
    top, out = spin_label_pair(a, "w0w")
    a(f"s_cmp_lg_u32 s{S_WAVE}, 0")
    a(f"s_cbranch_scc1 {out}")
    a(f"s_mov_b32 s{S_TMP}, {limit}")
    a.label(top)
    a(f"buffer_load_dword v{vt}, off, {sr(S_WS, 4)}, s{s_off} sc1")
    a("s_waitcnt vmcnt(0)")
    a(f"v_readfirstlane_b32 s{S_TMP + 1}, v{vt}")
    a(f"s_cmp_ge_u32 s{S_TMP + 1}, {target}")
    a(f"s_cbranch_scc1 {out}")
    if sleep:
        a(f"s_sleep {sleep}")
    a(f"s_sub_u32 s{S_TMP}, s{S_TMP}, 1")
    a(f"s_cmp_lg_u32 s{S_TMP}, 0")
    a(f"s_cbranch_scc1 {top}")
    a.label(out)


def mode_check(a, vt, fallback, expect=32):
    ok = a.newlabel("mode_ok")
    a(f"s_cmp_lg_u32 s{S_MODE}, 0")
    a(f"s_cbranch_scc1 {ok}")
    wait_ready(a, vt)
    a(f"v_and_b32 v{vt + 1}, 63, v0")
    a(f"v_lshlrev_b32 v{vt + 1}, 2, v{vt + 1}")
    a(f"buffer_load_dword v{vt}, v{vt + 1}, {sr(S_DBG, 4)}, 0 offen sc1")
    a(f"v_cmp_ne_u32 vcc, {expect}, v{vt}")
    a(f"s_and_b32 s{S_TMP}, vcc_lo, 0xff")
    a(f"s_cmp_lg_u32 s{S_TMP}, 0")
    a(f"s_cbranch_scc1 {fallback}")
    a.label(ok)


RSTAMPS = False
DSTAMPS = False


def dstamp(a, slot, role, first=False):
    if not DSTAMPS:
        return
    l = a.newlabel("dts")
    a(f"s_cmp_lg_u32 s{S_WAVE}, 0")
    a(f"s_cbranch_scc1 {l}")
    a(f"s_cmp_lg_u32 s{S_ROLE}, {role}")
    a(f"s_cbranch_scc1 {l}")
    if not first:
        a("s_memrealtime s[98:99]")
        a("s_waitcnt lgkmcnt(0)")
        a("v_mov_b32 v31, s98")
    else:
        a("v_mov_b32 v31, s96")
    a(f"buffer_store_dword v31, off, {sr(S_DBG, 4)}, 0 offset:{slot * 4}")
    a.label(l)

WS_RT = 0x4180000


def rstamp(a, slot, sreg=None):
    if not RSTAMPS:
        return
    l = a.newlabel("rts")
    a(f"s_cmp_lg_u32 s{S_WAVE}, 0")
    a(f"s_cbranch_scc1 {l}")
    a("s_memrealtime s[98:99]")
    a(f"s_lshl_b32 s100, s{S_ROLE}, 8")
    a(f"s_add_u32 s100, s100, {hex(WS_RT + slot * 4)}")
    if sreg is not None:
        a(f"s_lshl_b32 s101, s{sreg}, 2")
        a("s_add_u32 s100, s100, s101")
    a("s_waitcnt lgkmcnt(0)")
    a("v_mov_b32 v31, s98")
    a(f"buffer_store_dword v31, off, {sr(S_WS, 4)}, s100")
    if slot == 0:
        a("v_mov_b32 v30, s94")
        a("v_mov_b32 v31, s93")
        a(f"buffer_store_dword v30, off, {sr(S_WS, 4)}, s100 offset:24")
        a(f"buffer_store_dword v31, off, {sr(S_WS, 4)}, s100 offset:28")
    a.label(l)


HEADER = """; @launch grid=(256,1,1) block=(256,1,1) lds={lds}
.amdgcn_target "amdgcn-amd-amdhsa--gfx950"
.text
.globl {name}
.p2align 8
.type {name},@function
"""

FOOTER = """.section .rodata,"a"
.p2align 6
.amdhsa_kernel {name}
  .amdhsa_next_free_vgpr 512
  .amdhsa_next_free_sgpr 102
  .amdhsa_accum_offset 256
  .amdhsa_group_segment_fixed_size 0
  .amdhsa_kernarg_size 120
  .amdhsa_user_sgpr_count 2
  .amdhsa_user_sgpr_kernarg_segment_ptr 1
  .amdhsa_system_sgpr_workgroup_id_x 1
.end_amdhsa_kernel
"""


def lanefn(a, dst, f, vtid, t0, t1, stmp, nbits=8):
    N = 1 << nbits
    c = [int(f(t)) for t in range(N)]
    for i in range(nbits):
        for m in range(N):
            if m >> i & 1:
                c[m] -= c[m ^ (1 << i)]
    first = True

    def acc(coef, treg):
        nonlocal first
        coef32 = coef & 0xFFFFFFFF
        small = -(1 << 23) <= coef < (1 << 23)
        if small and -16 <= coef <= 64:
            k = str(coef)
        else:
            a(f"s_mov_b32 s{stmp}, {hex(coef32)}")
            k = f"s{stmp}"
        if small:
            a(f"v_mad_i32_i24 v{dst}, v{treg}, {k}, v{dst}")
        else:
            a(f"v_mul_lo_u32 v{t1}, v{treg}, {k}")
            a(f"v_add_u32 v{dst}, v{dst}, v{t1}")

    a(f"v_mov_b32 v{dst}, {hex(c[0] & 0xFFFFFFFF)}")
    done = set([0])
    i = 0
    while i < nbits:
        ci = c[1 << i]
        if ci == 0:
            i += 1
            continue
        j = i
        while j + 1 < nbits and c[1 << (j + 1)] == ci * (1 << (j + 1 - i)):
            j += 1
        a(f"v_bfe_u32 v{t0}, v{vtid}, {i}, {j - i + 1}")
        acc(ci, t0)
        i = j + 1
    for m in range(1, N):
        if bin(m).count('1') < 2 or c[m] == 0:
            continue
        bits = [b for b in range(nbits) if m >> b & 1]
        a(f"v_bfe_u32 v{t0}, v{vtid}, {bits[0]}, 1")
        for b in bits[1:]:
            a(f"v_bfe_u32 v{t1}, v{vtid}, {b}, 1")
            a(f"v_and_b32 v{t0}, v{t0}, v{t1}")
        acc(c[m], t0)


def weave(a, main, fills):
    for x in fills.get(-1, []):
        a(x)
    for i, m in enumerate(main):
        a(m)
        for x in fills.get(i, []):
            a(x)


def spread(fills, lst, start, per=2):
    p = start
    i = 0
    while i < len(lst):
        fills.setdefault(p, []).extend(lst[i:i + per])
        i += per
        p += 1
    return p
```

```python
from asmlib import *
from layout import *
from common import *
from proj import *

H_LDS = XB0 + XBUF
S_H, S_J, S_SEG, S_XS, S_XM0, S_DELTA, S_FLO, S_QO, S_KO, S_VO, S_NLEFT, S_XMD = range(44, 56)
S_U = 56
S_SC = 64
WQ, WK, WV = 256, 256 + 128, 128
ACCQ, ACCK, ACCV = ACC0, ACC0 + 16, ACC0 + 32
SCALE_LOG2E = 128 ** -0.5 * 1.4426950408889634

VM_KEY = [0, 1, 2, 3, 4, 5, 6, 7]


def f32hex(x):
    import struct
    return hex(struct.unpack('<I', struct.pack('<f', x))[0])


def h_prologue(a, nper=3):
    make_srd(a, S_A, 'wq')
    make_srd(a, S_B, 'wk')
    make_srd(a, S_C, 'wv')
    make_srd(a, S_X, 'x')
    a(f"s_sub_u32 s{S_T0}, s{S_ROLE}, 32")
    if nper == 3:
        a(f"s_mul_i32 s{S_H}, s{S_T0}, 0xaaab")
        a(f"s_lshr_b32 s{S_H}, s{S_H}, 17")
        a(f"s_mul_i32 s{S_T1}, s{S_H}, 3")
        a(f"s_sub_u32 s{S_J}, s{S_T0}, s{S_T1}")
    else:
        a(f"s_lshr_b32 s{S_H}, s{S_T0}, 1")
        a(f"s_and_b32 s{S_J}, s{S_T0}, 1")
    slab_consts(a, 8192)
    x_consts(a)
    F(a, V_ST0, lambda l, w: w * 2048 + l * 16)
    F(a, V_ST1, lambda l, w: (w >> 1) * 4096 + (l & 1) * 2048 + (l >> 5) * 512 + (16 * (w & 1) + ((l & 31) >> 1)) * 16)
    a(f"s_lshl_b32 s{S_WB}, s{S_WAVE}, 18")
    a(f"s_lshl_b32 s{S_T0}, s{S_H}, 8")
    a(f"s_add_u32 s{S_WB}, s{S_WB}, s{S_T0}")
    a(f"s_lshl_b32 s{S_XS}, s{S_J}, 15")
    a(f"s_lshl_b32 s{S_T0}, s{S_WAVE}, 13")
    a(f"s_add_u32 s{S_XS}, s{S_XS}, s{S_T0}")
    a(f"s_mul_i32 s{S_XM0}, s{S_WAVE}, {8 * XROW}")
    a(f"s_add_u32 s{S_XM0}, s{S_XM0}, {XB0}")
    a("s_waitcnt lgkmcnt(0)")
    slabs = []
    for srd, dest, perm in ((S_B, WK, True), (S_C, WV, False), (S_A, WQ, True)):
        for sl in range(4):
            slabs.append(dict(srd=srd, stride=8192, row0=128 * sl, dest=dest + 32 * sl, perm=perm))
    slab_load(a, slabs, pre=lambda: x_issue(a, S_XS, S_XM0))


def h_phase1(a, pause=False, sleep=8, slow=0, nper=3):
    a(f"s_mov_b32 s{S_SEG}, s{S_J}")
    if nper == 3:
        a(f"s_cmp_eq_u32 s{S_J}, 0")
        a(f"s_cselect_b32 s{S_NLEFT}, 22, 21")
    else:
        a(f"s_mov_b32 s{S_NLEFT}, 32")
    a(f"s_mov_b32 s{S_FLO}, {hex(WS_DBG)}")
    a(f"s_mov_b32 s{S_DELTA}, {XB1 - XB0}")
    a(f"v_add_u32 v{V_XR}, {XB0}, v{V_XR}")
    top = a.newlabel("hp1")
    a.label(top)
    a.need("xs")
    a("s_barrier")
    a(f"s_add_u32 s{S_XM0}, s{S_XM0}, s{S_DELTA}")
    a(f"s_add_u32 s{S_T1}, s{S_SEG}, {nper}")
    a(f"s_min_u32 s{S_T1}, s{S_T1}, 63")
    a(f"s_lshl_b32 s{S_XS}, s{S_T1}, 15")
    a(f"s_lshl_b32 s{S_T1}, s{S_WAVE}, 13")
    a(f"s_add_u32 s{S_XS}, s{S_XS}, s{S_T1}")
    x_issue(a, S_XS, S_XM0)

    def flag_prev():
        a.need("st")
        a(f"buffer_atomic_add v{V_ONE}, v{V_FLAG}, {sr(S_WS, 4)}, s{S_FLO} offen sc1")

    proj_mfmas(a, [(ACCK, WK, True), (ACCV, WV, False), (ACCQ, WQ, True)], {12: flag_prev})
    a(f"s_lshl_b32 s{S_T0}, s{S_SEG}, 5")
    a(f"s_add_u32 s{S_T0}, s{S_T0}, s{S_H}")
    a(f"s_lshl_b32 s{S_T0}, s{S_T0}, 13")
    a(f"s_add_u32 s{S_KO}, s{S_T0}, {hex(WS_KF)}")
    a(f"s_add_u32 s{S_VO}, s{S_T0}, {hex(WS_VF)}")
    a(f"s_add_u32 s{S_QO}, s{S_T0}, {hex(WS_QF)}")
    a(f"s_lshl_b32 s{S_T0}, s{S_H}, 8")
    a(f"s_lshl_b32 s{S_T1}, s{S_SEG}, 2")
    a(f"s_add_u32 s{S_T0}, s{S_T0}, s{S_T1}")
    a(f"s_add_u32 s{S_FLO}, s{S_T0}, {hex(WS_FLAG + FL_KV)}")
    for acc, vo, so in ((ACCK, V_ST0, S_KO), (ACCV, V_ST1, S_VO), (ACCQ, V_ST0, S_QO)):
        pack16(a, acc)
        for half in range(2):
            a(f"buffer_store_dwordx4 {vr(acc + 4 * half, 4)}, v{vo}, {sr(S_WS, 4)}, s{so} offen "
              f"offset:{half * 1024} sc1", tag="st")
    a(f"v_add_u32 v{V_XR}, s{S_DELTA}, v{V_XR}")
    a(f"s_sub_u32 s{S_DELTA}, 0, s{S_DELTA}")
    a(f"s_add_u32 s{S_SEG}, s{S_SEG}, {nper}")
    a(f"s_sub_u32 s{S_NLEFT}, s{S_NLEFT}, 1")
    if slow:
        a(f"s_sleep {slow}")
    if pause:
        go = a.newlabel("hp1_go")
        a(f"s_cmp_ge_u32 s{S_SEG}, {2 * nper}")
        a(f"s_cbranch_scc1 {go}")
        a.need("st")
        a(f"buffer_atomic_add v{V_ONE}, v{V_FLAG}, {sr(S_WS, 4)}, s{S_FLO} offen sc1")
        a(f"s_mov_b32 s{S_FLO}, {hex(WS_DBG)}")
        a(f"s_and_b32 s{S_U}, s{S_H}, 28")
        a(f"s_lshl_b32 s{S_U}, s{S_U}, 8")
        a(f"s_add_u32 s{S_U}, s{S_U}, {hex(WS_FLAG + FL_MEM + 256 + 4)}")
        wave0_wait(a, S_U, 1, V_T0, sleep)
        a.label(go)
    a(f"s_cmp_lg_u32 s{S_NLEFT}, 0")
    a(f"s_cbranch_scc1 {top}")
    a.need("st")
    a(f"buffer_atomic_add v{V_ONE}, v{V_FLAG}, {sr(S_WS, 4)}, s{S_FLO} offen sc1")


QF_, KF_, VF_ = 32, 64, 96
SA, MASK, SM = 128, 144, 160
KMF, VMF = 176, 208
PT, PM = 224, 232
V_L16, V_KML, V_VML, V_MX, V_SUM, V_TMP = 14, 15, 16, 17, 18, 19
OA = 32


def h2_prologue(a):
    a(f"s_sub_u32 s{S_H}, s{S_ROLE}, 96")
    a(f"s_mov_b32 s{S_J}, 0")
    lane0_offset(a, V_FLAG)
    a(f"v_mov_b32 v{V_ONE}, 1")


def h_phase2(a, stride=12):
    F(a, V_L16, lambda l, w: l * 16)
    F(a, V_KML, lambda l, w: (VM_KEY[l & 7] * 256 + (l >> 5) * 16) if (l & 31) < 8 else OOB)
    F(a, V_VML, lambda l, w: (l & 31) * 16 + (l >> 5) * 8)
    a(f"v_and_b32 v{V_T0}, 31, v0")
    a(f"v_bfe_u32 v{V_T1}, v0, 5, 1")
    a(f"v_lshlrev_b32 v{V_T1}, 2, v{V_T1}")
    a(f"v_sub_u32 v{V_TMP}, v{V_T0}, v{V_T1}")
    a(f"v_mov_b32 v{V_T0}, 0")
    a(f"v_mov_b32 v{V_T1}, {f32hex(-1e30)}")
    for r in range(16):
        a(f"v_cmp_le_i32 vcc, {8 * (r >> 2) + (r & 3)}, v{V_TMP}")
        a(f"v_cndmask_b32 v{MASK + r}, v{V_T1}, v{V_T0}, vcc")
    for i in range(4):
        a(f"v_mov_b32 v{VMF + 4 * i + 2}, 0")
        a(f"v_mov_b32 v{VMF + 4 * i + 3}, 0")
    a(f"v_mov_b32 v{PM + 2}, 0")
    a(f"v_mov_b32 v{PM + 3}, 0")
    a(f"s_mov_b32 s{S_SC}, {f32hex(SCALE_LOG2E)}")
    a(f"s_lshl_b32 s{S_SEG}, s{S_J}, 2")
    a(f"s_add_u32 s{S_SEG}, s{S_SEG}, s{S_WAVE}")
    top, done = a.newlabel("hp2"), a.newlabel("hp2_done")
    a.label(top)
    a(f"s_cmp_ge_u32 s{S_SEG}, 64")
    a(f"s_cbranch_scc1 {done}")
    sFL, sQ, sK, sV, sKM, sVM, sO, sM = range(S_U, S_U + 8)
    a(f"s_lshl_b32 s{S_T0}, s{S_H}, 8")
    a(f"s_lshl_b32 s{S_T1}, s{S_SEG}, 2")
    a(f"s_add_u32 s{sFL}, s{S_T0}, s{S_T1}")
    a(f"s_add_u32 s{sFL}, s{sFL}, {hex(WS_FLAG + FL_KV)}")
    a(f"s_add_u32 s{sM}, s{S_T0}, {hex(WS_FLAG + FL_MEM)}")
    a(f"s_lshl_b32 s{S_T0}, s{S_SEG}, 5")
    a(f"s_add_u32 s{S_T0}, s{S_T0}, s{S_H}")
    a(f"s_lshl_b32 s{S_T1}, s{S_T0}, 13")
    a(f"s_add_u32 s{sQ}, s{S_T1}, {hex(WS_QF)}")
    a(f"s_add_u32 s{sK}, s{S_T1}, {hex(WS_KF)}")
    a(f"s_add_u32 s{sV}, s{S_T1}, {hex(WS_VF)}")
    a(f"s_add_u32 s{sO}, s{S_T1}, {hex(WS_OF)}")
    a(f"s_lshl_b32 s{S_T1}, s{S_T0}, 11")
    a(f"s_add_u32 s{sKM}, s{S_T1}, {hex(WS_KM)}")
    a(f"s_add_u32 s{sVM}, s{S_T1}, {hex(WS_VM)}")
    poll_ge(a, sFL, 4, V_TMP)

    def ld(base, so, n):
        for i in range(n):
            if i == 4:
                a(f"s_add_u32 s{S_T0}, s{so}, 4096")
            a(f"buffer_load_dwordx4 {vr(base + 4 * i, 4)}, v{V_L16}, {sr(S_WS, 4)}, s{so if i < 4 else S_T0} offen "
              f"offset:{(i & 3) * 1024} sc1")

    ld(KF_, sK, 8)
    ld(QF_, sQ, 8)
    ld(VF_, sV, 8)
    for k in range(8):
        c = vr(MASK, 16) if k == 0 else vr(SA, 16)
        a(f"v_mfma_f32_32x32x16_bf16 {vr(SA, 16)}, {vr(KF_ + 4 * k, 4)}, {vr(QF_ + 4 * k, 4)}, {c}")
    a(f"v_max3_f32 v{V_MX}, v{SA}, v{SA + 1}, v{SA + 2}")
    for r in range(3, 15, 2):
        a(f"v_max3_f32 v{V_MX}, v{V_MX}, v{SA + r}, v{SA + r + 1}")
    a(f"v_max_f32 v{V_MX}, v{V_MX}, v{SA + 15}")
    poll_ge(a, sM, S_SEG, V_TMP, target_is_sgpr=True, strict=True)
    for k in range(8):
        a(f"buffer_load_dwordx4 {vr(KMF + 4 * k, 4)}, v{V_KML}, {sr(S_WS, 4)}, s{sKM} offen offset:{k * 32} sc1")
    for t in range(4):
        a(f"buffer_load_dwordx2 {vr(VMF + 4 * t, 2)}, v{V_VML}, {sr(S_WS, 4)}, s{sVM} offen offset:{t * 512} sc1")
    for k in range(8):
        c = "0" if k == 0 else vr(SM, 16)
        a(f"v_mfma_f32_32x32x16_bf16 {vr(SM, 16)}, {vr(KMF + 4 * k, 4)}, {vr(QF_ + 4 * k, 4)}, {c}")
    a(f"v_max3_f32 v{V_MX}, v{V_MX}, v{SM}, v{SM + 1}")
    a(f"v_max3_f32 v{V_MX}, v{V_MX}, v{SM + 2}, v{SM + 3}")
    a(f"v_mov_b32 v{V_TMP}, v{V_MX}")
    a(f"v_permlane32_swap_b32 v{V_MX}, v{V_TMP}")
    a(f"v_max_f32 v{V_MX}, v{V_MX}, v{V_TMP}")
    a(f"v_mul_f32 v{V_MX}, s{S_SC}, v{V_MX}")
    sv = [SA + r for r in range(16)] + [SM + r for r in range(4)]
    for r in sv:
        a(f"v_fma_f32 v{r}, v{r}, s{S_SC}, -v{V_MX}")
    for r in sv:
        a(f"v_exp_f32 v{r}, v{r}")
    a(f"v_add_f32 v{V_SUM}, v{sv[0]}, v{sv[1]}")
    a(f"v_add_f32 v{V_TMP}, v{sv[2]}, v{sv[3]}")
    for i in range(4, 20, 2):
        a(f"v_add_f32 v{V_SUM}, v{V_SUM}, v{sv[i]}")
        a(f"v_add_f32 v{V_TMP}, v{V_TMP}, v{sv[i + 1]}")
    a(f"v_add_f32 v{V_SUM}, v{V_SUM}, v{V_TMP}")
    a(f"v_mov_b32 v{V_TMP}, v{V_SUM}")
    a(f"v_permlane32_swap_b32 v{V_SUM}, v{V_TMP}")
    a(f"v_add_f32 v{V_SUM}, v{V_SUM}, v{V_TMP}")
    a(f"v_rcp_f32 v{V_SUM}, v{V_SUM}")
    for r in sv:
        a(f"v_mul_f32 v{r}, v{r}, v{V_SUM}")
    for i in range(8):
        a(f"v_cvt_pk_bf16_f32 v{PT + i}, v{SA + 2 * i}, v{SA + 2 * i + 1}")
    for i in range(2):
        a(f"v_cvt_pk_bf16_f32 v{PM + i}, v{SM + 2 * i}, v{SM + 2 * i + 1}")
    for step in range(3):
        for t in range(4):
            d = vr(OA + 16 * t, 16)
            if step < 2:
                A_, B_ = vr(VF_ + 4 * (2 * t + step), 4), vr(PT + 4 * step, 4)
            else:
                A_, B_ = vr(VMF + 4 * t, 4), vr(PM, 4)
            a(f"v_mfma_f32_32x32x16_bf16 {d}, {A_}, {B_}, {'0' if step == 0 else d}")
    a(f"s_add_u32 s{S_T1}, s{sO}, 4096")
    for t in range(4):
        pack16(a, OA + 16 * t)
        for half in range(2):
            k = 2 * t + half
            a(f"buffer_store_dwordx4 {vr(OA + 16 * t + 4 * half, 4)}, v{V_L16}, {sr(S_WS, 4)}, "
              f"s{sO if k < 4 else S_T1} offen offset:{(k & 3) * 1024} sc1", tag="ost")
    a(f"s_lshl_b32 s{S_T0}, s{S_SEG}, 7")
    a(f"s_add_u32 s{S_T0}, s{S_T0}, {hex(WS_FLAG + FL_OF)}")
    a.need("ost")
    a(f"buffer_atomic_add v{V_ONE}, v{V_FLAG}, {sr(S_WS, 4)}, s{S_T0} offen sc1")
    a(f"s_add_u32 s{S_SEG}, s{S_SEG}, {stride}")
    a(f"s_branch {top}")
    a.label(done)
```

```python
NSEG = 64
NH = 32

WS_KF = 0x0000000
WS_VF = 0x1000000
WS_KM = 0x2000000
WS_VM = 0x2400000
WS_OF = 0x2800000
WS_HF = 0x3800000
HF_STRIDE = 88 * 1024
WS_G = 0x3E00000
WS_IN = 0x3F00000
WS_M = 0x3F80000
WS_FLAG = 0x4000000
WS_TS = 0x4100000
WS_DBG = 0x4200000
WS_TS2 = 0x4500000
WS_DUMMY = 0x4800000
WS_QF = 0x5000000
WS_SIZE = 0x10000000

FL_KV = 0x0000
FL_MEM = 0x2000
FL_OF = 0x4000
FL_HF = 0x6000
FL_SIZE = 0x8000

DBG_TICKET = 0
DBG_READY = 8
DBG_LOADED = 32
```

```python
import re
from collections import deque
from asmlib import *
from layout import *
from common import *

L_M = 0
L_KX = 8192
L_QK = 16384
QKROW = 320
L_K = L_QK + 8 * QKROW
L_O = L_K + 8 * QKROW
L_DUMMY = L_O + 8 * QKROW
L_W = L_DUMMY + 256
NLF = 17
WSTRIDE = NLF * 2048
CHAIN_LDS = L_W + 4 * WSTRIDE

(V_FL, V_IDX, V_MP, V_MA, V_W, V_QKW, V_QB, V_KW, V_KX0, V_KX1, V_KXG, V_VXG, V_PF, V_OW, V_OA, V_PS, V_IN, V_MS,
 V_KMP, V_VMP) = range(20)
V_VSW, V_PUBL, V_PUBG = V_IN, V_KMP, V_VMP
V_MQ = (V_MA, V_PF, V_KW)
A = 20
ACC = 52
R = 84
VX = 124
T = 132
RES0 = 136

S_WQ, S_WK, S_WV, S_WO, S_M0 = 24, 28, 32, 36, 40
S_H = 44
S_STEP = 45
S_TAGM = 46
S_TAG = 47
S_RETRY = 48
S_MOFF = 49
S_MST = 50
S_KMO = 51
S_VMO = 52
S_KFO = 53
S_VFO = 54
S_FLKV = 55
S_FLMEM = 56
S_T0 = 57
S_HI = 58
S_ONES = 60
S_SELLO = 62
S_SELHI = 63
S_SC = 64
S_NSC = 66
S_M0KX = 67
S_PS = 68
S_FLEX = 72
S_IN = 76
S_CLS = 77
S_FLV = 78
S_KMP = 79
S_T1 = 80
S_TS = 82
S_T2 = 84
S_PH = 86
PHASES = False
STAMPS_ON = [False]
OPT = dict(inbox='spin', mpoll='spin', ackd=1, mdelay=0, pf='none', mfirst='', mdepth=2, msleep=0, idepth=2,
           isleep=0, ifirst='ack', mpf=1, mmask=0, mfast=0, mslow=1, mslowack=0, mfastack=1,
           imask=0, abl='', pub='late', kxgpos='v', vxpos='q', pfd=1, flag='one', pubpos=12, flagpos=8,
           pfpos=4, vxq=2, pfreg=0, pfmod='', pfs=64, pts='', noex=0, o1='qk', b2pos=7, refq=5, refper=1, aper=1, kxper=1, wos=1, pres=2, wint=0, rdper=1, pvo=1, stv=0, wop=1, gapn=2, nvf=1, qpf='m', mpre=0, mpeel=0, mgapn=0, igapn=0, mdly=0, iramp=0, icls=3, irgap=0, ifront=1, ackt='', lxor=1, lord=0, lnt=0, lring=104, lmax=60, lwo=0, lnop=0, sts=0, lmat='kvq', ofirst=1, pro=1, pk0=63, l2v=1, lal=0, lpad=0, cpf='', cpc=1, cpr=0, dry=0, lfake='', lfl=16, lfb=0, lst=2, lns=6, lsn=1, lhk='1,3', lhp='0,1,3', lso=0, lfp=2, lend=1, lsp=8, lsq=0, ltk=1, dpoll=1, dmin=9, wfix=1)


def abl(name):
    return name in str(OPT['abl']).split(',')


def cnt_begin(a, s_):
    if PHASES:
        a(f"s_mov_b32 s{s_}, s{S_RETRY}")


def cnt_end(a, s_):
    if PHASES:
        a(f"s_sub_u32 s{s_}, s{s_}, s{S_RETRY}")


XPH = {8: 74}
S_ACC = 24


def pts():
    return [x for x in str(OPT['pts']).split(',') if x]


def pt(a, name):
    if name in pts():
        a.raw(f"  s_memtime {sr(S_PH + 2 * pts().index(name), 2)}")


def pt_accumulate(a):
    if not pts():
        return
    skip = a.newlabel("pt_skip")
    a(f"s_cmp_lt_u32 s{S_STEP}, 5")
    a(f"s_cbranch_scc1 {skip}")
    a("s_waitcnt lgkmcnt(0)")
    for i in range(1, len(pts())):
        a(f"s_sub_u32 s{S_T1}, s{S_PH + 2 * i}, s{S_PH + 2 * i - 2}")
        a(f"s_add_u32 s{S_ACC + i}, s{S_ACC + i}, s{S_T1}")
    a(f"s_add_u32 s{S_ACC}, s{S_ACC}, 1")
    a.label(skip)


def pt_store(a):
    if not pts():
        return
    for i in range(8):
        a(f"v_writelane_b32 v{T + 1}, s{S_ACC + i}, {i}")
    a(f"s_lshl_b32 s{S_T1}, s{S_H}, 2")
    a(f"s_add_u32 s{S_T1}, s{S_T1}, s{S_WAVE}")
    a(f"s_lshl_b32 s{S_T1}, s{S_T1}, 8")
    a(f"s_add_u32 s{S_T1}, s{S_T1}, {hex(WS_TS2)}")
    a(f"buffer_store_dword v{T + 1}, v{V_FL}, {sr(S_WS, 4)}, s{S_T1} offen")


def pt_fills(fills, letter):
    for nm in pts():
        m = re.fullmatch(letter + r'(\d+)', nm)
        if m:
            put(fills, int(m.group(1)), '@pt ' + nm)


def emit(a, x):
    if x.startswith('@pt '):
        pt(a, x[4:])
    elif x.startswith('@ph '):
        ph(a, int(x[4:]))
    elif x.startswith('@nv '):
        a(x[4:], nowait='vm')
    else:
        a(x)


def order_gap(lst):
    if not OPT['nvf']:
        return lst
    out = []
    for x in lst:
        if x.startswith('@') and not x.startswith('@nv '):
            out.append(x)
            continue
        ins = Ins(x[4:] if x.startswith('@nv ') else x)
        pos = len(out)
        if ins.kind in ('ds', 'vmem'):
            while pos > 0:
                y = out[pos - 1]
                if y.startswith('@'):
                    break
                p = Ins(y)
                if p.kind != 'valu':
                    break
                if set(p.defs) & (set(ins.uses) | set(ins.defs)) or set(p.uses) & set(ins.defs):
                    break
                pos -= 1
        out.insert(pos, x)
    return out


def weave(a, main, fills):
    for x in fills.get(-1, []):
        emit(a, x)
    for i, m in enumerate(main):
        emit(a, m)
        for x in order_gap(fills.get(i, [])):
            emit(a, x)


def ph(a, k):
    if PHASES:
        a(f"s_memtime {sr(XPH.get(k, S_PH + 2 * k), 2)}")


def ph_flush(a):
    if not PHASES:
        return
    a("s_waitcnt lgkmcnt(0)")
    for k in range(7):
        a(f"v_writelane_b32 v{T + 1}, s{S_PH + 2 * k}, {k}")
    a(f"v_writelane_b32 v{T + 1}, s100, 8")
    a(f"v_writelane_b32 v{T + 1}, s101, 9")
    for k, r in XPH.items():
        a(f"v_writelane_b32 v{T + 1}, s{r}, {k + 3}")
    a(f"s_lshl_b32 s{S_T1}, s{S_H}, 2")
    a(f"s_add_u32 s{S_T1}, s{S_T1}, s{S_WAVE}")
    a(f"s_lshl_b32 s{S_T1}, s{S_T1}, 6")
    a(f"s_add_u32 s{S_T1}, s{S_T1}, s{S_STEP}")
    a(f"s_lshl_b32 s{S_T1}, s{S_T1}, 8")
    a(f"s_add_u32 s{S_T1}, s{S_T1}, {hex(WS_TS2)}")
    a(f"buffer_store_dword v{T + 1}, v{V_FL}, {sr(S_WS, 4)}, s{S_T1} offen")

SCALE_LOG2E = 128 ** -0.5 * 1.4426950408889634


def f32hex(x):
    import struct
    return hex(struct.unpack('<I', struct.pack('<f', x))[0])


def placement():
    pl = {}
    res = []
    for mat in 'qkv':
        for J in range(8):
            for c in range(2):
                p = 2 * J + c
                if mat == 'q' and p < 5:
                    pl[(mat, c, J)] = ('lds', p)
                elif mat == 'q' and p >= 12:
                    pl[(mat, c, J)] = ('lds', p - 7)
                else:
                    res.append((mat, c, J))
    for k in range(4):
        for j in range(4):
            if k >= 2:
                pl[('o', k, j)] = ('lds', 9 + 2 * j + k - 2)
            else:
                res.append(('o', k, j))
    assert len(res) == 47
    for i, f in enumerate(res):
        pl[f] = ('reg', RES0 + 8 * i if i < 15 else 256 + 8 * (i - 15))
    return pl


PL = placement()


def mu(i):
    return 2 * (i >> 2) + (i & 1)


def half(i):
    return (i >> 1) & 1


def consts(a, vtid, sel=A, cuts=None):
    t0, t1, st = T, T + 1, S_T0

    def F(dst, f):
        if cuts is not None:
            cuts.append(len(a.items))
        lanefn(a, dst, lambda t: f(t & 63, t >> 6), vtid, t0, t1, st)

    n = lambda l: l & 15
    g = lambda l: l >> 4
    F(V_IDX, lambda l, w: 0xEEEE if half(n(l)) else 0x4444)
    assert L_M == 0
    F(V_MP, lambda l, w: w * 2048 + g(l) * 256 + mu(n(l)) * 32 + half(n(l)) * 16)
    for p, r in enumerate(V_MQ):
        a(f"v_xor_b32 v{r}, {hex((p + 1) << 11)}, v{V_MP}")
    F(V_W, lambda l, w: L_W + w * WSTRIDE + l * 16)
    F(V_QKW, lambda l, w: L_QK + 2 * g(l) * QKROW + 64 * w + 4 * n(l))
    a(f"v_add_u32 v{V_OW}, {L_O - L_QK}, v{V_QKW}")
    F(V_QB, lambda l, w: L_QK + mu(n(l)) * QKROW + g(l) * 16)

    def kx(l, Tt):
        rho = n(l)
        tok = 16 * (rho >> 3) + 8 * Tt + (rho & 7)
        slot = (g(l) & 1) * 32 + tok
        slot ^= ((slot >> 4) & 1) << 3
        return L_KX + (g(l) >> 1) * 1024 + slot * 16

    F(V_KX0, lambda l, w: kx(l, 0))
    F(V_KX1, lambda l, w: kx(l, 1))
    F(V_KXG, lambda l, w: w * 2048 + (l ^ (((l >> 4) & 1) << 3)) * 16)
    F(V_VXG, lambda l, w: (w >> 1) * 4096 + (g(l) >> 1) * 1024 + (g(l) & 1) * 512 + (w & 1) * 256 + n(l) * 16)
    assert OPT['pf'] == 'none'
    F(V_PS, lambda l, w: (n(l) >> 3) * 8192 + g(l) * 2048 + (n(l) & 7) * 8)
    piece = lambda l: 2 * (l & 1) + ((l >> 1) & 1)
    F(V_MS, lambda l, w: ((2 * w + (g(l) & 1)) * 32 + (2 * piece(l) + (g(l) >> 1)) * 4) if (l & 12) == 0 else OOB)
    if OPT['pub'] == 'late':
        F(V_VSW, lambda l, w: L_QK + (n(l) >> 2) * QKROW + 64 * w + (n(l) & 3) * 16 + g(l) * 4)
        F(V_PUBL, lambda l, w: (L_K if l < 32 else L_QK) + ((l >> 2) & 7) * QKROW + 64 * w + (l & 3) * 16)
        F(V_PUBG, lambda l, w: (l >> 2) * 256 + 64 * w + (l & 3) * 16 if l < 32 else
          WS_VM - WS_KM + ((w >> 1) * 64 + ((l >> 4) & 1) * 32 + 16 * (w & 1) + n(l)) * 16)
    else:
        F(V_KMP, lambda l, w: 2 * g(l) * 256 + 64 * w + 4 * n(l))
        F(V_VMP, lambda l, w: ((w >> 1) * 64 + 16 * (w & 1) + n(l)) * 16 + g(l) * 4)
    a(f"v_and_b32 v{T}, 63, v{vtid}")
    a(f"v_lshlrev_b32 v{V_FL}, 2, v{T}")
    for d in range(4):
        F(sel + d, lambda l, w: (0x3f800000 if mu(n(l)) & 1 else 0x3f80) if (mu(n(l)) >> 1) == d else 0)
    a(f"ds_write_b128 v{V_QB}, {vr(sel, 4)} offset:256")


def dest_frag4(a, frag, rbh, tmp):
    kind, where = PL[frag]
    if kind == 'reg' and where < 256:
        base = where + 4 * rbh
        return [base + i for i in range(4)], []
    regs = [tmp + i for i in range(4)]
    if kind == 'reg':
        fin = [f"v_accvgpr_write_b32 a{where - 256 + 4 * rbh + i}, v{tmp + i}" for i in range(4)]
    else:
        fin = [f"ds_write_b128 v{V_W}, {vr(tmp, 4)} offset:{where * 2048 + rbh * 1024}"]
    return regs, fin


L_RING, L_TMP, L_M0, L_WQ, L_WO, L_TID, L_DBG = 72, 104, 96, 112, 113, 114, 92
S_OK = 85


def load_weights(a, vtid, stamps=False, hooks=None, jx=0):
    vWQ, vWO = (L_WQ, L_WO) if hooks else (V_KX0, V_KX1)
    t0, t1, st = T, T + 1, S_T0
    n = lambda l: l & 15
    gb = lambda l: l >> 4
    lrow = lambda l: 16 * (gb(l) >> 1) + 4 * (gb(l) & 1)
    lanefn(a, vWQ, lambda t: lrow(t & 63) * 8192 + 64 * (t >> 6) + 4 * n(t & 63), vtid, t0, t1, st)
    lrow_o = lambda l: 8 * (gb(l) >> 1) + 4 * (gb(l) & 1)
    lanefn(a, vWO, lambda t: lrow_o(t & 63) * 1024 + 64 * (t >> 6) + 4 * n(t & 63), vtid, t0, t1, st)
    lanefn(a, V_W, lambda t: L_W + (t >> 6) * WSTRIDE + (t & 63) * 16, vtid, t0, t1, st)
    sHq, sHo, so = 86, 87, 88
    a(f"s_lshl_b32 s{sHq}, s{S_H}, 8")
    if OPT['lxor']:
        a(f"s_lshl_b32 s{sHo}, s{S_WAVE}, 20")
        a(f"s_or_b32 s{sHq}, s{sHq}, s{sHo}")
    a(f"s_lshl_b32 s{sHo}, s{S_H}, 17")
    srd = {'q': S_WQ, 'k': S_WK, 'v': S_WV}
    groups = []
    for mat in OPT['lmat']:
        for J in ((0, 2, 1, 3, 4, 6, 5, 7) if OPT['lord'] else range(8)):
            for rbh in range(2):
                groups.append(('qkv', mat, J ^ jx, rbh))
    for k, j in ([(k, j) for j in range(4) for k in range(4)] if OPT['lwo'] else
                 [(k, j) for k in range(4) for j in range(4)]):
        groups.append(('o', k, j, None))
    if OPT['ofirst']:
        groups = groups[48:] + groups[:48]
    if OPT['lfake']:
        pat = OPT['lfake'][0]
        mod = {'': '', 'n': ' nt', 's': ' sc1'}[OPT['lfake'][1:]]
        if pat == 'A':
            lanefn(a, vWQ, lambda t: ((t & 63) >> 2) * 8192 + (t & 3) * 16 + 64 * (t >> 6), vtid, t0, t1, st)
            lanefn(a, vWO, lambda t: ((t & 63) >> 2) * 1024 + (t & 3) * 16 + 64 * (t >> 6), vtid, t0, t1, st)
        else:
            lanefn(a, vWQ, lambda t: ((t & 63) >> 4) * 8192 + (t & 15) * 16 + 4 * 8192 * (t >> 6), vtid, t0, t1, st)
            lanefn(a, vWO, lambda t: (t & 63) * 16 + 1024 * (t >> 6), vtid, t0, t1, st)
            a(f"s_lshl_b32 s{sHq}, s{S_H}, 8")
        a(f"s_mul_i32 s{S_T1}, s{S_WAVE}, {WSTRIDE}")
        a(f"s_add_u32 s{S_T1}, s{S_T1}, {L_W}")
        cnt = 0
        for gi, (kind, mat, J, rbh) in enumerate(groups):
            for i in range(2):
                if kind == 'qkv':
                    row = 64 * J + 32 * rbh + 16 * i
                    a(f"s_xor_b32 s{so}, s{sHq}, {hex(row * 8192)}")
                    src = f"v{vWQ}, {sr(srd[mat], 4)}"
                elif pat == 'A':
                    a(f"s_add_u32 s{so}, s{sHo}, {hex((32 * J + 16 * i) * 1024 + 256 * mat)}")
                    src = f"v{vWO}, {sr(S_WO, 4)}"
                else:
                    a(f"s_add_u32 s{so}, s{sHo}, {hex((8 * (4 * mat + J) + 4 * i) * 1024)}")
                    src = f"v{vWO}, {sr(S_WO, 4)}"
                a(f"s_add_u32 m0, s{S_T1}, {(cnt % 32) * 1024}")
                a(f"buffer_load_dwordx4 {src}, s{so} offen" + mod + " lds")
                cnt += 1
                if cnt > OPT['lfl'] and not OPT['lfb']:
                    a(f"s_waitcnt vmcnt({OPT['lfl']})")
            if OPT['lfb'] and cnt > OPT['lfl']:
                a(f"s_waitcnt vmcnt({OPT['lfl']})")
                a("s_barrier")
                for i in range(OPT['lfb'] - 1):
                    a("s_nop 15")
            if hooks and gi in hooks:
                hooks[gi]()
        a("s_waitcnt vmcnt(0)")
        return
    ring0, ringn = A, (L_RING if hooks else OPT['lring'])
    nt = {0: '', 1: ' nt', 2: ' sc1', 3: ' sc0'}[OPT['lnt']]
    tmps = [L_TMP, L_TMP + 4] if hooks else [VX, VX + 4]
    state = dict(head=0, tmp=0)
    pend = deque()

    def issue(gp, base):
        kind, mat, J, rbh = gp
        for i in range(4):
            for b in range(2):
                if kind == 'qkv':
                    rb = 4 * rbh + i
                    row = 64 * J + 32 * (rb >> 2) + 8 * (rb & 1) + 2 * ((rb >> 1) & 1) + b
                    a(f"s_xor_b32 s{so}, s{sHq}, {hex(row * 8192)}")
                    a(f"buffer_load_dword v{base + 2 * i + b}, v{vWQ}, {sr(srd[mat], 4)}, s{so} offen" + nt)
                else:
                    row = 32 * J + 16 * (i >> 1) + 2 * (i & 1) + b
                    a(f"s_add_u32 s{so}, s{sHo}, {hex(row * 1024 + 256 * mat)}")
                    a(f"buffer_load_dword v{base + 2 * i + b}, v{vWO}, {sr(S_WO, 4)}, s{so} offen" + nt)

    def process(gp, base):
        kind, mat, J, rbh = gp
        if OPT['lnop']:
            a(f"v_mov_b32 v{VX}, v{base + 7}")
            return
        for c in range(2):
            tmp = tmps[state['tmp']]
            state['tmp'] ^= 1
            if kind == 'qkv':
                regs, fin = dest_frag4(a, (mat, c, J), rbh, tmp)
                for i in range(4):
                    a(f"v_perm_b32 v{regs[i]}, v{base + 2 * i + 1}, v{base + 2 * i}, s{S_SELHI if c else S_SELLO}")
            else:
                regs, fin = dest_frag4(a, ('o', mat, J), c, tmp)
                for x in range(4):
                    i = 2 * c + (x >> 1)
                    a(f"v_perm_b32 v{regs[x]}, v{base + 2 * i + 1}, v{base + 2 * i}, s{S_SELHI if x & 1 else S_SELLO}")
            for x in fin:
                a(x)

    def fits(base, size):
        for _, b, s in pend:
            if base < b + s and b < base + size:
                return False
        return True

    for gi, gp in enumerate(groups):
        size = 8
        while True:
            base = state['head']
            if base + size > ringn:
                base = 0
            if fits(base, size) and 8 * len(pend) + 8 <= OPT['lmax']:
                break
            g0, b0, _ = pend.popleft()
            process(g0, ring0 + b0)
            if g0[0] == 'qkv' and g0[2:] == (7 ^ jx, 1):
                stamp(a, 5 + 'qkv'.index(g0[1]), stamps)
        issue(gp, ring0 + base)
        pend.append((gp, base, size))
        state['head'] = base + size
        if hooks and gi in hooks:
            hooks[gi]()
    while pend:
        g0, b0, _ = pend.popleft()
        process(g0, ring0 + b0)


L_SEL = 116
L_RD, L_HELD = 68, 36
NLOW = 2


def stage_base(s_, ns):
    if s_ < ns - NLOW:
        assert ns - NLOW <= 4
        return L_W + s_ * WSTRIDE + (NLF - 4) * 2048
    return (L_KX, L_M)[s_ - (ns - NLOW)]


def load_weights2(a, vtid, stamps, hooks, wv):
    vWQ, vWO = L_WQ, L_WO
    t0, t1, st = T, T + 1, S_T0
    n = lambda l: l & 15
    gb = lambda l: l >> 4
    lrow = lambda l: 16 * (gb(l) >> 1) + 4 * (gb(l) & 1)
    lrow_o = lambda l: 8 * (gb(l) >> 1) + 4 * (gb(l) & 1)
    NS = OPT['lns']
    mod = {0: '', 1: ' nt'}[OPT['lsn']]
    sHq, sHo, so = 86, 87, 88
    srd = {'q': S_WQ, 'k': S_WK, 'v': S_WV}
    groups = [('qkv', mat, B, rbh) for mat in OPT['lmat'] for B in range(8) for rbh in range(2)]
    groups += [('o', k, j, None) for j in range(4) for k in range(4)]
    NG = len(groups)
    lanefn(a, vWQ, lambda t: lrow(t & 63) * 8192 + (n(t) ^ (4 * gb(t & 63))) * 16, vtid, t0, t1, st, 6)
    lanefn(a, vWO, lambda t: lrow_o(t & 63) * 1024 + (n(t) ^ (4 * gb(t & 63))) * 16, vtid, t0, t1, st, 6)
    a(f"s_lshl_b32 s{sHq}, s{S_H}, 8")
    a(f"s_add_u32 s{sHq}, s{sHq}, {hex((8 * (wv & 1) + 2 * (wv >> 1)) * 8192)}")
    a(f"s_lshl_b32 s{sHo}, s{S_H}, 17")
    a(f"s_add_u32 s{sHo}, s{sHo}, {hex((16 * (wv >> 1) + 2 * (wv & 1)) * 1024)}")

    def issue(g):
        kind, mat, J, rbh = groups[g]
        base = stage_base(g % NS, NS) + 2048 * wv
        for b in range(2):
            a(f"s_mov_b32 m0, {hex(base + 1024 * b)}")
            if kind == 'qkv':
                a(f"s_add_u32 s{so}, s{sHq}, {hex((64 * J + 32 * rbh + b) * 8192)}")
                src = f"v{vWQ}, {sr(srd[mat], 4)}"
            else:
                a(f"s_add_u32 s{so}, s{sHo}, {hex((32 * J + b) * 1024 + 256 * mat)}")
                src = f"v{vWO}, {sr(S_WO, 4)}"
            a(f"buffer_load_dwordx4 {src}, s{so} offen{mod} lds", tag=f"stg{g % NS}")

    for g in range(NS - 1):
        issue(g)
    lanefn(a, V_W, lambda t: L_W + wv * WSTRIDE + (t & 63) * 16, vtid, t0, t1, st, 6)
    lanefn(a, L_RD, lambda t: gb(t & 63) * 256 + 64 * (wv ^ gb(t & 63)) + 4 * n(t), vtid, t0, t1, st, 6)
    for i in (1, 2):
        a(f"v_add_u32 v{L_RD + i}, {hex(i * 65536)}, v{L_RD}")
    ring = [A, A + 8]
    tmps = [L_TMP, L_TMP + 4]
    state = dict(tmp=0)
    first_held = NLF - 4
    held = {}

    def dest(frag, half_):
        kind, where = PL[frag]
        if kind == 'lds' and where >= first_held:
            base = L_HELD + 8 * (where - first_held) + 4 * half_
            held[(where, half_)] = base
            return [base + i for i in range(4)], []
        tmp = tmps[state['tmp']]
        state['tmp'] ^= 1
        return dest_frag4(a, frag, half_, tmp)

    def process(g):
        kind, mat, B, rbh = groups[g]
        base = ring[g & 1]
        for c in range(2):
            if kind == 'qkv':
                regs, fin = dest((mat, c, B ^ (2 * wv)), rbh)
                for i in range(4):
                    a(f"v_perm_b32 v{regs[i]}, v{base + 2 * i + 1}, v{base + 2 * i}, s{S_SELHI if c else S_SELLO}")
            else:
                regs, fin = dest(('o', mat, B), c)
                for x in range(4):
                    i = 2 * c + (x >> 1)
                    a(f"v_perm_b32 v{regs[x]}, v{base + 2 * i + 1}, v{base + 2 * i}, s{S_SELHI if x & 1 else S_SELLO}")
            for x in fin:
                a(x)
        if kind == 'qkv' and (B, rbh) == (7, 1):
            stamp(a, 5 + 'qkv'.index(mat), stamps)

    for g in range(NG):
        a.need(f"stg{g % NS}")
        a("s_waitcnt lgkmcnt(0)")
        a("s_barrier")
        if g + NS - 1 < NG:
            issue(g + NS - 1)
        base = stage_base(g % NS, NS)
        for e in range(8):
            off = base + 1024 * e
            a(f"ds_read_b32 v{ring[g & 1] + e}, v{L_RD + (off >> 16)} offset:{off & 0xffff}")
        if g:
            process(g - 1)
        if g in hooks:
            hooks[g]()
    process(NG - 1)
    a("s_waitcnt lgkmcnt(0)")
    a("s_barrier")
    for (where, half_), base in sorted(held.items()):
        a(f"ds_write_b128 v{V_W}, {vr(base, 4)} offset:{where * 2048 + half_ * 1024}")


def load_weights3(a, vtid, stamps, hooks):
    vD, vWO = L_WQ, L_WO
    t0, t1, st = T, T + 1, S_T0
    n = lambda l: l & 15
    gb = lambda l: l >> 4
    lrow = lambda l: 16 * (gb(l) >> 1) + 4 * (gb(l) & 1)
    lrow_o = lambda l: 8 * (gb(l) >> 1) + 4 * (gb(l) & 1)
    NS = 5
    mod = {0: '', 1: ' nt'}[OPT['lsn']]
    modo = {0: '', 1: ' nt'}[OPT['lso']]
    sOff, sD, sP, so, sR, sHq, sHo = 86, 88, 93, 94, 96, 23, 81
    sTmp = sR + NS
    GS, PS = 32 * 8192, 8192 - 1024
    srd = {'q': S_WQ, 'k': S_WK, 'v': S_WV}
    mats = OPT['lmat']
    base = [L_W + i * WSTRIDE + (NLF - 4) * 2048 for i in range(4)] + [L_M]
    lanefn(a, vWO, lambda t: lrow_o(t & 63) * 1024 + (n(t) ^ (4 * gb(t & 63))) * 16, vtid, t0, t1, st, 6)
    a(f"s_and_b32 s{so}, s{S_WAVE}, 1")
    a(f"s_lshr_b32 s{sTmp}, s{S_WAVE}, 1")
    a(f"s_lshl_b32 s{sHq}, s{so}, 16")
    a(f"s_lshl_b32 s{sHo}, s{so}, 11")
    a(f"s_lshl_b32 s{sTmp}, s{sTmp}, 14")
    a(f"s_or_b32 s{sHq}, s{sHq}, s{sTmp}")
    a(f"s_or_b32 s{sHo}, s{sHo}, s{sTmp}")
    a(f"s_lshl_b32 s{so}, s{S_H}, 8")
    a(f"s_or_b32 s{sHq}, s{sHq}, s{so}")
    a(f"s_lshl_b32 s{so}, s{S_H}, 17")
    a(f"s_or_b32 s{sHo}, s{sHo}, s{so}")
    a(f"s_lshl_b32 s{so}, s{S_WAVE}, 11")
    for i in range(NS):
        a(f"s_add_u32 s{sR + i}, s{so}, {hex(base[i])}")

    def issue_o(g):
        k, j = g & 3, g >> 2
        a(f"s_mov_b32 m0, s{sR + g % NS}")
        a(f"s_add_u32 s{so}, s{sHo}, {hex(32 * j * 1024 + 256 * k)}")
        a(f"buffer_load_dwordx4 v{vWO}, {sr(S_WO, 4)}, s{so} offen{modo} lds")
        a(f"buffer_load_dwordx4 v{vWO}, {sr(S_WO, 4)}, s{so} offen offset:1024{modo} lds")

    def stream(m):
        if m < 3:
            src = srd[mats[m]]
            a(f"s_mov_b64 {sr(sD, 2)}, {sr(src, 2)}")
            a(f"s_mov_b64 {sr(sD + 2, 2)}, {sr(src + 2, 2)}")
        else:
            a(f"s_mov_b32 s{sD + 2}, 0")
        a(f"s_mov_b32 s{sOff}, s{sHq}")

    def issue_dyn(r):
        a(f"s_mov_b32 m0, s{sR + r}")
        a(f"s_add_u32 s{so}, s{sOff}, {PS}")
        a(f"buffer_load_dwordx4 v{vD}, {sr(sD, 4)}, s{sOff} offen{mod} lds")
        a(f"buffer_load_dwordx4 v{vD}, {sr(sD, 4)}, s{so} offen offset:1024{mod} lds")
        a(f"s_add_u32 s{sOff}, s{sOff}, {hex(GS)}")

    for g in range(NS - 1):
        issue_o(g)
    lanefn(a, vD, lambda t: lrow(t & 63) * 8192 + (n(t) ^ (4 * gb(t & 63))) * 16, vtid, t0, t1, st, 6)
    lanefn(a, V_W, lambda t: L_W + (t >> 6) * WSTRIDE + (t & 63) * 16, vtid, t0, t1, st)
    lanefn(a, L_RD, lambda t: gb(t & 63) * 256 + 64 * ((t >> 6) ^ gb(t & 63)) + 4 * n(t) - 2048 * (t >> 6),
           vtid, t0, t1, st)
    stream(0)
    pieces = list(hooks.get('pieces', []))
    if 'setup' in hooks:
        hooks['setup']()
    for i in range(min(OPT['lsq'], len(pieces))):
        pieces.pop(0)()
    vA = L_RD + 1
    ring = [A, A + 8]
    tmps = [L_TMP, L_TMP + 4]
    state = dict(tmp=0)
    first_held = NLF - 4
    held = {}

    def dest(frag, half_):
        kind, where = PL[frag]
        if kind == 'lds' and where >= first_held:
            b_ = L_HELD + 8 * (where - first_held) + 4 * half_
            held[(where, half_)] = b_
            return [b_ + i for i in range(4)], []
        tmp = tmps[state['tmp']]
        state['tmp'] ^= 1
        return dest_frag4(a, frag, half_, tmp)

    def process(kind, mat, J, rbh, base_):
        for c in range(2):
            if kind == 'qkv':
                regs, fin = dest((mat, c, J), rbh)
                for i in range(4):
                    a(f"v_perm_b32 v{regs[i]}, v{base_ + 2 * i + 1}, v{base_ + 2 * i}, s{S_SELHI if c else S_SELLO}")
            else:
                regs, fin = dest(('o', mat, J), c)
                for x in range(4):
                    i = 2 * c + (x >> 1)
                    a(f"v_perm_b32 v{regs[x]}, v{base_ + 2 * i + 1}, v{base_ + 2 * i}, "
                      f"s{S_SELHI if x & 1 else S_SELLO}")
            for x in fin:
                a(x)

    def arrive():
        a(f"s_waitcnt vmcnt({2 * (NS - 2)}) lgkmcnt(0)")
        a("s_barrier")

    def reads(r, dst):
        a(f"v_add_u32 v{vA}, s{sR + r}, v{L_RD}")
        for e in range(0, 8, 2):
            a(f"ds_read2st64_b32 {vr(dst + e, 2)}, v{vA} offset0:{4 * e} offset1:{4 * e + 4}")

    og = lambda g: ('o', g & 3, g >> 2, None)
    for g in range(16):
        arrive()
        if g + NS - 1 < 16:
            issue_o(g + NS - 1)
        else:
            issue_dyn((g + NS - 1) % NS)
        reads(g % NS, ring[g & 1])
        if g:
            process(*og(g - 1), ring[(g - 1) & 1])
        if pieces:
            pieces.pop(0)()
        if g == OPT['lfp'] and not hooks.get('late_flush'):
            hooks['flush']()
    assert not pieces
    process(*og(15), ring[1])
    stamp(a, 10, stamps)

    def rotate(k):
        k %= NS
        if k == 0:
            return
        i = 0
        a(f"s_mov_b32 s{sTmp}, s{sR}")
        while (i + k) % NS != 0:
            a(f"s_mov_b32 s{sR + i}, s{sR + (i + k) % NS}")
            i = (i + k) % NS
        a(f"s_mov_b32 s{sR + i}, s{sTmp}")

    rotate(16)
    for m, mat in enumerate(mats):
        top, nxt, keep = a.newlabel("lw_top"), a.newlabel("lw_next"), a.newlabel("lw_keep")
        chunk = [a.newlabel("lw_c") for c in range(4)]
        a(f"s_mov_b32 s{sP}, 0")
        a.label(top)
        if m < 2 or not OPT['ltk']:
            a(f"s_cmp_lg_u32 s{sP}, 3")
            a(f"s_cbranch_scc1 {keep}")
            stream(m + 1)
            a.label(keep)
        if m == 2:
            hooked = a.newlabel("lw_hooked")
            for pp in range(4):
                if pp in hooks:
                    skip = a.newlabel("lw_nohook")
                    a(f"s_cmp_lg_u32 s{sP}, {pp}")
                    a(f"s_cbranch_scc1 {skip}")
                    hooks[pp]()
                    a(f"s_branch {hooked}")
                    a.label(skip)
            a.label(hooked)
        a(f"s_xor_b32 s{so}, s{sP}, s{S_WAVE}")
        for c in range(1, 4):
            a(f"s_cmp_eq_u32 s{so}, {c}")
            a(f"s_cbranch_scc1 {chunk[c]}")
        for c in range(4):
            a.label(chunk[c])
            for t in range(4):
                if m == 2 and OPT['ltk']:
                    assert 3 in hooks and 4 not in hooks
                    last, join = a.newlabel("lw_last"), a.newlabel("lw_join")
                    a(f"s_cmp_eq_u32 s{sP}, 3")
                    a(f"s_cbranch_scc1 {last}")
                    arrive()
                    issue_dyn((t + NS - 1) % NS)
                    a(f"s_branch {join}")
                    a.label(last)
                    a(f"s_waitcnt vmcnt({4 + 2 * (3 - t)}) lgkmcnt(0)")
                    a("s_barrier")
                    a.label(join)
                else:
                    arrive()
                    issue_dyn((t + NS - 1) % NS)
                reads(t, ring[t & 1])
                if t:
                    process('qkv', mat, 2 * c + ((t - 1) >> 1), (t - 1) & 1, ring[(t - 1) & 1])
            process('qkv', mat, 2 * c + 1, 1, ring[1])
            if c < 3:
                a(f"s_branch {nxt}")
        a.label(nxt)
        rotate(4)
        a(f"s_add_u32 s{sP}, s{sP}, 1")
        a(f"s_cmp_lt_u32 s{sP}, 4")
        a(f"s_cbranch_scc1 {top}")
        stamp(a, 5 + 'qkv'.index(mat), stamps)
    if 4 in hooks:
        hooks[4]()
    if OPT['ltk']:
        a("s_waitcnt lgkmcnt(0)")
    else:
        a(f"s_waitcnt vmcnt({4 if 4 in hooks else 0}) lgkmcnt(0)")
    a("s_barrier")
    for (where, half_), b_ in sorted(held.items()):
        a(f"ds_write_b128 v{V_W}, {vr(b_, 4)} offset:{where * 2048 + half_ * 1024}")


def load_mem0(a, vtid, dst=ACC + 24, va=V_OA):
    t0, t1, st = T, T + 1, S_T0
    lanefn(a, va, lambda t: mu(t & 15) * 1024 + 32 * (8 * (t >> 6) + ((t & 63) >> 4)) + 16 * half(t & 15),
           vtid, t0, t1, st)
    for i in range(2):
        a(f"buffer_load_dwordx4 {vr(dst + 4 * i, 4)}, v{va}, {sr(S_M0, 4)}, 0 offen offset:{128 * i}")


def frag_b(frag, ldsreg):
    kind, where = PL[frag]
    if kind == 'reg':
        return ur(where, 8)
    return vr(ldsreg[frag], 8)


def smf(d, areg, b):
    return f"v_smfmac_f32_16x16x64_bf16 {vr(d, 4)}, {vr(areg, 4)}, {b}, v{V_IDX}"


def ldsfrag_reads(slot, reg):
    return [f"ds_read_b128 {vr(reg, 4)}, v{V_W} offset:{slot * 2048}",
            f"ds_read_b128 {vr(reg + 4, 4)}, v{V_W} offset:{slot * 2048 + 1024}"]


def xy_adds(acc):
    return [f"v_add_f32 v{acc}, v{acc}, v{acc + 2}", f"v_add_f32 v{acc + 4}, v{acc + 4}, v{acc + 6}",
            f"v_add_f32 v{acc + 1}, v{acc + 1}, v{acc + 3}", f"v_add_f32 v{acc + 5}, v{acc + 5}, v{acc + 7}"]


def retry_tail(a, top, out):
    a(f"s_cmp_eq_u32 s{S_RETRY}, 0")
    a(f"s_cbranch_scc1 {out}")
    a(f"s_sub_u32 s{S_RETRY}, s{S_RETRY}, 1")
    a(f"s_branch {top}")


def phase_w(a):
    for i in range(5):
        for x in ldsfrag_reads(i, R + 8 * i):
            a(x)
    for i in range(0, 24, 2):
        a(f"v_mov_b64 {vr(ACC + i, 2)}, 0")


def spin(a, stem, issue, check, depth, masked, sleep=0, also='', shadow=None, first=False):
    top, out = spin_label_pair(a, stem)
    expired, wait = a.newlabel(stem + "_expired"), a.newlabel(stem + "_wait")
    if shadow:
        for chunk in (shadow if isinstance(shadow, list) else [shadow]):
            issue()
            chunk()
        if first:
            a(f"s_branch {wait}")
    a.label(top)
    if masked:
        a("s_mov_b64 exec, vcc")
    issue()
    if masked:
        a("s_mov_b64 exec, -1")
    if sleep:
        a(f"s_sleep {sleep}")
    a(f"s_sub_u32 s{S_RETRY}, s{S_RETRY}, 1")
    a(f"s_cbranch_scc1 {expired}")
    a.label(wait)
    a(f"s_waitcnt vmcnt({2 * (depth - 1)}){also}")
    check()
    a(f"s_cbranch_vccnz {top}", nowait=True)
    a(f"s_branch {out}")
    a.label(expired)
    a(f"s_mov_b32 s{S_RETRY}, 0")
    a(f"s_waitcnt vmcnt(0){also}")
    a.label(out)


def q_prefetch():
    pre = []
    for i in range(5):
        pre += ldsfrag_reads(i, R + 8 * i)
    return pre


def poll_m(a):
    P8 = ACC + 24
    reads = q_prefetch() if OPT['qpf'] == 'm' else []
    if OPT['noex']:
        for x in reads:
            a(x)
        a.clear(vr(A, 8))
        return
    cnt_begin(a, 101)

    def issue_():
        a(f"buffer_load_dwordx4 {vr(P8, 4)}, v{V_MP}, {sr(S_WS, 4)}, s{S_MOFF} offen sc1", nowait=True)
        a(f"buffer_load_dwordx4 {vr(P8 + 4, 4)}, v{V_MP}, {sr(S_WS, 4)}, s{S_MOFF} offen offset:1024 sc1", nowait=True)

    def check_():
        a(f"v_max3_u32 v{T + 1}, v{P8}, v{P8 + 1}, v{P8 + 2}", nowait=True)
        a(f"v_max3_u32 v{T + 2}, v{P8 + 3}, v{P8 + 4}, v{P8 + 5}", nowait=True)
        a(f"v_max3_u32 v{T + 1}, v{T + 1}, v{P8 + 6}, v{P8 + 7}", nowait=True)
        a(f"v_max_u32 v{T + 1}, v{T + 1}, v{T + 2}")
        a(f"v_cmp_eq_u32 vcc, -1, v{T + 1}")

    if OPT['mmask']:
        a("s_mov_b64 vcc, -1")

    def chunks(lst, n, nops):
        out = []
        for i in range(n):
            part = lst[len(lst) * i // n:len(lst) * (i + 1) // n]
            out.append(lambda part=part: [a(x) for x in part + ["s_nop 3"] * nops])
        return out

    done = a.newlabel("pm_done")
    if OPT['mfast']:
        fast = a.newlabel("pm_fast")
        a(f"s_cmp_ge_u32 s{S_WAVE}, {OPT['mfast']}")
        a(f"s_cbranch_scc1 {fast}")
        for x in reads:
            a(x)
        if OPT['mslowack']:
            a("s_waitcnt vmcnt(0)")
        spin(a, "pms", issue_, check_, OPT['mslow'], OPT['mmask'])
        a(f"s_branch {done}")
        a.label(fast)
    pre, mid = reads[:OPT['mpre']], reads[OPT['mpre']:]
    for x in pre:
        a(x)
    if not OPT['mpeel']:
        for x in mid + ["s_nop 3"] * OPT['mgapn']:
            a(x)
    if OPT['mfastack'] >= 0:
        now = a.newlabel("pm_now")
        a(f"s_cmp_gt_u32 s{S_CLS}, {OPT['mfastack']}")
        a(f"s_cbranch_scc1 {now}")
        a("s_waitcnt vmcnt(0)")
        a.label(now)
    if OPT['mdly']:
        now = a.newlabel("pm_dly")
        for c in range(3):
            a(f"s_cmp_gt_u32 s{S_CLS}, {c}")
            a(f"s_cbranch_scc1 {now}")
            for i in range(OPT['mdly']):
                a("s_nop 3")
        a.label(now)
    spin(a, "pmf", issue_, check_, OPT['mdepth'], OPT['mmask'], OPT['msleep'],
         shadow=chunks(mid, OPT['mpeel'], OPT['mgapn']) if OPT['mpeel'] else None)
    a.label(done)
    cnt_end(a, 101)
    pt(a, 'mp')
    a.clear(vr(A, 8))


def kv_flag_check(a, use_flags):
    if not use_flags:
        return
    top, out = spin_label_pair(a, "kvf")
    a(f"s_add_u32 s{S_T1}, s{S_STEP}, 1")
    a.label(top)
    a(f"v_cmp_le_u32 vcc, 4, v{T}")
    a(f"s_bitcmp1_b64 vcc, s{S_T1}")
    a(f"s_cbranch_scc1 {out}")
    a(f"buffer_load_dword v{T}, v{V_FL}, {sr(S_WS, 4)}, s{S_FLKV} offen sc1")
    a("s_waitcnt vmcnt(0)")
    retry_tail(a, top, out)
    a.label(out)


def put(fills, pos, *ins):
    fills.setdefault(pos, []).extend(ins)


def flag_store():
    val = S_FLV if OPT['pub'] == 'late' else S_STEP
    st = f"buffer_store_dword v{T + 2}, off, {sr(S_WS, 4)}, s{S_FLMEM} sc1"
    if OPT['flag'] == 'one':
        return [f"v_mov_b32 v{T + 2}, s{val}", f"s_mov_b64 exec, {sr(S_FLEX, 2)}", st, "s_mov_b64 exec, -1"]
    return [f"v_mov_b32 v{T + 2}, s{val}", st]


def kxg_loads():
    return [f"s_mov_b32 m0, s{S_M0KX}",
            f"buffer_load_dwordx4 v{V_KXG}, {sr(S_WS, 4)}, s{S_KFO} offen sc1 lds",
            f"buffer_load_dwordx4 v{V_KXG}, {sr(S_WS, 4)}, s{S_KFO} offen offset:1024 sc1 lds"]


def vx_loads():
    return [f"buffer_load_dwordx4 {vr(VX, 4)}, v{V_VXG}, {sr(S_WS, 4)}, s{S_VFO} offen sc1",
            f"buffer_load_dwordx4 {vr(VX + 4, 4)}, v{V_VXG}, {sr(S_WS, 4)}, s{S_VFO} offen offset:2048 sc1"]


def step(a, st_mod, use_flags, last=False):
    qa, ka, va = ACC, ACC + 8, ACC + 16
    late = OPT['pub'] == 'late'
    nopub = abl('pub')
    P8 = ACC + 24
    areg = lambda J: P8 + 4 * J if J < 2 else A + 4 * J
    ldsreg = {}
    for p in range(5):
        ldsreg[('q', p & 1, p >> 1)] = R + 8 * p
    for p in range(12, 16):
        ldsreg[('q', p & 1, p >> 1)] = R + 8 * (p - 12)

    PUB = A
    pub_read = f"ds_read_b128 {vr(PUB, 4)}, v{V_PUBL}"

    def pub_store(so):
        return f"buffer_store_dwordx4 {vr(PUB, 4)}, v{V_PUBG}, {sr(S_WS, 4)}, s{so} offen sc1"

    stage_v = f"ds_write2st64_b32 v{V_VSW}, v{va}, v{va + 4} offset0:0 offset1:5"
    pub_min = [f"v_min_u32 v{PUB + i}, -2, v{PUB + i}" for i in range(4)] if OPT['dpoll'] else []

    acc = {'q': qa, 'k': ka, 'v': va}
    mats = 'kv' if last else 'qkv'
    early = [m for m in str(OPT['o1']) if m in mats]
    assert last or not early or early[0] == 'q'
    seq = [(m, p) for m in early for p in range(4)]
    nb = 4 if early else 0
    first = {}
    for m in mats:
        first[m] = len(seq)
        seq += [(m, p) for p in range(4 if m in early else 0, 16)]
    main = [('@nv ' if p < 4 else '') + smf(acc[m] + 4 * (p & 1), areg(p >> 1), frag_b((m, p & 1, p >> 1), ldsreg))
            for m, p in seq]
    areads = [f"ds_read_b128 {vr(A + 4 * J, 4)}, v{V_MQ[(J >> 1) - 1]} offset:{(J & 1) * 1024}" for J in range(2, 8)]
    fl = {}
    wm = [f"@nv ds_write_b128 v{V_MP}, {vr(P8 + 4 * i, 4)} offset:{L_M + 1024 * i}" for i in range(2)]
    w = OPT['wint'] if nb else 0
    put(fl, -1 if w < 2 else 0, wm[0])
    put(fl, (-1, 0, 1, 0)[w], wm[1])
    put(fl, nb - 1, '@ph 0', "s_waitcnt lgkmcnt(0)", '@pt b1', "s_barrier", '@pt b1p')
    spread(fl, areads, nb - 1, OPT['aper'])
    k0, v0 = first['k'], first['v']
    if not last:
        ref = []
        for i in range(4):
            ref += ldsfrag_reads(5 + i, R + 8 * i)
        spread(fl, ref, nb + OPT['refq'], OPT['refper'])
        put(fl, nb + OPT['pfpos'], f"s_mov_b32 m0, {L_DUMMY}")
        if OPT['mpf']:
            put(fl, nb + OPT['pfpos'] + 1, f"buffer_load_dword v{V_MS}, {sr(S_WS, 4)}, s{S_MST} offen lds")
        if use_flags:
            put(fl, nb + 6, f"buffer_load_dword v{T}, v{V_FL}, {sr(S_WS, 4)}, s{S_FLKV} offen sc1")
        if not (nopub or abl('flag')):
            put(fl, nb + OPT['flagpos'], *flag_store())
        if late and not nopub:
            put(fl, nb + 5, pub_read)
        if OPT['vxpos'] == 'q' and not abl('vx'):
            put(fl, nb + OPT['vxq'], vx_loads()[0])
            put(fl, nb + OPT['vxq'] + 1, vx_loads()[1])
        kx = []
        for ks in range(4):
            for Tt in range(2):
                kx.append(f"ds_read_b128 {vr(R + 16 * Tt + 4 * ks, 4)}, v{V_KX1 if Tt else V_KX0} offset:{ks * 2048}")
        kx.sort(key=lambda s_: int(re.search(r'v\[(\d+)', s_).group(1)))
        spread(fl, kx, k0, OPT['kxper'])
        spread(fl, xy_adds(qa), k0 + 2, 1)
        put(fl, k0 + 6, f"v_cvt_pk_bf16_f32 v{qa + 2}, v{qa}, v{qa + 4}")
        put(fl, k0 + 7, f"v_cvt_pk_bf16_f32 v{qa + 3}, v{qa + 1}, v{qa + 5}")
        put(fl, k0 + 9, f"ds_write2_b32 v{V_QKW}, v{qa + 2}, v{qa + 3} offset0:0 offset1:{QKROW // 4}")
        if late and not nopub:
            spread(fl, pub_min, nb + OPT['dmin'], 2)
            put(fl, nb + OPT['pubpos'], pub_store(S_KMP))
    else:
        put(fl, nb, *flag_store())
        if late and OPT['dpoll']:
            put(fl, -1, pub_read)
            spread(fl, pub_min, 1, 2)
            put(fl, 2, pub_store(S_KMP))
        elif late:
            put(fl, nb + 1, pub_read)
            put(fl, nb + 8, pub_store(S_KMP))

    spread(fl, xy_adds(ka), v0 + 1, 2)
    put(fl, v0 + 3, f"v_cvt_pk_bf16_f32 v{T + 2}, v{ka}, v{ka + 4}", f"v_cvt_pk_bf16_f32 v{T + 3}, v{ka + 1}, v{ka + 5}")
    pubk = [f"buffer_store_dword v{T + 2}, v{V_KMP}, {sr(S_WS, 4)}, s{S_KMO} offen sc1",
            f"buffer_store_dword v{T + 3}, v{V_KMP}, {sr(S_WS, 4)}, s{S_KMO} offen offset:256 sc1"]
    kmreg = [R + 32, R + 36, ka, ka + 4]
    if not last or late:
        put(fl, v0 + 4, f"ds_write_b32 v{V_QKW}, v{T + 2} offset:{L_K - L_QK}",
            f"ds_write_b32 v{V_QKW}, v{T + 3} offset:{L_K - L_QK + QKROW}")
    end = len(seq) - 1
    if not last:
        put(fl, v0 + OPT['b2pos'], '@pt b2a', "s_waitcnt lgkmcnt(0)", '@pt b2w', "s_barrier", '@pt b2b')
        rd = [f"ds_read_b128 {vr(A + 4 * ks, 4)}, v{V_QB} offset:{ks * 64}" for ks in range(4)]
        rd += [f"ds_read_b128 {vr(kmreg[ks], 4)}, v{V_QB} offset:{L_K - L_QK + ks * 64}" for ks in range(4)]
        spread(fl, rd, v0 + OPT['b2pos'] + 1, OPT['rdper'])
        if not late and not nopub and not abl('pubk'):
            put(fl, end - 3, pubk[0])
            put(fl, end - 2, pubk[1])
        if OPT['kxgpos'] == 'v' and not abl('kxg'):
            x = kxg_loads()
            put(fl, end - 1, x[0], x[1])
            put(fl, end, x[2])
    elif not late:
        put(fl, v0 + 5, pubk[0])
        put(fl, v0 + 6, pubk[1])
    if not last:
        for nm in pts():
            m = re.fullmatch(r'([qkv])(\d+)', nm)
            if m:
                put(fl, seq.index((m.group(1), int(m.group(2)))), '@pt ' + nm)
    weave(a, main, fl)

    vadd = xy_adds(va)
    vcvt = [f"v_cvt_pk_bf16_f32 v{va}, v{va}, v{va + 1}", f"v_cvt_pk_bf16_f32 v{va + 4}, v{va + 4}, v{va + 5}"]
    pubv = [f"buffer_store_dword v{va}, v{V_VMP}, {sr(S_WS, 4)}, s{S_VMO} offen sc1",
            f"buffer_store_dword v{va + 4}, v{V_VMP}, {sr(S_WS, 4)}, s{S_VMO} offen offset:512 sc1"]
    if last:
        for x in vadd + vcvt:
            a(x)
        if late:
            a(stage_v)
            a(pub_read)
            for x in pub_min:
                a(x)
            a(pub_store(S_KMO))
            stamp(a, 11, STAMPS_ON[0])
        else:
            for x in pubv:
                a(x)
        return

    ph(a, 1)
    sT0, sT1, sM = ACC, ACC + 4, ACC + 24
    PT, PM = ACC + 8, ACC + 28
    ones = R + 32
    tm, tu = T + 2, T + 1
    ms = []
    for d, src in ((sT0, lambda ks: R + 4 * ks), (sT1, lambda ks: R + 16 + 4 * ks), (sM, lambda ks: kmreg[ks])):
        for ks in range(4):
            ms.append(f"v_mfma_f32_16x16x32_bf16 {vr(d, 4)}, {vr(src(ks), 4)}, {vr(A + 4 * ks, 4)}, "
                      f"{'0' if ks == 0 else vr(d, 4)}")
    oreg = {('o', 2, 0): A + 16, ('o', 2, 1): A + 24, ('o', 2, 2): A, ('o', 2, 3): A + 8,
            ('o', 3, 0): R, ('o', 3, 1): R + 8, ('o', 3, 2): R + 16, ('o', 3, 3): R + 24}
    rdo = {f: ldsfrag_reads(PL[f][1], r) for f, r in oreg.items()}
    fs = {}
    wos = OPT['wos']
    rd4, rd5 = rdo[('o', 2, 0)] + rdo[('o', 2, 1)], rdo[('o', 2, 2)] + rdo[('o', 2, 3)]
    rd67 = rdo[('o', 3, 0)] + rdo[('o', 3, 1)] + rdo[('o', 3, 2)] + rdo[('o', 3, 3)]
    inits = [f"v_mov_b32 v{va + 1}, 0", f"v_mov_b64 {vr(va + 2, 2)}, 0",
             f"v_mov_b32 v{va + 5}, 0", f"v_mov_b64 {vr(va + 6, 2)}, 0",
             f"v_mov_b32 v{PM + 1}, 0", f"v_mov_b64 {vr(PM + 2, 2)}, 0",
             f"v_mov_b64 {vr(ones, 2)}, {sr(S_ONES, 2)}", f"v_mov_b64 {vr(ones + 2, 2)}, {sr(S_ONES, 2)}"]
    if wos:
        for i in range(4):
            put(fs, 2 * i + 1, rd4[i])
    else:
        spread(fs, rd4, 0, 2)
    spread(fs, vadd, 1, 2)
    put(fs, 3, *vcvt)
    put(fs, 6, f"v_max3_f32 v{tm}, v{sT0}, v{sT0 + 1}, v{sT0 + 2}")
    put(fs, 7, f"v_max_f32 v{tm}, v{tm}, v{sT0 + 3}")
    if not late and not nopub and not abl('pubv'):
        put(fs, 8, pubv[0])
        put(fs, 9, pubv[1])
    if OPT['kxgpos'] == 's' and not abl('kxg'):
        x = kxg_loads()
        put(fs, 8, x[0], x[1])
        put(fs, 9, x[2])
    put(fs, 10, f"v_max3_f32 v{tm}, v{tm}, v{sT1}, v{sT1 + 1}")
    put(fs, 11, f"v_max3_f32 v{tm}, v{tm}, v{sT1 + 2}, v{sT1 + 3}")
    if not wos:
        for pos, i in ((4, 0), (4, 1), (5, 2), (5, 3), (6, 4), (7, 5), (10, 6), (11, 7)):
            put(fs, pos, inits[i])
    pt_fills(fs, 's')
    weave(a, ms, fs)
    if wos:
        for x in inits:
            a(x)
    else:
        for x in rd67[:4] + rd5:
            a(x)

    sv = [sT0 + i for i in range(4)] + [sT1 + i for i in range(4)] + [sM, sM + 1]
    a(f"v_max3_f32 v{tm}, v{tm}, v{sM}, v{sM + 1}")
    a(f"v_mov_b32 v{tu}, v{tm}")
    for x in (rd67[4:6] if not wos else rd5[0:1] if wos == 2 else []):
        a(x)
    a(f"v_permlane32_swap_b32 v{tm}, v{tu}")
    a(f"v_max_f32 v{tm}, v{tm}, v{tu}")
    a(f"v_mov_b32 v{tu}, v{tm}")
    for x in (rd67[6:8] if not wos else rd5[1:2] if wos == 2 else []):
        a(x)
    a(f"v_permlane16_swap_b32 v{tm}, v{tu}")
    a(f"v_max_f32 v{tm}, v{tm}, v{tu}")
    a(f"v_mul_f32 v{tm}, s{S_NSC}, v{tm}")
    pt(a, 'mx')
    for i in ((8, 0, 2, 4, 6) if OPT['pvo'] else (0, 2, 4, 6, 8)):
        a(f"v_pk_fma_f32 {vr(sv[i], 2)}, {vr(sv[i], 2)}, {sr(S_SC, 2)}, {vr(tm, 2)} op_sel_hi:[1,1,0]")
    ex = [f"v_exp_f32 v{sv[i]}, v{sv[i]}" for i in range(10)]
    cv = [f"v_cvt_pk_bf16_f32 v{PT + j}, v{sv[2 * j]}, v{sv[2 * j + 1]}" for j in range(4)]
    cv.append(f"v_cvt_pk_bf16_f32 v{PM}, v{sv[8]}, v{sv[9]}")
    r5 = [[x] for x in (rd5 if wos == 1 else rd5[2:] if wos == 2 else [])]
    r5 += [[]] * (4 - len(r5))
    o0, o1, lsum = ACC, ACC + 4, ACC + 24
    mf = lambda d, x, y, c: f"v_mfma_f32_16x16x32_bf16 {vr(d, 4)}, {vr(x, 4)}, {vr(y, 4)}, {'0' if c is None else vr(c, 4)}"
    if OPT['pvo']:
        o0, o1 = R, R + 4
        seq_ = (ex[8:10] + ex[0:1] + [cv[4]] + ex[1:2] + r5[0] + ex[2:3] + [cv[0]] + [mf(lsum, PM, ones, None)] +
                ex[3:4] + r5[1] + ex[4:5] + [cv[1]] + [mf(o0, PM, va, None)] + ex[5:6] + r5[2] + ex[6:7] +
                [mf(o1, PM, va + 4, None)] + ex[7:8] + [cv[2]] + r5[3] + [cv[3]])
        for x in seq_:
            a(x)
        ph(a, 2)
        pt(a, 'pv')
        a(mf(lsum, PT, ones, lsum))
        a(mf(o0, PT, VX, o0))
        a(mf(o1, PT, VX + 4, o1))
    else:
        for x in (ex[0:2] + r5[0] + ex[2:3] + [cv[0]] + ex[3:4] + r5[1] + ex[4:5] + [cv[1]] + ex[5:6] + r5[2] +
                  ex[6:7] + [cv[2]] + ex[7:8] + r5[3] + ex[8:9] + [cv[3]] + [ex[9]]):
            a(x)
        ph(a, 2)
        pt(a, 'pv')
        a(mf(o0, PT, VX, None))
        a(cv[4])
        a(mf(o1, PT, VX + 4, None))
        a(mf(lsum, PT, ones, None))
        a(mf(lsum, PM, ones, lsum))
        a(mf(o0, PM, va, o0))
        a(mf(o1, PM, va + 4, o1))
    la, lb = T + 2, T + 3
    pt(a, 'pve')
    if OPT['kxgpos'] == 'pv' and not abl('kxg'):
        for x in kxg_loads():
            a(x)
    a(f"v_rcp_f32 v{la}, v{lsum}")
    a(f"v_rcp_f32 v{lb}, v{lsum + 1}")
    if OPT['vxpos'] == 'pv' and not abl('vx'):
        for x in vx_loads():
            a(x)
    for i in range(8, 16, 2):
        a(f"v_mov_b64 {vr(ACC + i, 2)}, 0")
    if OPT['pvo'] == 2:
        for i in range(0, 4, 2):
            a(f"v_mov_b64 {vr(ACC + i, 2)}, 0")
    a(f"v_mul_f32 v{o0}, v{o0}, v{la}")
    a(f"v_mul_f32 v{o0 + 1}, v{o0 + 1}, v{lb}")
    a(f"v_mul_f32 v{o1}, v{o1}, v{la}")
    a(f"v_mul_f32 v{o1 + 1}, v{o1 + 1}, v{lb}")
    a(f"v_cvt_pk_bf16_f32 v{la}, v{o0}, v{o1}")
    a(f"v_cvt_pk_bf16_f32 v{lb}, v{o0 + 1}, v{o1 + 1}")
    a(f"ds_write2_b32 v{V_OW}, v{la}, v{lb} offset0:0 offset1:{QKROW // 4}")
    if OPT['kxgpos'] == 'b3' and not abl('kxg'):
        for x in kxg_loads():
            a(x)
    for i in range(4 if OPT['pvo'] == 2 else 0, 8, 2):
        a(f"v_mov_b64 {vr(ACC + i, 2)}, 0")
    a("s_waitcnt lgkmcnt(0)")
    ph(a, 3)
    pt_accumulate(a)
    pt(a, 'b3')
    a("s_barrier")
    pt(a, 'b3p')
    oA = [R + 32, R + 36, VX, VX + 4]
    for j in range(4):
        a(f"ds_read_b128 {vr(oA[j], 4)}, v{V_QB} offset:{L_O - L_QK + 64 * j}")
    stv = OPT['stv']
    if late and not nopub and not stv:
        a(stage_v)
    if OPT['kxgpos'] == 'b3p' and not abl('kxg'):
        for x in kxg_loads():
            a(x)

    mo = []
    for k in range(4):
        for j in range(4):
            mo.append(smf(ACC + 4 * k, oA[j], frag_b(('o', k, j), oreg)))

    def post(k):
        d = ACC + 4 * k
        return [f"v_cvt_pk_bf16_f32 v{d}, v{d}, v{d + 2}", f"v_cvt_pk_bf16_f32 v{d + 1}, v{d + 1}, v{d + 3}",
                f"v_and_or_b32 v{d + 1}, v{d + 1}, -2, s{S_TAG}",
                f"buffer_store_dwordx2 {vr(d, 2)}, v{V_PS}, {sr(S_WS, 4)}, s{S_PS + k} offen{st_mod}"]

    fo = {}
    tail = []
    for k in range(3):
        x = post(k)
        if abl('wopost'):
            continue
        if abl('wost'):
            x[3] = "s_nop 0"
        if OPT['wop'] == 0:
            put(fo, 4 * k + 5, x[0])
            put(fo, 4 * k + 6, x[1])
            put(fo, 4 * k + 7, x[2])
            if k < 2:
                fo.setdefault(4 * k + 8, []).insert(0, x[3])
            else:
                put(fo, 15, x[3])
        else:
            put(fo, 4 * k + 5, x[0], x[1])
            put(fo, 4 * k + 6, x[2])
            fo.setdefault(4 * k + 7, []).insert(0, x[3])
    pre = q_prefetch() if OPT['qpf'] == 'i' else []
    SEL = A + 16
    X, D = A, A + 20
    P8 = ACC + 24
    u = T + 2
    if stv and late and not nopub:
        put(fo, stv - 1, stage_v)
    if wos and not abl('rd67'):
        spread(fo, rd67, 0, 1)
    sel_read = f"ds_read_b128 {vr(SEL, 4)}, v{V_QB} offset:256"
    clears = [f"v_mov_b64 {vr(ACC + i, 2)}, 0" for i in range(0, 24, 2)]
    marks = [f"v_not_b32 v{X + i}, s{S_TAGM}" for i in (1, 3, 5, 7)]
    marks_m = [f"v_mov_b32 v{P8 + i}, {0 if OPT['noex'] else -1}" for i in range(8)]
    shadow = []
    if OPT['pres']:
        put(fo, 15, *(marks + clears[:OPT['gapn']]), *post(3))
        rest = []
        todo = clears[OPT['gapn']:] + marks_m
        for y in [sel_read] + pre:
            rest += [y] + todo[:2]
            todo = todo[2:]
        rest += todo
        if OPT['pres'] == 2:
            rest, shadow = [], rest + ["s_nop 3"] * (0 if OPT['iramp'] else OPT['igapn'])
    else:
        put(fo, 15, sel_read, *pre[:6])
        put(fo, 15, *post(3))
        rest = pre[6:] + ['@woe'] + clears + marks + marks_m
    pt_fills(fo, 'o')
    put(fo, 15, '@pt lst')
    weave(a, mo, fo)
    nside = 0
    if OPT['kxgpos'] == 'wo' and not abl('kxg'):
        for x in kxg_loads():
            a(x)
        nside += 2
    if OPT['vxpos'] == 'wo' and not abl('vx'):
        for x in vx_loads():
            a(x)
        nside += 2
    if '@woe' not in rest:
        rest = ['@woe'] + rest
    cnt_begin(a, 100)
    for y in rest:
        if y == '@woe':
            ph(a, 4)
            pt(a, 'woe')
        else:
            a(y)
    if OPT['imask']:
        a("s_mov_b64 vcc, -1")
    if OPT['ifirst'] == 'ack' and not OPT['noex']:
        go = a.newlabel("pi_go")
        d = OPT['ackd'] + nside
        for k in range(4):
            cnt = int(str(OPT['ackt'])[k]) if str(OPT['ackt']) else min(max(3 - k + d, 0), 63)
            a(f"s_waitcnt vmcnt({cnt})")
            if k < 3:
                a(f"s_cmp_eq_u32 s{S_CLS}, {k}")
                a(f"s_cbranch_scc1 {go}")
        a.label(go)

    def issue_():
        a(f"buffer_load_dwordx4 {vr(X, 4)}, v{V_MP}, {sr(S_WS, 4)}, s{S_IN} offen sc1", nowait=True)
        a(f"buffer_load_dwordx4 {vr(X + 4, 4)}, v{V_MP}, {sr(S_WS, 4)}, s{S_IN} offen offset:1024 sc1", nowait=True)

    def check_():
        a(f"v_bitop3_b32 v{u}, v{X + 1}, v{X + 3}, s{S_TAGM} bitop3:0x7e", nowait=True)
        a(f"v_bitop3_b32 v{u + 1}, v{X + 5}, v{X + 7}, s{S_TAGM} bitop3:0x7e", nowait=True)
        a(f"v_bitop3_b32 v{u}, v{u}, v{u + 1}, 1 bitop3:0xa8")
        a(f"v_cmp_ne_u32 vcc, 0, v{u}")

    ph(a, 8)
    pt(a, 'ack')
    if OPT['noex']:
        for y in shadow:
            a(y)
        for i in range(8):
            a("s_nop 15")
        a("s_waitcnt lgkmcnt(0)")
    else:
        also = " lgkmcnt(0)"

        def ramp(stem, n, gap):
            parts = [shadow[len(shadow) * i // n:len(shadow) * (i + 1) // n] + (["s_nop 3"] * gap if i < n - 1 else [])
                     for i in range(n)]
            if OPT['ifront']:
                parts = [shadow + ["s_nop 3"] * gap] + [[]] * (n - 1)
            spin(a, stem, issue_, check_, n, OPT['imask'], 0, also=also,
                 shadow=[(lambda p=p: [a(y) for y in p]) for p in parts], first=True)

        if OPT['iramp']:
            slow, done = a.newlabel("pi_slow"), a.newlabel("pi_done")
            a(f"s_cmp_lt_u32 s{S_CLS}, {OPT['icls']}")
            a(f"s_cbranch_scc1 {slow}")
            ramp("pif", OPT['iramp'], OPT['irgap'])
            a(f"s_branch {done}")
            a.label(slow)
            ramp("pis", OPT['idepth'], OPT['igapn'])
            a.label(done)
        else:
            spin(a, "pi", issue_, check_, OPT['idepth'], OPT['imask'], OPT['isleep'], also=also,
                 shadow=(lambda: [a(y) for y in shadow]) if shadow else None)
    a(f"v_mfma_f32_16x16x32_bf16 {vr(D, 4)}, {vr(SEL, 4)}, {vr(X, 4)}, 0", nowait=True)
    a(f"v_mfma_f32_16x16x32_bf16 {vr(D, 4)}, {vr(SEL, 4)}, {vr(X + 4, 4)}, {vr(D, 4)}", nowait=True)
    cnt_end(a, 100)
    ph(a, 5)
    pt(a, 'inb')
    for rot in (8, 4):
        for i in range(2):
            a(f"v_add_f32_dpp v{D + i}, v{D + i}, v{D + i} row_ror:{rot} row_mask:0xf bank_mask:0xf")
    a(f"v_cvt_pk_bf16_f32 v{D}, v{D}, v{D + 1}")
    a(f"v_min_u32 v{D}, -2, v{D}")
    a(f"buffer_store_dword v{D}, v{V_MS}, {sr(S_WS, 4)}, s{S_MST} offen{st_mod}")
    ph(a, 6)
    pt(a, 'mst')
    ph_flush(a)
    a(f"s_mov_b32 s{S_FLV}, s{S_STEP}")
    a(f"s_mov_b32 s{S_KMP}, s{S_KMO}")
    a(f"s_add_u32 s{S_STEP}, s{S_STEP}, 1")
    a(f"s_add_u32 s{S_MOFF}, s{S_MOFF}, 8192")
    a(f"s_add_u32 s{S_MST}, s{S_MST}, 8192")
    a(f"s_add_u32 s{S_KMO}, s{S_KMO}, 65536")
    if not late:
        a(f"s_add_u32 s{S_VMO}, s{S_VMO}, 65536")
    a(f"s_add_u32 s{S_KFO}, s{S_KFO}, 0x40000")
    a(f"s_add_u32 s{S_VFO}, s{S_VFO}, 0x40000")
    a(f"s_xor_b32 s{S_TAG}, s{S_TAG}, 1")
    a(f"s_not_b32 s{S_TAGM}, s{S_TAGM}")


def stamp(a, slot, enable):
    if not enable:
        return
    l = a.newlabel("ts")
    a(f"s_cmp_lg_u32 s{S_WAVE}, 0")
    a(f"s_cbranch_scc1 {l}")
    for op, off in (("s_memtime", 0), ("s_memrealtime", 128)):
        a(f"{op} {sr(S_TS, 2)}")
        a("s_waitcnt lgkmcnt(0)")
        a(f"v_mov_b32 v{T + 2}, s{S_TS}")
        a(f"v_mov_b32 v{T + 3}, s{S_TS + 1}")
        a(f"s_lshl_b32 s{S_T1}, s{S_H}, 8")
        a(f"s_add_u32 s{S_T1}, s{S_T1}, {hex(WS_TS + slot * 8 + off)}")
        a(f"buffer_store_dwordx2 {vr(T + 2, 2)}, off, {sr(S_WS, 4)}, s{S_T1}")
    a.label(l)


def chain_role(a, st_mod="", use_flags=True, stamps=False, nsteps=63, dump=False):
    if OPT['pro']:
        chain_pre2(a, stamps, use_flags)
        ok = a.newlabel("cr_ok")
        a(f"s_cmp_lg_u32 s{S_OK}, 0")
        a(f"s_cbranch_scc1 {ok}")
        wait_ready2(a, T + 2, lane4=V_FL)
        a.label(ok)
        chain_body2(a, st_mod, use_flags, stamps, nsteps, dump)
        return
    chain_pre(a, stamps)
    chain_body(a, st_mod, use_flags, stamps, nsteps, dump)


def chain_pre(a, stamps=False):
    vtid = 0
    make_srd(a, S_WQ, 'wq')
    make_srd(a, S_WK, 'wk')
    make_srd(a, S_WV, 'wv')
    make_srd(a, S_WO, 'wo')
    make_srd(a, S_M0, 'mem0')
    a(f"s_mov_b32 s{S_SELLO}, 0x05040100")
    a(f"s_mov_b32 s{S_SELHI}, 0x07060302")
    a("s_waitcnt lgkmcnt(0)")
    stamp(a, 0, stamps)
    load_weights(a, vtid, stamps)
    stamp(a, 1, stamps)


def scalar_state(a):
    a(f"s_mov_b32 s{S_STEP}, 0")
    a(f"s_mov_b32 s{S_TAG}, 0")
    a(f"s_mov_b32 s{S_TAGM}, 0")
    a(f"s_mov_b32 s{S_RETRY}, 0x100000")
    a(f"s_mov_b32 s{S_MOFF}, {hex(WS_M)}")
    a(f"s_lshl_b32 s{S_T0}, s{S_H}, 8")
    a(f"s_add_u32 s{S_MST}, s{S_T0}, {hex(WS_M + 8192)}")
    a(f"s_add_u32 s{S_FLKV}, s{S_T0}, {hex(WS_FLAG + FL_KV)}")
    a(f"s_add_u32 s{S_FLMEM}, s{S_T0}, {hex(WS_FLAG + FL_MEM)}")
    a(f"s_lshl_b32 s{S_T0}, s{S_H}, 11")
    a(f"s_add_u32 s{S_KMO}, s{S_T0}, {hex(WS_KM)}")
    a(f"s_add_u32 s{S_KMP}, s{S_T0}, {hex(WS_DUMMY)}")
    a(f"s_mov_b32 s{S_FLV}, 0")
    a(f"s_cmp_eq_u32 s{S_WAVE}, 0")
    a(f"s_cselect_b32 s{S_FLEX}, 1, 0")
    a(f"s_mov_b32 s{S_FLEX + 1}, 0")
    a(f"s_add_u32 s{S_VMO}, s{S_T0}, {hex(WS_VM)}")
    a(f"s_lshl_b32 s{S_T0}, s{S_H}, 13")
    a(f"s_add_u32 s{S_KFO}, s{S_T0}, {hex(WS_KF)}")
    a(f"s_add_u32 s{S_VFO}, s{S_T0}, {hex(WS_VF)}")
    a(f"s_mov_b32 s{S_HI}, 0")
    a(f"s_mov_b32 s{S_HI + 1}, -1")
    a(f"s_mov_b32 s{S_ONES}, 0x3f803f80")
    a(f"s_mov_b32 s{S_ONES + 1}, 0x3f803f80")
    a(f"s_mov_b32 s{S_SC}, {f32hex(SCALE_LOG2E)}")
    a(f"s_mov_b32 s{S_SC + 1}, {f32hex(SCALE_LOG2E)}")
    a(f"s_mov_b32 s{S_NSC}, {f32hex(-SCALE_LOG2E)}")
    a(f"s_lshl_b32 s{S_M0KX}, s{S_WAVE}, 11")
    a(f"s_add_u32 s{S_M0KX}, s{S_M0KX}, {L_KX}")
    a(f"s_lshl_b32 s{S_T0}, s{S_WAVE}, 14")
    a(f"s_lshl_b32 s{S_T1}, s{S_H}, 6")
    a(f"s_add_u32 s{S_T0}, s{S_T0}, s{S_T1}")
    for k in range(4):
        a(f"s_add_u32 s{S_PS + k}, s{S_T0}, {hex(WS_IN + k * 65536)}")
    a(f"s_lshl_b32 s{S_T0}, s{S_H}, 13")
    a(f"s_add_u32 s{S_IN}, s{S_T0}, {hex(WS_IN)}")
    a(f"s_lshr_b32 s{S_CLS}, s{S_H}, 3")


def token_loads(a):
    a(f"s_mov_b32 m0, s{S_M0KX}")
    a(f"buffer_load_dwordx4 v{V_KXG}, {sr(S_WS, 4)}, s{S_KFO} offen sc1 lds")
    a(f"buffer_load_dwordx4 v{V_KXG}, {sr(S_WS, 4)}, s{S_KFO} offen offset:1024 sc1 lds")
    a(f"buffer_load_dwordx4 {vr(VX, 4)}, v{V_VXG}, {sr(S_WS, 4)}, s{S_VFO} offen sc1")
    a(f"buffer_load_dwordx4 {vr(VX + 4, 4)}, v{V_VXG}, {sr(S_WS, 4)}, s{S_VFO} offen offset:2048 sc1")


def chain_pre2(a, stamps=False, use_flags=True, expect=None):
    make_srd(a, S_WQ, 'wq')
    make_srd(a, S_WK, 'wk')
    make_srd(a, S_WV, 'wv')
    make_srd(a, S_WO, 'wo')
    make_srd(a, S_M0, 'mem0')
    a(f"s_mov_b32 s{S_SELLO}, 0x05040100")
    a(f"s_mov_b32 s{S_SELHI}, 0x07060302")
    a(f"v_mov_b32 v{L_TID}, v0")
    a("s_waitcnt lgkmcnt(0)")
    stamp(a, 0, stamps)
    P8 = ACC + 24
    n0 = OPT['pk0']

    def setup():
        load_mem0(a, L_TID, L_M0, L_DBG)
        consts(a, L_TID, L_TMP)
        scalar_state(a)

    def setup_pieces(n):
        i0 = len(a.items)
        cuts = []
        load_mem0(a, L_TID, L_M0, L_DBG)
        consts(a, L_TID, L_SEL, cuts)
        cuts.append(len(a.items))
        scalar_state(a)
        items = a.items[i0:]
        del a.items[i0:]
        cuts = [c - i0 for c in cuts] + [len(items)]
        out, last = [], 0
        for k in range(1, n + 1):
            goal = len(items) * k // n
            c = min((x for x in cuts if x >= min(goal, cuts[-1])), default=len(items)) if k < n else len(items)
            c = max(c, last)
            out.append(items[last:c])
            last = c
        return [(lambda part=part: a.items.extend(part)) for part in out]

    def flush():
        ready_flush(a, L_DBG, waited=True)

    def probe_ready():
        dbg_load(a, L_DBG, V_FL)

    def probe_flags():
        ready_total(a, L_DBG, S_OK)
        a(f"s_cmp_ge_u32 s{S_OK}, 256")
        a(f"s_cselect_b32 s{S_OK}, 1, 0")
        dbg_load(a, L_DBG + 1, V_FL)
        if use_flags:
            a(f"buffer_load_dword v{T}, v{V_FL}, {sr(S_WS, 4)}, s{S_FLKV} offen sc1")

    def check_flags(first):
        if first and expect is not None:
            a(f"v_cmp_ne_u32 vcc, {expect}, v{L_DBG + 1}")
            ticket_mismatch(a, S_T0)
            a(f"s_cselect_b32 s{S_T0}, 0, 1")
            a(f"s_or_b32 s{S_T0}, s{S_T0}, s{S_MODE}")
            a(f"s_and_b32 s{S_OK}, s{S_OK}, s{S_T0}")
        if use_flags:
            a(f"v_cmp_le_u32 vcc, 4, v{T}")
            a(f"s_and_b32 s{S_T0}, vcc_lo, 1")
            a(f"s_and_b32 s{S_OK}, s{S_OK}, s{S_T0}")

    def tokens():
        check_flags(True)
        token_loads(a)

    hooks = {6: setup, 8: flush, n0 - 14: probe_ready, n0 - 7: probe_flags, n0: tokens}

    def helper(mat, first):
        vA, vD, sT, sU = 94, 95, 89, 90
        skip = a.newlabel("cpf_skip")
        a(f"s_and_b32 s{sT}, s{S_H}, 3")
        a(f"s_cmp_eq_u32 s{sT}, {OPT['cpc']}")
        a(f"s_cbranch_scc1 {skip}")
        if first:
            a(f"s_sub_u32 s{sU}, s{sT}, {OPT['cpc'] + 1}")
            a(f"s_and_b32 s{sU}, s{sU}, 3")
            a(f"s_lshl_b32 s{sU}, s{sU}, 2")
            a(f"s_add_u32 s{sU}, s{sU}, s{S_WAVE}")
            a(f"s_lshl_b32 s{sU}, s{sU}, 18")
            a(f"s_add_u32 s{sU}, s{sU}, {OPT['cpr'] * 8192}")
            a(f"s_and_b32 s{sT}, s{S_H}, 28")
            a(f"s_add_u32 s{sT}, s{sT}, {OPT['cpc']}")
            a(f"s_lshl_b32 s{sT}, s{sT}, 8")
            a(f"s_add_u32 s{sU}, s{sU}, s{sT}")
            a(f"v_bfe_u32 v{vA}, v{L_TID}, 1, 5")
            a(f"v_lshlrev_b32 v{vA}, 13, v{vA}")
            a(f"v_and_b32 v{vD}, 1, v{L_TID}")
            a(f"v_lshl_or_b32 v{vA}, v{vD}, 7, v{vA}")
        srd = {'q': S_WQ, 'k': S_WK, 'v': S_WV}[mat]
        a(f"buffer_load_dword v{vD}, v{vA}, {sr(srd, 4)}, s{sU} offen", nowait=True)
        a.label(skip)

    for i, x in enumerate(y for y in str(OPT['cpf']).split(',') if y):
        g, mat = int(x[:-1]), x[-1]
        prev = hooks.get(g)
        hooks[g] = (lambda prev=prev, mat=mat, i=i: ((prev() if prev else None), helper(mat, i == 0)))
    if OPT['dry']:
        dry = a.newlabel("dry")
        for r in (S_WQ, S_WK, S_WV, S_WO):
            a(f"s_mov_b32 s{r + 2}, 0")
        a("s_mov_b32 s85, 0")
        a("s_mov_b32 s16, 0")
        a.label(dry)
    if OPT['lst'] == 2:
        pr, pf, pk = (int(x) for x in str(OPT['lhp']).split(','))
        hk = {'flush': flush, pr: probe_ready, pf: probe_flags, pk: tokens}
        if OPT['lsp']:
            hk['pieces'] = setup_pieces(OPT['lsp'])
        else:
            hk['setup'] = setup
        load_weights3(a, L_TID, stamps, hk)
    elif OPT['lst']:
        h0, h1 = (int(x) for x in str(OPT['lhk']).split(','))
        m0 = min(n0, 63) - 3
        hooks = {h0: setup, h1: flush, m0 - 14: probe_ready, m0 - 7: probe_flags, m0: tokens}
        join = a.newlabel("lw_join")
        for wv in range(4):
            nxt = a.newlabel("lw_next")
            if wv < 3:
                a(f"s_cmp_lg_u32 s{S_WAVE}, {wv}")
                a(f"s_cbranch_scc1 {nxt}")
            load_weights2(a, L_TID, stamps, hooks, wv)
            if wv < 3:
                a(f"s_branch {join}")
                a.label(nxt)
        a.label(join)
    elif OPT['l2v']:
        odd, join = a.newlabel("lw_odd"), a.newlabel("lw_join")
        a(f"s_bitcmp1_b32 s{S_WAVE}, 0")
        a(f"s_cbranch_scc1 {odd}")
        load_weights(a, L_TID, stamps, hooks)
        a(f"s_branch {join}")
        a.label(odd)
        load_weights(a, L_TID, stamps, hooks, jx=2)
        a.label(join)
    else:
        load_weights(a, L_TID, stamps, hooks)
    if OPT['dry']:
        done = a.newlabel("dry_done")
        a(f"s_cmp_ge_u32 s16, {OPT['dry']}")
        a(f"s_cbranch_scc1 {done}")
        a("s_add_u32 s16, s16, 1")
        a("s_waitcnt vmcnt(0) lgkmcnt(0)")
        second = a.newlabel("dry2")
        a("s_cmp_eq_u32 s16, 2")
        a(f"s_cbranch_scc1 {second}")
        stamp(a, 8, stamps)
        a(f"s_branch {second}b")
        a.label(second)
        stamp(a, 9, stamps)
        a.label(second + "b")
        a(f"s_cmp_lt_u32 s16, {OPT['dry']}")
        a(f"s_cbranch_scc1 {second}c")
        for r, n in ((S_WQ, 'wq'), (S_WK, 'wk'), (S_WV, 'wv'), (S_WO, 'wo')):
            a(f"s_mov_b32 s{r + 2}, {hex(SIZE[n])}")
        a.label(second + "c")
        a(f"v_mov_b32 v0, v{L_TID}")
        a("s_barrier")
        a(f"s_branch {dry}")
        a.label(done)
    for i in range(8):
        a(f"v_mov_b32 v{P8 + i}, v{L_M0 + i}")
    if OPT['wfix']:
        a("s_waitcnt vmcnt(0)")
    stamp(a, 1, stamps)


def chain_body2(a, st_mod="", use_flags=True, stamps=False, nsteps=63, dump=False):
    ok = a.newlabel("cb_ok")
    a(f"s_cmp_lg_u32 s{S_OK}, 0")
    a(f"s_cbranch_scc1 {ok}")
    if use_flags:
        a(f"s_mov_b32 s{S_STEP}, -1")
        a(f"buffer_load_dword v{T}, v{V_FL}, {sr(S_WS, 4)}, s{S_FLKV} offen sc1")
        kv_flag_check(a, True)
        a(f"s_mov_b32 s{S_STEP}, 0")
    a("s_waitcnt vmcnt(0)")
    token_loads(a)
    if OPT['wfix']:
        a("s_waitcnt vmcnt(0)")
    a.label(ok)
    chain_main(a, st_mod, use_flags, stamps, nsteps, dump, waited=bool(OPT['wfix']))


def chain_body(a, st_mod="", use_flags=True, stamps=False, nsteps=63, dump=False):
    vtid = 0
    load_mem0(a, vtid)
    a(f"v_mov_b32 v{R}, v{vtid}")
    P8 = ACC + 24
    consts(a, R)
    scalar_state(a)
    wait_ready(a, T + 2)
    if use_flags:
        a(f"s_mov_b32 s{S_STEP}, -1")
        a(f"buffer_load_dword v{T}, v{V_FL}, {sr(S_WS, 4)}, s{S_FLKV} offen sc1")
        kv_flag_check(a, True)
        a(f"s_mov_b32 s{S_STEP}, 0")
    token_loads(a)
    chain_main(a, st_mod, use_flags, stamps, nsteps, dump)


def chain_main(a, st_mod, use_flags, stamps, nsteps, dump, waited=False):
    STAMPS_ON[0] = stamps
    a(f"s_add_u32 s{S_KFO}, s{S_KFO}, 0x40000")
    if OPT['vxpos'] != 'q':
        a(f"s_add_u32 s{S_VFO}, s{S_VFO}, 0x40000")
    a("s_waitcnt lgkmcnt(0)" if waited else "s_waitcnt vmcnt(0) lgkmcnt(0)")
    phase_w(a)
    a("s_waitcnt lgkmcnt(0)")
    kv_flag_check(a, use_flags)
    stamp(a, 2, stamps)
    dstamp(a, 12, 0)
    if pts():
        for i in range(8):
            a(f"s_mov_b32 s{S_ACC + i}, 0")
    if OPT['sts']:
        a(f"s_lshl_b32 s91, s{S_H}, 2")
        a(f"s_add_u32 s91, s91, s{S_WAVE}")
        a(f"s_lshl_b32 s91, s91, 8")
        a(f"s_add_u32 s91, s91, {hex(WS_TS2)}")
        a("s_memrealtime s[92:93]")
        a("s_waitcnt lgkmcnt(0)")
    loop, entry_l = a.newlabel("step"), a.newlabel("step_in")
    a(f"s_branch {entry_l}")
    if OPT['lal']:
        a.raw(f".p2align {OPT['lal']}")
    for i in range(OPT['lpad']):
        a.raw("  s_nop 0")
    a.label(loop)
    if OPT['sts']:
        a.raw(f"  v_mov_b32 v{V_OA}, s92")
        a(f"buffer_store_dword v{V_OA}, off, {sr(S_WS, 4)}, s91")
        a.raw("  s_add_u32 s91, s91, 4")
        a.raw("  s_memrealtime s[92:93]" if OPT['sts'] == 1 else "  s_memtime s[92:93]")
    kv_flag_check(a, use_flags)
    poll_m(a)
    a.label(entry_l)
    step(a, st_mod, use_flags)
    a(f"s_cmp_lt_u32 s{S_STEP}, {nsteps}")
    a(f"s_cbranch_scc1 {loop}")
    stamp(a, 3, stamps)
    pt_store(a)
    poll_m(a)
    step(a, st_mod, use_flags, last=True)
    a("s_waitcnt vmcnt(0)")
    a("s_barrier")
    l = a.newlabel("fin")
    a(f"s_cmp_lg_u32 s{S_WAVE}, 0")
    a(f"s_cbranch_scc1 {l}")
    a(f"v_mov_b32 v{T + 2}, 64")
    a(f"v_mov_b32 v{T + 3}, 0")
    a(f"buffer_store_dword v{T + 2}, v{T + 3}, {sr(S_WS, 4)}, s{S_FLMEM} offen sc1")
    a.label(l)
    stamp(a, 4, stamps)
    if dump:
        a("s_barrier")
        a(f"s_lshl_b32 s{S_T0}, s{S_H}, 15")
        a(f"s_add_u32 s{S_T0}, s{S_T0}, {hex(WS_DBG)}")
        a(f"v_lshrrev_b32 v{A}, 2, v{V_FL}")
        a(f"v_lshlrev_b32 v{A}, 4, v{A}")
        a(f"s_lshl_b32 s{S_T1}, s{S_WAVE}, 10")
        a(f"v_add_u32 v{A}, s{S_T1}, v{A}")
        for i in range(6):
            a(f"ds_read_b128 {vr(A + 4, 4)}, v{A} offset:{i * 4096}")
            a(f"buffer_store_dwordx4 {vr(A + 4, 4)}, v{A}, {sr(S_WS, 4)}, s{S_T0} offen")
            a(f"s_add_u32 s{S_T0}, s{S_T0}, 4096")
            a("s_waitcnt vmcnt(0)")
```

```python
from asmlib import *
from layout import *

KA = dict(x=0, mem0=8, wq=16, wk=24, wv=32, wo=40, seglen=48, bx=56, wg=64, wu=72, wd=80, gw=88, out=96, dbg=104,
          ws=112)
SIZE = dict(x=2048 * 512 * 2, mem0=8 * 512 * 2, wq=512 * 4096 * 2, wk=512 * 4096 * 2, wv=512 * 4096 * 2,
            wo=4096 * 512 * 2, bx=2048 * 512 * 2, wg=512 * 1376 * 2, wu=512 * 1376 * 2, wd=1376 * 512 * 2,
            gw=512 * 2, out=2048 * 512 * 2, dbg=256, ws=WS_SIZE)

S_WS = 4
S_DBG = 8
S_XCC = 12
S_TICKET = 13
S_WAVE = 14
S_TMP = 15
S_ROLE = 20
S_MODE = 21
S_EXEC = 22
S_FREE = 24

OOB = 0x40000000


def make_srd(a, s, name):
    a(f"s_load_dwordx2 {sr(s, 2)}, s[0:1], {KA[name]}")
    a(f"s_mov_b32 s{s + 2}, {hex(SIZE[name])}")
    a(f"s_mov_b32 s{s + 3}, 0x20000")


def spin_label_pair(a, stem):
    return a.newlabel(stem + "_top"), a.newlabel(stem + "_out")


def entry(a, nwg=256, lds_scratch=0):
    a(f"s_cmp_ge_u32 s2, {nwg}")
    a("s_cbranch_scc1 L_exit")
    if DSTAMPS:
        a("s_memrealtime s[96:97]")
    if RSTAMPS:
        a("s_memrealtime s[94:95]")
        a("s_getreg_b32 s93, hwreg(HW_REG_HW_ID)")
    make_srd(a, S_WS, 'ws')
    make_srd(a, S_DBG, 'dbg')
    a(f"s_getreg_b32 s{S_XCC}, hwreg(HW_REG_XCC_ID)")
    a(f"s_and_b32 s{S_XCC}, s{S_XCC}, 7")
    a("v_lshrrev_b32 v1, 6, v0")
    a("s_nop 0")
    a(f"v_readfirstlane_b32 s{S_WAVE}, v1")
    a("v_mov_b32 v2, -1")
    a("v_mov_b32 v3, -1")
    a("v_mov_b32 v4, 0")
    a("v_lshlrev_b32 v1, 3, v0")
    a(f"s_lshl_b32 s{S_TMP}, s2, 11")
    a(f"s_add_u32 s{S_TMP + 1}, s{S_TMP}, {hex(WS_IN)}")
    a(f"s_add_u32 s{S_TMP + 2}, s{S_TMP}, {hex(WS_M)}")
    a(f"s_lshl_b32 s{S_TMP + 3}, s2, 7")
    a(f"s_add_u32 s{S_TMP + 3}, s{S_TMP + 3}, {hex(WS_FLAG)}")
    a("v_lshlrev_b32 v5, 2, v0")
    a(f"v_mov_b32 v6, {hex(OOB)}")
    a("v_cmp_gt_u32 vcc, 32, v0")
    a("v_cndmask_b32 v5, v6, v5, vcc")
    a("s_waitcnt lgkmcnt(0)")
    a(f"buffer_store_dwordx2 v[2:3], v1, {sr(S_WS, 4)}, s{S_TMP + 1} offen sc1")
    a(f"buffer_store_dwordx2 v[2:3], v1, {sr(S_WS, 4)}, s{S_TMP + 2} offen sc1")
    a(f"buffer_store_dword v4, v5, {sr(S_WS, 4)}, s{S_TMP + 3} offen sc1")
    l_skip = a.newlabel("tk_skip")
    a(f"s_cmp_lg_u32 s{S_WAVE}, 0")
    a(f"s_cbranch_scc1 {l_skip}")
    a(f"s_lshl_b32 s{S_TMP}, s{S_XCC}, 2")
    a("v_mov_b32 v6, 1")
    a(f"v_mov_b32 v7, {hex(OOB)}")
    a("v_cmp_eq_u32 vcc, 0, v0")
    a(f"v_cndmask_b32 v7, v7, v4, vcc")
    a(f"buffer_atomic_add v6, v7, {sr(S_DBG, 4)}, s{S_TMP} offen sc0 sc1")
    a("s_waitcnt vmcnt(0)")
    a(f"v_mov_b32 v7, {lds_scratch}")
    a(f"s_mov_b64 {sr(S_EXEC, 2)}, exec")
    a("s_mov_b64 exec, 1")
    a("ds_write_b32 v7, v6")
    a(f"s_mov_b64 exec, {sr(S_EXEC, 2)}")
    a.label(l_skip)
    a("s_waitcnt vmcnt(0) lgkmcnt(0)")
    a("s_barrier")
    l_skip2 = a.newlabel("rd_skip")
    a(f"s_cmp_lg_u32 s{S_WAVE}, 0")
    a(f"s_cbranch_scc1 {l_skip2}")
    a("v_mov_b32 v6, 1")
    a(f"v_mov_b32 v7, {hex(OOB)}")
    a("v_cmp_eq_u32 vcc, 0, v0")
    a(f"v_cndmask_b32 v7, v7, v4, vcc")
    a(f"buffer_atomic_add v6, v7, {sr(S_DBG, 4)}, 0 offen offset:{DBG_READY * 4} sc1")
    a.label(l_skip2)
    a(f"v_mov_b32 v7, {lds_scratch}")
    a("ds_read_b32 v6, v7")
    a("s_waitcnt lgkmcnt(0)")
    a(f"v_readfirstlane_b32 s{S_TICKET}, v6")
    a("s_barrier")


S_RDY = 22
PF_LOADS = 29
EOPT = dict(early=4, tkoff=32, wopf=0, kwarm=1, xperm=7142536, kvmark=1)


def ticket_slot(x):
    return 0 if x == 0 else EOPT['tkoff'] + x


def ticket_mismatch(a, dst):
    off = EOPT['tkoff']
    if off == 0:
        a(f"s_and_b32 s{dst}, vcc_lo, 0xff")
    else:
        assert off == 32
        a(f"s_and_b32 s{dst}, vcc_hi, 0xfe")
        a(f"s_and_b32 vcc_lo, vcc_lo, 1")
        a(f"s_or_b32 s{dst}, s{dst}, vcc_lo")


def entry2(a, nwg=256, lds_scratch=0, prefetch=True):
    a(f"s_cmp_ge_u32 s2, {nwg}")
    a("s_cbranch_scc1 L_exit")
    if DSTAMPS:
        a("s_memrealtime s[96:97]")
    if RSTAMPS:
        a("s_memrealtime s[94:95]")
        a("s_getreg_b32 s93, hwreg(HW_REG_HW_ID)")
    make_srd(a, S_WS, 'ws')
    make_srd(a, S_DBG, 'dbg')
    if prefetch:
        for i, n in enumerate(('wq', 'wk', 'wv', 'wo')):
            a(f"s_load_dwordx2 {sr(24 + 2 * i, 2)}, s[0:1], {KA[n]}")
        a("s_getreg_b32 s44, hwreg(HW_REG_HW_ID)")
    if EOPT['kwarm']:
        a(f"s_load_dwordx2 s[46:47], s[0:1], {KA['wo']}")
    if EOPT['wopf']:
        a(f"s_load_dwordx2 s[40:41], s[0:1], {KA['wo']}")
        a("s_getreg_b32 s44, hwreg(HW_REG_HW_ID)")
    a(f"s_getreg_b32 s{S_XCC}, hwreg(HW_REG_XCC_ID)")
    a(f"s_and_b32 s{S_XCC}, s{S_XCC}, 7")
    perm = f"{EOPT['xperm']:08d}"
    if perm != "01234567":
        assert sorted(perm) == list("01234567")
        a(f"s_lshl_b32 s{S_XCC}, s{S_XCC}, 2")
        a(f"s_lshr_b32 s{S_XCC}, {hex(sum(int(c) << (4 * i) for i, c in enumerate(perm)))}, s{S_XCC}")
        a(f"s_and_b32 s{S_XCC}, s{S_XCC}, 7")
    a("v_lshrrev_b32 v1, 6, v0")
    a("s_nop 0")
    a(f"v_readfirstlane_b32 s{S_WAVE}, v1")
    a("v_mov_b32 v2, -1")
    a("v_mov_b32 v3, -1")
    a("v_mov_b32 v4, 0")
    a("v_lshlrev_b32 v1, 3, v0")
    a(f"s_lshl_b32 s{S_TMP}, s2, 11")
    a(f"s_add_u32 s{S_TMP + 1}, s{S_TMP}, {hex(WS_IN)}")
    a(f"s_add_u32 s{S_TMP + 2}, s{S_TMP}, {hex(WS_M)}")
    a(f"s_lshl_b32 s{S_TMP + 3}, s2, 7")
    a(f"s_add_u32 s{S_TMP + 3}, s{S_TMP + 3}, {hex(WS_FLAG)}")
    a("v_lshlrev_b32 v5, 2, v0")
    a(f"v_mov_b32 v6, {hex(OOB)}")
    a("v_cmp_gt_u32 vcc, 32, v0")
    a("v_cndmask_b32 v5, v6, v5, vcc")
    NCL = 4 if EOPT['kvmark'] else 3
    a(f"v_mov_b32 v7, {hex(OOB)}")
    a("v_cmp_eq_u32 vcc, 0, v0")
    a("v_cndmask_b32 v7, v7, v4, vcc")
    a("v_mov_b32 v6, 1")
    a(f"s_lshl_b32 s{S_TMP + 4}, s{S_XCC}, 2")
    if EOPT['tkoff']:
        a(f"s_add_u32 s{S_TMP + 4}, s{S_TMP + 4}, {EOPT['tkoff'] * 4}")
        a(f"s_cmp_eq_u32 s{S_XCC}, 0")
        a(f"s_cselect_b32 s{S_TMP + 4}, 0, s{S_TMP + 4}")
    if EOPT['wopf']:
        a("s_bfe_u32 s45, s44, 0x3000d")
        a("s_mul_i32 s45, s45, 9")
        a("s_bfe_u32 s44, s44, 0x40008")
        a("s_add_u32 s44, s44, s45")
        a("s_lshl_b32 s44, s44, 17")
        a(f"s_mul_i32 s45, s{S_WAVE}, {EOPT['wopf'] * 8192}")
        a("s_add_u32 s44, s44, s45")
        a("v_and_b32 v12, 63, v0")
        a("v_lshlrev_b32 v12, 7, v12")
        a(f"s_mov_b32 s42, {hex(SIZE['wo'])}")
        a("s_mov_b32 s43, 0x20000")
    if prefetch:
        a("s_bfe_u32 s45, s44, 0x3000d")
        a("s_mul_i32 s45, s45, 9")
        a("s_bfe_u32 s44, s44, 0x40008")
        a("s_add_u32 s44, s44, s45")
        a(f"s_mul_i32 s44, s44, {114 * 1024}")
        a(f"s_mul_i32 s45, s{S_WAVE}, {PF_LOADS * 1024}")
        a("s_add_u32 s44, s44, s45")
        a("v_and_b32 v12, 63, v0")
        a("v_lshlrev_b32 v12, 4, v12")
    a("s_waitcnt lgkmcnt(0)")
    if prefetch:
        a(f"s_cmp_eq_u32 s{S_XCC}, 5")
        a("s_cselect_b64 s[40:41], s[24:25], s[30:31]")
        a(f"s_cmp_eq_u32 s{S_XCC}, 6")
        a("s_cselect_b64 s[40:41], s[26:27], s[40:41]")
        a(f"s_cmp_eq_u32 s{S_XCC}, 7")
        a("s_cselect_b64 s[40:41], s[28:29], s[40:41]")
        a(f"s_mov_b32 s42, {hex(SIZE['wq'])}")
        a("s_mov_b32 s43, 0x20000")
    tick = f"buffer_atomic_add v6, v7, {sr(S_DBG, 4)}, s{S_TMP + 4} offen sc0 sc1"
    late, nopf, got, skip0, skip1 = (a.newlabel(x) for x in ("en_late", "en_nopf", "en_got", "en_s0", "en_s1"))

    def clear():
        a(f"buffer_store_dwordx2 v[2:3], v1, {sr(S_WS, 4)}, s{S_TMP + 1} offen sc1")
        a(f"buffer_store_dwordx2 v[2:3], v1, {sr(S_WS, 4)}, s{S_TMP + 2} offen sc1")
        a(f"buffer_store_dword v4, v5, {sr(S_WS, 4)}, s{S_TMP + 3} offen sc1")
        if EOPT['kvmark']:
            assert not prefetch and not EOPT['wopf']
            for i in range(8, 12):
                a(f"v_mov_b32 v{i}, -1")
            a("v_and_b32 v12, 63, v0")
            a("v_lshlrev_b32 v12, 4, v12")
            a("v_bfe_u32 v13, v0, 6, 1")
            a(f"v_lshl_or_b32 v12, v13, {(WS_VM - WS_KM).bit_length() - 1}, v12")
            a(f"v_mov_b32 v13, {hex(OOB)}")
            a("v_cmp_gt_u32 vcc, 0x80, v0")
            a("v_cndmask_b32 v12, v13, v12, vcc")
            a("s_lshl_b32 s45, s2, 10")
            a(f"s_add_u32 s45, s45, {hex(WS_KM + 60 * 65536)}")
            a(f"buffer_store_dwordx4 v[8:11], v12, {sr(S_WS, 4)}, s45 offen sc1")

    a(f"s_cmp_ge_u32 s{S_XCC}, {EOPT['early']}")
    a(f"s_cbranch_scc1 {late}")
    a(f"s_mov_b32 s{S_RDY}, 1")
    a(f"s_cmp_lg_u32 s{S_WAVE}, 0")
    a(f"s_cbranch_scc1 {skip0}")
    a(tick, nowait=True)
    a.label(skip0)
    if EOPT['wopf']:
        nowo = a.newlabel("en_nowo")
        a(f"s_cmp_lg_u32 s{S_XCC}, 0")
        a(f"s_cbranch_scc1 {nowo}")
        for i in range(EOPT['wopf']):
            a(f"buffer_load_dword v8, v12, s[40:43], s44 offen", nowait=True)
            a("s_add_u32 s44, s44, 8192")
        clear()
        a(f"s_waitcnt vmcnt({3 + EOPT['wopf']})")
        a(f"s_branch {got}")
        a.label(nowo)
    clear()
    a(f"s_waitcnt vmcnt({NCL})")
    a(f"s_branch {got}")
    a.label(late)
    a(f"s_mov_b32 s{S_RDY}, 0")
    clear()
    if prefetch:
        a(f"s_cmp_lt_u32 s{S_XCC}, 4")
        a(f"s_cbranch_scc1 {nopf}")
        for i in range(PF_LOADS):
            if i and i % 4 == 0:
                a("s_add_u32 s44, s44, 4096")
            a(f"buffer_load_dwordx4 v[8:11], v12, s[40:43], s44 offen offset:{(i & 3) * 1024}", nowait=True)
        a(f"s_waitcnt vmcnt({PF_LOADS})")
        a("s_barrier")
        a(f"s_branch {skip1}")
    a.label(nopf)
    a("s_waitcnt vmcnt(0)")
    a("s_barrier")
    a.label(skip1)
    a(f"s_cmp_lg_u32 s{S_WAVE}, 0")
    a(f"s_cbranch_scc1 {skip1}b")
    a(tick, nowait=True)
    a.label(skip1 + "b")
    a("s_waitcnt vmcnt(0)")
    a.label(got)
    a.clear("v6")
    a(f"v_readfirstlane_b32 s{S_TICKET}, v6")
    a(f"v_mov_b32 v7, {lds_scratch}")
    a(f"s_cmp_lg_u32 s{S_WAVE}, 0")
    a(f"s_cbranch_scc1 {skip0}b")
    a(f"v_mov_b32 v6, s{S_TICKET}")
    a("ds_write_b32 v7, v6")
    a.label(skip0 + "b")
    a("s_waitcnt lgkmcnt(0)")
    a("s_barrier")
    a("ds_read_b32 v6, v7")
    a("s_waitcnt lgkmcnt(0)")
    a(f"v_readfirstlane_b32 s{S_TICKET}, v6")
    a("s_barrier")


def ready_flush(a, vt, waited=False):
    skip, skipw = a.newlabel("rf_skip"), a.newlabel("rf_w")
    a(f"s_cmp_eq_u32 s{S_RDY}, 0")
    a(f"s_cbranch_scc1 {skip}")
    if not waited:
        a("s_waitcnt vmcnt(0)")
    a("s_barrier")
    a(f"s_mov_b32 s{S_RDY}, 0")
    a(f"s_cmp_lg_u32 s{S_WAVE}, 0")
    a(f"s_cbranch_scc1 {skipw}")
    a(f"v_mov_b32 v{vt}, 1")
    a(f"v_mov_b32 v{vt + 1}, {hex(OOB)}")
    a(f"v_cmp_eq_u32 vcc, 0, v0")
    a(f"v_cndmask_b32 v{vt + 1}, v{vt + 1}, 0, vcc")
    a(f"buffer_atomic_add v{vt}, v{vt + 1}, {sr(S_DBG, 4)}, 0 offen offset:{DBG_READY * 4} sc1")
    a.label(skipw)
    a.label(skip)


def ready_total(a, vt, dst):
    a(f"v_readlane_b32 s{dst}, v{vt}, {DBG_READY}")
    for x in range(EOPT['early'], 8):
        a(f"v_readlane_b32 s{S_TMP + 2}, v{vt}, {ticket_slot(x)}")
        a(f"s_add_u32 s{dst}, s{dst}, s{S_TMP + 2}")


def dbg_load(a, vt, va, **kw):
    a(f"buffer_load_dword v{vt}, v{va}, {sr(S_DBG, 4)}, 0 offen sc1", **kw)


def wait_ready2(a, vt, nwg=256, limit=200000, lane4=None):
    top, out = spin_label_pair(a, "rdy")
    a(f"s_mov_b32 s{S_TMP}, {limit}")
    if lane4 is None:
        a(f"v_and_b32 v{vt + 1}, 63, v0")
        a(f"v_lshlrev_b32 v{vt + 1}, 2, v{vt + 1}")
    else:
        a(f"v_mov_b32 v{vt + 1}, v{lane4}")
    a.label(top)
    dbg_load(a, vt, vt + 1)
    a("s_waitcnt vmcnt(0)")
    ready_total(a, vt, S_TMP + 1)
    a(f"s_cmp_ge_u32 s{S_TMP + 1}, {nwg}")
    a(f"s_cbranch_scc1 {out}")
    a(f"s_sub_u32 s{S_TMP}, s{S_TMP}, 1")
    a(f"s_cmp_lg_u32 s{S_TMP}, 0")
    a(f"s_cbranch_scc1 {top}")
    a.label(out)


def mode_check2(a, vt, fallback, expect=32, lane4=None):
    ok = a.newlabel("mode_ok")
    a(f"s_cmp_lg_u32 s{S_MODE}, 0")
    a(f"s_cbranch_scc1 {ok}")
    wait_ready2(a, vt, lane4=lane4)
    dbg_load(a, vt, vt + 1)
    a(f"v_cmp_ne_u32 vcc, {expect}, v{vt}")
    ticket_mismatch(a, S_TMP)
    a(f"s_cmp_lg_u32 s{S_TMP}, 0")
    a(f"s_cbranch_scc1 {fallback}")
    a.label(ok)


def wait_ready(a, vt, nwg=256, limit=200000):
    top, out = spin_label_pair(a, "rdy")
    a(f"s_mov_b32 s{S_TMP}, {limit}")
    a(f"v_mov_b32 v{vt + 1}, {DBG_READY * 4}")
    a.label(top)
    a(f"buffer_load_dword v{vt}, v{vt + 1}, {sr(S_DBG, 4)}, 0 offen sc1")
    a("s_waitcnt vmcnt(0)")
    a(f"v_readfirstlane_b32 s{S_TMP + 1}, v{vt}")
    a(f"s_cmp_ge_u32 s{S_TMP + 1}, {nwg}")
    a(f"s_cbranch_scc1 {out}")
    a(f"s_sub_u32 s{S_TMP}, s{S_TMP}, 1")
    a(f"s_cmp_lg_u32 s{S_TMP}, 0")
    a(f"s_cbranch_scc1 {top}")
    a.label(out)


def count_arrival(a, slot, vt):
    skip = a.newlabel("cnt_skip")
    a(f"v_mov_b32 v{vt}, 1")
    a(f"v_mov_b32 v{vt + 1}, {hex(OOB)}")
    a("v_cmp_eq_u32 vcc, 0, v0")
    a(f"v_cndmask_b32 v{vt + 1}, v{vt + 1}, 0, vcc")
    a(f"s_cmp_lg_u32 s{S_WAVE}, 0")
    a(f"s_cbranch_scc1 {skip}")
    a(f"buffer_atomic_add v{vt}, v{vt + 1}, {sr(S_DBG, 4)}, 0 offen offset:{slot * 4} sc1")
    a.label(skip)


def wait_count(a, slot, target, vt, sleep, limit=20000):
    top, out = spin_label_pair(a, "cnt")
    a(f"s_mov_b32 s{S_TMP}, {limit}")
    a(f"v_mov_b32 v{vt + 1}, {slot * 4}")
    a.label(top)
    a(f"buffer_load_dword v{vt}, v{vt + 1}, {sr(S_DBG, 4)}, 0 offen sc1")
    a("s_waitcnt vmcnt(0)")
    a(f"v_readfirstlane_b32 s{S_TMP + 1}, v{vt}")
    a(f"s_cmp_ge_u32 s{S_TMP + 1}, {target}")
    a(f"s_cbranch_scc1 {out}")
    if sleep:
        a(f"s_sleep {sleep}")
    a(f"s_sub_u32 s{S_TMP}, s{S_TMP}, 1")
    a(f"s_cmp_lg_u32 s{S_TMP}, 0")
    a(f"s_cbranch_scc1 {top}")
    a.label(out)


def wave0_wait(a, s_off, target, vt, sleep, limit=20000):
    top, out = spin_label_pair(a, "w0w")
    a(f"s_cmp_lg_u32 s{S_WAVE}, 0")
    a(f"s_cbranch_scc1 {out}")
    a(f"s_mov_b32 s{S_TMP}, {limit}")
    a.label(top)
    a(f"buffer_load_dword v{vt}, off, {sr(S_WS, 4)}, s{s_off} sc1")
    a("s_waitcnt vmcnt(0)")
    a(f"v_readfirstlane_b32 s{S_TMP + 1}, v{vt}")
    a(f"s_cmp_ge_u32 s{S_TMP + 1}, {target}")
    a(f"s_cbranch_scc1 {out}")
    if sleep:
        a(f"s_sleep {sleep}")
    a(f"s_sub_u32 s{S_TMP}, s{S_TMP}, 1")
    a(f"s_cmp_lg_u32 s{S_TMP}, 0")
    a(f"s_cbranch_scc1 {top}")
    a.label(out)


def mode_check(a, vt, fallback, expect=32):
    ok = a.newlabel("mode_ok")
    a(f"s_cmp_lg_u32 s{S_MODE}, 0")
    a(f"s_cbranch_scc1 {ok}")
    wait_ready(a, vt)
    a(f"v_and_b32 v{vt + 1}, 63, v0")
    a(f"v_lshlrev_b32 v{vt + 1}, 2, v{vt + 1}")
    a(f"buffer_load_dword v{vt}, v{vt + 1}, {sr(S_DBG, 4)}, 0 offen sc1")
    a(f"v_cmp_ne_u32 vcc, {expect}, v{vt}")
    a(f"s_and_b32 s{S_TMP}, vcc_lo, 0xff")
    a(f"s_cmp_lg_u32 s{S_TMP}, 0")
    a(f"s_cbranch_scc1 {fallback}")
    a.label(ok)


RSTAMPS = False
DSTAMPS = False


def dstamp(a, slot, role, first=False):
    if not DSTAMPS:
        return
    l = a.newlabel("dts")
    a(f"s_cmp_lg_u32 s{S_WAVE}, 0")
    a(f"s_cbranch_scc1 {l}")
    a(f"s_cmp_lg_u32 s{S_ROLE}, {role}")
    a(f"s_cbranch_scc1 {l}")
    if not first:
        a("s_memrealtime s[98:99]")
        a("s_waitcnt lgkmcnt(0)")
        a("v_mov_b32 v31, s98")
    else:
        a("v_mov_b32 v31, s96")
    a(f"buffer_store_dword v31, off, {sr(S_DBG, 4)}, 0 offset:{slot * 4}")
    a.label(l)

WS_RT = 0x4180000


def rstamp(a, slot, sreg=None):
    if not RSTAMPS:
        return
    l = a.newlabel("rts")
    a(f"s_cmp_lg_u32 s{S_WAVE}, {3 if slot >= 44 else 0}")
    a(f"s_cbranch_scc1 {l}")
    a("s_memrealtime s[98:99]")
    a(f"s_lshl_b32 s100, s{S_ROLE}, 8")
    a(f"s_add_u32 s100, s100, {hex(WS_RT + slot * 4)}")
    if sreg is not None:
        a(f"s_lshl_b32 s101, s{sreg}, 2")
        a("s_add_u32 s100, s100, s101")
    a("s_waitcnt lgkmcnt(0)")
    a("v_mov_b32 v31, s98")
    a(f"buffer_store_dword v31, off, {sr(S_WS, 4)}, s100")
    if slot == 0:
        a("v_mov_b32 v30, s94")
        a("v_mov_b32 v31, s93")
        a(f"buffer_store_dword v30, off, {sr(S_WS, 4)}, s100 offset:24")
        a(f"buffer_store_dword v31, off, {sr(S_WS, 4)}, s100 offset:28")
    a.label(l)


HEADER = """; @launch grid=(256,1,1) block=(256,1,1) lds={lds}
.amdgcn_target "amdgcn-amd-amdhsa--gfx950"
.text
.globl {name}
.p2align 8
.type {name},@function
"""

FOOTER = """.section .rodata,"a"
.p2align 6
.amdhsa_kernel {name}
  .amdhsa_next_free_vgpr 512
  .amdhsa_next_free_sgpr 102
  .amdhsa_accum_offset 256
  .amdhsa_group_segment_fixed_size 0
  .amdhsa_kernarg_size 120
  .amdhsa_user_sgpr_count 2
  .amdhsa_user_sgpr_kernarg_segment_ptr 1
  .amdhsa_system_sgpr_workgroup_id_x 1
.end_amdhsa_kernel
"""


def lanefn(a, dst, f, vtid, t0, t1, stmp, nbits=8):
    N = 1 << nbits
    c = [int(f(t)) for t in range(N)]
    for i in range(nbits):
        for m in range(N):
            if m >> i & 1:
                c[m] -= c[m ^ (1 << i)]
    first = True

    def acc(coef, treg):
        nonlocal first
        coef32 = coef & 0xFFFFFFFF
        small = -(1 << 23) <= coef < (1 << 23)
        if small and -16 <= coef <= 64:
            k = str(coef)
        else:
            a(f"s_mov_b32 s{stmp}, {hex(coef32)}")
            k = f"s{stmp}"
        if small:
            a(f"v_mad_i32_i24 v{dst}, v{treg}, {k}, v{dst}")
        else:
            a(f"v_mul_lo_u32 v{t1}, v{treg}, {k}")
            a(f"v_add_u32 v{dst}, v{dst}, v{t1}")

    a(f"v_mov_b32 v{dst}, {hex(c[0] & 0xFFFFFFFF)}")
    done = set([0])
    i = 0
    while i < nbits:
        ci = c[1 << i]
        if ci == 0:
            i += 1
            continue
        j = i
        while j + 1 < nbits and c[1 << (j + 1)] == ci * (1 << (j + 1 - i)):
            j += 1
        a(f"v_bfe_u32 v{t0}, v{vtid}, {i}, {j - i + 1}")
        acc(ci, t0)
        i = j + 1
    for m in range(1, N):
        if bin(m).count('1') < 2 or c[m] == 0:
            continue
        bits = [b for b in range(nbits) if m >> b & 1]
        a(f"v_bfe_u32 v{t0}, v{vtid}, {bits[0]}, 1")
        for b in bits[1:]:
            a(f"v_bfe_u32 v{t1}, v{vtid}, {b}, 1")
            a(f"v_and_b32 v{t0}, v{t0}, v{t1}")
        acc(c[m], t0)


def weave(a, main, fills):
    for x in fills.get(-1, []):
        a(x)
    for i, m in enumerate(main):
        a(m)
        for x in fills.get(i, []):
            a(x)


def spread(fills, lst, start, per=2):
    p = start
    i = 0
    while i < len(lst):
        fills.setdefault(p, []).extend(lst[i:i + per])
        i += per
        p += 1
    return p
```

```python
from asmlib import *
from layout import *
from common import *
from proj import *
from hrole import f32hex

L_G = 133120
L_RED = 0
F_LDS = L_G + 1024
S_TG, S_CG, S_SEG, S_XS, S_XM0, S_DELTA, S_FLO, S_HO, S_NLEFT, S_N = range(44, 54)
S_GW = 56
S_U = 60
LOG2E = 1.4426950408889634
WG_, WU_ = 256, 256 + 128
ACCG, ACCU = ACC0, ACC0 + 16
WO_, WD_ = 256, 168
ACCA, ACCB = 32, 48
RING, NRING = 64, 24
V_L16, V_HF2, V_RW, V_RR, V_OUT, V_GR, V_TO, V_TD, V_G = 14, 15, 16, 17, 18, 19, 20, 21, 22
FOPT = dict(ntg=6, fsc=0, fexp=0, fpf=0, fpoll=0, fhalf=1, fnr=16, fsw=54, glast=1, gwd=1)
FL_G = FL_MEM + 128


def ntg():
    return FOPT['ntg']


def f_index(a):
    a(f"s_sub_u32 s{S_T0}, s{S_ROLE}, 128")
    a(f"s_lshr_b32 s{S_TG}, s{S_T0}, 4")
    a(f"s_and_b32 s{S_CG}, s{S_T0}, 15")


def f_prologue(a):
    f_index(a)
    skip = a.newlabel("f0w_skip")
    make_srd(a, S_A, 'wg')
    make_srd(a, S_B, 'wu')
    make_srd(a, S_X, 'x')
    slab_consts(a, 2752)
    x_consts(a)
    a(f"s_mul_i32 s{S_WB}, s{S_WAVE}, {32 * 2752}")
    a(f"s_lshl_b32 s{S_T0}, s{S_CG}, 8")
    a(f"s_add_u32 s{S_WB}, s{S_WB}, s{S_T0}")
    a(f"s_lshl_b32 s{S_XS}, s{S_TG}, 15")
    a(f"s_lshl_b32 s{S_T0}, s{S_WAVE}, 13")
    a(f"s_add_u32 s{S_XS}, s{S_XS}, s{S_T0}")
    a(f"s_mul_i32 s{S_XM0}, s{S_WAVE}, {8 * XROW}")
    a(f"s_add_u32 s{S_XM0}, s{S_XM0}, {XB0}")
    a("s_waitcnt lgkmcnt(0)")
    a(f"s_cmp_gt_u32 s{S_CG}, 10")
    a(f"s_cbranch_scc1 {skip}")
    slabs = []
    for srd, dest in ((S_A, WG_), (S_B, WU_)):
        for sl in range(4):
            slabs.append(dict(srd=srd, stride=2752, row0=128 * sl, dest=dest + 32 * sl, perm=True))
    slab_load(a, slabs, pre=lambda: x_issue(a, S_XS, S_XM0))
    a.label(skip)


def f_hidden(a):
    skip = a.newlabel("f0_skip")
    a(f"s_cmp_gt_u32 s{S_CG}, 10")
    a(f"s_cbranch_scc1 {skip}")
    F(a, V_ST0, lambda l, w: w * 2048 + l * 16)
    a(f"s_lshl_b32 s{S_T0}, s{S_CG}, 13")
    a(f"v_add_u32 v{V_ST0}, s{S_T0}, v{V_ST0}")
    a(f"s_lshl_b32 s{S_T0}, s{S_CG}, 2")
    a(f"s_add_u32 s{S_T0}, s{S_T0}, s{S_WAVE}")
    nomask = a.newlabel("f0_nomask")
    a(f"s_cmp_lt_u32 s{S_T0}, 43")
    a(f"s_cbranch_scc1 {nomask}")
    a(f"v_mov_b32 v{V_ST0}, {hex(OOB)}")
    a(f"v_mov_b32 v{V_FLAG}, {hex(OOB)}")
    a.label(nomask)
    a(f"s_mov_b32 s{S_SEG}, s{S_TG}")
    if ntg() == 8:
        a(f"s_mov_b32 s{S_NLEFT}, 8")
    else:
        a(f"s_cmp_lt_u32 s{S_TG}, 4")
        a(f"s_cselect_b32 s{S_NLEFT}, 11, 10")
    a(f"s_mov_b32 s{S_FLO}, {hex(WS_DBG)}")
    if POPT['nodum']:
        a(f"v_mov_b32 v{V_FLAG2}, {hex(OOB)}")
    a(f"s_mov_b32 s{S_DELTA}, {XB1 - XB0}")
    a(f"v_add_u32 v{V_XR}, {XB0}, v{V_XR}")
    a(f"s_mov_b32 s{S_U}, {f32hex(-LOG2E)}")
    top = a.newlabel("f0")
    a.label(top)
    a.need("xs")
    a("s_barrier")
    a(f"s_add_u32 s{S_XM0}, s{S_XM0}, s{S_DELTA}")
    a(f"s_add_u32 s{S_T1}, s{S_SEG}, {ntg()}")
    a(f"s_min_u32 s{S_T1}, s{S_T1}, 63")
    a(f"s_lshl_b32 s{S_XS}, s{S_T1}, 15")
    a(f"s_lshl_b32 s{S_T1}, s{S_WAVE}, 13")
    a(f"s_add_u32 s{S_XS}, s{S_XS}, s{S_T1}")
    x_issue(a, S_XS, S_XM0)

    def flag_prev():
        a.need("st")
        flag_add(a, S_FLO)

    proj_mfmas(a, [(ACCG, WG_, True), (ACCU, WU_, True)], {12: flag_prev})
    a(f"s_mul_i32 s{S_HO}, s{S_SEG}, {HF_STRIDE}")
    a(f"s_add_u32 s{S_HO}, s{S_HO}, {hex(WS_HF)}")
    a(f"s_lshl_b32 s{S_T0}, s{S_SEG}, 7")
    a(f"s_add_u32 s{S_FLO}, s{S_T0}, {hex(WS_FLAG + FL_HF)}")
    for r in range(16):
        a(f"v_mul_f32 v{ACCG + r}, s{S_U}, v{ACCG + r}")
    for r in range(16):
        a(f"v_exp_f32 v{ACCG + r}, v{ACCG + r}")
    for r in range(16):
        a(f"v_add_f32 v{ACCG + r}, 1.0, v{ACCG + r}")
    for r in range(16):
        a(f"v_rcp_f32 v{ACCG + r}, v{ACCG + r}")
    for r in range(16):
        a(f"v_mul_f32 v{ACCU + r}, v{ACCU + r}, v{ACCG + r}")
    pack16(a, ACCU)
    for half in range(2):
        a(f"buffer_store_dwordx4 {vr(ACCU + 4 * half, 4)}, v{V_ST0}, {sr(S_WS, 4)}, s{S_HO} offen "
          f"offset:{half * 1024} sc1", tag="st")
    a(f"v_add_u32 v{V_XR}, s{S_DELTA}, v{V_XR}")
    a(f"s_sub_u32 s{S_DELTA}, 0, s{S_DELTA}")
    a(f"s_add_u32 s{S_SEG}, s{S_SEG}, {ntg()}")
    a(f"s_sub_u32 s{S_NLEFT}, s{S_NLEFT}, 1")
    a(f"s_cmp_lg_u32 s{S_NLEFT}, 0")
    a(f"s_cbranch_scc1 {top}")
    a.need("st")
    a(f"buffer_atomic_add v{V_ONE}, v{V_FLAG}, {sr(S_WS, 4)}, s{S_FLO} offen sc1")
    a("s_waitcnt vmcnt(0)")
    a.label(skip)
    a("s_barrier")


def f_gate(a):
    make_srd(a, S_X, 'x')
    make_srd(a, S_GW, 'gw')
    vGW, vGX, vGL = 14, 15, 16
    GWF, XFR = 128, 256
    F(a, vGW, lambda l, w: (l >> 5) * 16)
    F(a, vGX, lambda l, w: (l & 31) * 1024 + (l >> 5) * 16)
    F(a, vGL, lambda l, w: L_G + w * 256 + (l & 31) * 4)
    a(f"s_mov_b32 s{S_U}, {f32hex(-LOG2E)}")
    for ks in range(32):
        a(f"buffer_load_dwordx4 {vr(GWF + 4 * ks, 4)}, v{vGW}, {sr(S_GW, 4)}, 0 offen offset:{ks * 32}")
    for i in range(2):
        a(f"s_lshl_b32 s{S_T0}, s{S_WAVE}, 4")
        a(f"s_add_u32 s{S_T0}, s{S_T0}, s{S_TG}")
        a(f"s_add_u32 s{S_T0}, s{S_T0}, {8 * i}")
        a(f"s_lshl_b32 s{S_T0}, s{S_T0}, 15")
        for ks in range(32):
            a(f"buffer_load_dwordx4 {ur(XFR + 4 * ks, 4)}, v{vGX}, {sr(S_X, 4)}, s{S_T0} offen offset:{ks * 32}")
        for ks in range(32):
            c = "0" if ks == 0 else vr(ACC0, 16)
            a(f"v_mfma_f32_32x32x16_bf16 {vr(ACC0, 16)}, {vr(GWF + 4 * ks, 4)}, {ur(XFR + 4 * ks, 4)}, {c}")
        a(f"v_mul_f32 v{ACC0}, s{S_U}, v{ACC0}")
        a(f"v_exp_f32 v{ACC0}, v{ACC0}")
        a(f"v_add_f32 v{ACC0}, 1.0, v{ACC0}")
        a(f"v_rcp_f32 v{ACC0}, v{ACC0}")
        a(f"ds_write_b32 v{vGL}, v{ACC0} offset:{i * 128}")
    a("s_waitcnt lgkmcnt(0)")


def g_role(a):
    make_srd(a, S_X, 'x')
    make_srd(a, S_GW, 'gw')
    vGW, vGX, vGO = 14, 15, 16
    GWF, XFR = 128, 256
    F(a, vGW, lambda l, w: (l >> 5) * 16)
    F(a, vGX, lambda l, w: (l & 31) * 1024 + (l >> 5) * 16)
    F(a, vGO, lambda l, w: l * 4 if l < 32 else OOB)
    lane0_offset(a, V_FLAG)
    a(f"v_mov_b32 v{V_ONE}, 1")
    a(f"s_mov_b32 s{S_U}, {f32hex(-LOG2E)}")
    a(f"s_sub_u32 s{S_SEG}, s{S_ROLE}, 224")
    a(f"s_lshl_b32 s{S_SEG}, s{S_SEG}, 1")
    a(f"s_add_u32 s{S_SEG}, s{S_SEG}, s{S_WAVE}")
    a(f"s_lshl_b32 s{S_XS}, s{S_SEG}, 15")
    a(f"s_lshl_b32 s{S_HO}, s{S_SEG}, 7")
    a(f"s_add_u32 s{S_HO}, s{S_HO}, {hex(WS_G)}")
    a(f"s_mov_b32 s{S_FLO}, {hex(WS_FLAG + FL_G)}")
    a("s_waitcnt lgkmcnt(0)")
    idle, report = a.newlabel("g_idle"), a.newlabel("g_report")
    a(f"s_cmp_ge_u32 s{S_WAVE}, 2")
    a(f"s_cbranch_scc1 {idle}")
    for ks in range(32):
        a(f"buffer_load_dwordx4 {vr(GWF + 4 * ks, 4)}, v{vGW}, {sr(S_GW, 4)}, 0 offen offset:{ks * 32}")
        a(f"buffer_load_dwordx4 {ur(XFR + 4 * ks, 4)}, v{vGX}, {sr(S_X, 4)}, s{S_XS} offen offset:{ks * 32}")
    for ks in range(32):
        c = "0" if ks == 0 else vr(ACC0, 16)
        a(f"v_mfma_f32_32x32x16_bf16 {vr(ACC0, 16)}, {vr(GWF + 4 * ks, 4)}, {ur(XFR + 4 * ks, 4)}, {c}")
    a(f"v_mul_f32 v{ACC0}, s{S_U}, v{ACC0}")
    a(f"v_exp_f32 v{ACC0}, v{ACC0}")
    a(f"v_add_f32 v{ACC0}, 1.0, v{ACC0}")
    a(f"v_rcp_f32 v{ACC0}, v{ACC0}")
    a(f"buffer_store_dword v{ACC0}, v{vGO}, {sr(S_WS, 4)}, s{S_HO} offen sc1")
    a("s_waitcnt vmcnt(0)")
    a.label(idle)
    a("s_barrier")
    a(f"s_cmp_lg_u32 s{S_WAVE}, 0")
    a(f"s_cbranch_scc1 {report}")
    a(f"buffer_atomic_add v{V_ONE}, v{V_FLAG}, {sr(S_WS, 4)}, s{S_FLO} offen sc1")
    a.label(report)


def g_index(a):
    a(f"s_and_b32 s{S_CG}, s{S_ROLE}, 15")
    a(f"s_bfe_u32 s{S_TG}, s{S_ROLE}, 0x10004")
    a(f"s_add_u32 s{S_TG}, s{S_TG}, {2 * (63 - FOPT['fsw'])}")


def sleepy_wait(a, off, target, sleep):
    a(f"s_mov_b32 s{S_U}, {hex(off)}")
    wave0_wait(a, S_U, target, V_T0, sleep, limit=0x40000)
    a("s_barrier")


def f_gate_wait(a):
    a(f"s_mov_b32 s{S_U}, {hex(WS_FLAG + FL_G)}")
    poll_ge(a, S_U, 32, V_T0)


def colbyte(l):
    G, cc = l >> 4, l & 3
    return 2 * (16 * (cc & 1) + 8 * (G & 1) + 4 * (cc >> 1))


def f_weights(a):
    make_srd(a, S_A, 'wo')
    make_srd(a, S_B, 'wd')
    make_srd(a, S_C, 'out')
    F(a, V_WG, lambda l, w: (l >> 2) * 1024 + (l & 3) * 16)
    F(a, V_TO, lambda l, w: w * 32768 + (8 * (l >> 5) + 2 * ((l & 15) >> 2)) * 64 + colbyte(l))
    F(a, V_TD, lambda l, w: w * 32768 + (8 * (l >> 5) + ((l & 15) >> 2)) * 64 + colbyte(l))
    sO, sD, sM = S_U + 1, S_U + 2, S_U + 3
    a(f"s_lshl_b32 s{S_T0}, s{S_CG}, 6")
    a(f"s_lshl_b32 s{sO}, s{S_WAVE}, 20")
    a(f"s_add_u32 s{sO}, s{sO}, s{S_T0}")
    a(f"s_mul_i32 s{sD}, s{S_WAVE}, {352 * 1024}")
    a(f"s_add_u32 s{sD}, s{sD}, s{S_T0}")
    a(f"s_lshl_b32 s{sM}, s{S_WAVE}, 15")
    slabs = [('d', sl) for sl in range(3)] + [('o', i) for i in range(8)]

    def issue(n):
        kind, i = slabs[n]
        slot = n % 4
        for k in range(6 if (kind, i) == ('d', 2) else 8):
            base, srd = (sD, S_B) if kind == 'd' else (sO, S_A)
            a(f"s_add_u32 s{S_T0}, s{base}, {hex((128 * i + 16 * k) * 1024)}")
            a(f"s_add_u32 m0, s{sM}, {slot * 8192 + k * 1024}")
            a(f"buffer_load_dwordx4 v{V_WG}, {sr(srd, 4)}, s{S_T0} offen lds", tag=f"ws{slot}")

    for n in range(4):
        issue(n)
    for n, (kind, i) in enumerate(slabs):
        slot = n % 4
        a.need(f"ws{slot}")
        if kind == 'd':
            for ks in range(6 if i == 2 else 8):
                for p in range(2):
                    a(f"ds_read_b64_tr_b16 {vr(WD_ + 4 * (8 * i + ks) + 2 * p, 2)}, v{V_TD} "
                      f"offset:{slot * 8192 + (16 * ks + 4 * p) * 64}")
        else:
            for k in range(8):
                wp, c, a_ = k >> 2, (k >> 1) & 1, k & 1
                for p in range(2):
                    a(f"ds_read_b64_tr_b16 {ur(WO_ + 32 * i + 4 * k + 2 * p, 2)}, v{V_TO} "
                      f"offset:{slot * 8192 + (64 * wp + c + 32 * a_ + 16 * p) * 64}")
        a("s_waitcnt lgkmcnt(0)")
        if n + 4 < len(slabs):
            issue(n + 4)


def f_main(a, outmod='', last=64):
    F(a, V_L16, lambda l, w: OOB if FOPT['fexp'] == 1 and (l & 31) >= 8 else l * 16)
    F(a, V_HF2, lambda l, w: OOB if w == 3 else l * 16)
    F(a, V_RW, lambda l, w: L_RED + w * 4096 + l * 16)
    F(a, V_RR, lambda l, w: L_RED + (l & 3) * 1024 + (((l >> 2) & 1) * 32 + 8 * w + (l >> 3)) * 16)
    F(a, V_OUT, lambda l, w: (8 * w + (l >> 3)) * 1024 + (l & 7) * 8)
    F(a, V_GR, lambda l, w: (L_G if ntg() == 8 else 0) + (l & 31) * 4)
    a(f"s_lshl_b32 s{S_T0}, s{S_CG}, 6")
    a(f"v_add_u32 v{V_OUT}, s{S_T0}, v{V_OUT}")
    V_PFA, V_PFD = 160, 161
    if FOPT['fpf']:
        if FOPT['fpf'] == 1:
            F(a, V_PFA, lambda l, w: w * 65536 + l * 64)
            a(f"s_lshl_b32 s{S_T0}, s{S_CG}, 12")
        else:
            F(a, V_PFA, lambda l, w: w * 65536 + (l >> 4) * 16384 + (l & 15) * 64)
            a(f"s_lshl_b32 s{S_T0}, s{S_CG}, 10")
        a(f"v_add_u32 v{V_PFA}, s{S_T0}, v{V_PFA}")
    a(f"s_mov_b32 s{S_N}, 0")
    a(f"s_mov_b32 s{S_DELTA}, 32768")
    a("s_barrier")
    top = a.newlabel("fm")
    a.label(top)
    sF, sH, sO, sX, sOut, sP = S_U, S_U + 1, S_U + 2, S_U + 3, S_U + 4, S_U + 5
    a(f"s_mul_i32 s{S_SEG}, s{S_N}, {ntg()}")
    a(f"s_add_u32 s{S_SEG}, s{S_SEG}, s{S_TG}")
    a(f"s_lshl_b32 s{S_T0}, s{S_SEG}, 7")
    a(f"s_add_u32 s{sF}, s{S_T0}, {hex(WS_FLAG + FL_HF)}")
    a(f"s_mul_i32 s{sH}, s{S_SEG}, {HF_STRIDE}")
    a(f"s_mul_i32 s{S_T0}, s{S_WAVE}, {22 * 1024}")
    a(f"s_add_u32 s{sH}, s{sH}, s{S_T0}")
    a(f"s_add_u32 s{sH}, s{sH}, {hex(WS_HF)}")
    a(f"s_lshl_b32 s{sO}, s{S_SEG}, 18")
    a(f"s_lshl_b32 s{S_T0}, s{S_WAVE}, 16")
    a(f"s_add_u32 s{sO}, s{sO}, s{S_T0}")
    a(f"s_add_u32 s{sO}, s{sO}, {hex(WS_OF)}")
    a(f"s_lshl_b32 s{sOut}, s{S_SEG}, 15")
    if FOPT['fpf']:
        a(f"s_lshl_b32 s{sP}, s{S_SEG}, 18")
        a(f"s_add_u32 s{sP}, s{sP}, {hex(WS_OF)}")
    if ntg() == 8:
        a(f"ds_read_b32 v{V_G}, v{V_GR}")
        a(f"v_add_u32 v{V_GR}, 128, v{V_GR}")
    else:
        a(f"s_lshl_b32 s{S_T0}, s{S_SEG}, 7")
        a(f"s_add_u32 s{S_T0}, s{S_T0}, {hex(WS_G)}")
        a(f"buffer_load_dword v{V_G}, v{V_GR}, {sr(S_WS, 4)}, s{S_T0} offen sc1")

    def stream(n, base, vaddr, mfma):
        def ld(i):
            if i % 4 == 0:
                a(f"s_add_u32 s{sX}, s{base}, {hex(i * 1024)}")
            a(f"buffer_load_dwordx4 {vr(RING + 4 * (i % NRING), 4)}, v{vaddr(i)}, {sr(S_WS, 4)}, s{sX} offen "
              f"offset:{(i & 3) * 1024}" + (" sc1" if FOPT['fsc'] else ""))
        for i in range(min(n, NRING)):
            ld(i)
        for i in range(n):
            mfma(i, vr(RING + 4 * (i % NRING), 4))
            if i + NRING < n:
                ld(i + NRING)

    poll_ge(a, sF, 43, V_T0)
    stream(22, sH, lambda i: V_HF2 if i >= 20 else V_L16,
           lambda i, r: a(f"v_mfma_f32_32x32x16_bf16 {vr(ACCB, 16)}, {vr(WD_ + 4 * i, 4)}, {r}, "
                          f"{'0' if i == 0 else vr(ACCB, 16)}"))
    a(f"s_lshl_b32 s{S_T0}, s{S_SEG}, 7")
    a(f"s_add_u32 s{sF}, s{S_T0}, {hex(WS_FLAG + FL_OF)}")
    rstamp(a, 24)
    poll_ge(a, sF, 32, V_T0)
    rstamp(a, 25)
    if FOPT['fpf']:
        a(f"buffer_load_dword v{V_PFD}, v{V_PFA}, {sr(S_WS, 4)}, s{sP} offen")
    if FOPT['fexp'] == 2:
        a("s_mov_b32 exec_lo, 0xff")
        a("s_mov_b32 exec_hi, 0xff")
    stream(64, sO, lambda i: V_L16,
           lambda i, r: a(f"v_mfma_f32_32x32x16_bf16 {vr(ACCA, 16)}, {ur(WO_ + 4 * i, 4)}, {r}, "
                          f"{'0' if i == 0 else vr(ACCA, 16)}"))
    if FOPT['fexp'] == 2:
        a("s_mov_b64 exec, -1")
    rstamp(a, 26)
    for r in range(16):
        a(f"v_sub_f32 v{ACCA + r}, v{ACCA + r}, v{ACCB + r}")
    for r in range(16):
        a(f"v_fma_f32 v{ACCA + r}, v{V_G}, v{ACCA + r}, v{ACCB + r}")
    for q in range(4):
        a(f"ds_write_b128 v{V_RW}, {vr(ACCA + 4 * q, 4)} offset:{q * 1024}")
    a("s_waitcnt lgkmcnt(0)")
    a("s_barrier")
    for v in range(4):
        a(f"ds_read_b128 {vr(RING + 4 * v, 4)}, v{V_RR} offset:{v * 4096}")
    for j in range(4):
        a(f"v_add_f32 v{RING + j}, v{RING + j}, v{RING + 4 + j}")
        a(f"v_add_f32 v{RING + 8 + j}, v{RING + 8 + j}, v{RING + 12 + j}")
    for j in range(4):
        a(f"v_add_f32 v{RING + j}, v{RING + j}, v{RING + 8 + j}")
    a(f"v_cvt_pk_bf16_f32 v{RING}, v{RING}, v{RING + 1}")
    a(f"v_cvt_pk_bf16_f32 v{RING + 1}, v{RING + 2}, v{RING + 3}")
    a(f"buffer_store_dwordx2 {vr(RING, 2)}, v{V_OUT}, {sr(S_C, 4)}, s{sOut} offen" + outmod)
    a(f"v_xor_b32 v{V_RW}, 16384, v{V_RW}")
    a(f"v_xor_b32 v{V_RR}, 16384, v{V_RR}")
    rstamp(a, 8, S_N)
    a(f"s_add_u32 s{S_N}, s{S_N}, 1")
    a(f"s_add_u32 s{S_T0}, s{S_SEG}, {ntg()}")
    a(f"s_cmp_lt_u32 s{S_T0}, {last}")
    a(f"s_cbranch_scc1 {top}")


def f_main2(a, outmod='', first=0):
    S_P, S_HALF = 54, 55
    QS, HS, WS_ = 1312, 640, 4 * 1312
    ACCA2, ACCB2 = 144, 128
    slots = [RING + 4 * i for i in range(20)] + [160, 164]
    slots = slots[:FOPT['fnr']]
    NR = len(slots)
    par = lambda l: (l >> 4) & 1
    a(f"s_lshr_b32 s{S_P}, s{S_TG}, 1")
    a(f"s_and_b32 s{S_HALF}, s{S_TG}, 1")
    F(a, V_L16, lambda l, w: par(l) * 1024 + (l >> 5) * 512 + (l & 15) * 16)
    a(f"s_lshl_b32 s{S_T0}, s{S_HALF}, 8")
    a(f"v_add_u32 v{V_L16}, s{S_T0}, v{V_L16}")
    a(f"v_mov_b32 v{V_HF2}, v{V_L16}")
    a(f"v_mov_b32 v{V_T0}, {hex(OOB)}")
    a(f"s_cmp_eq_u32 s{S_WAVE}, 3")
    a("s_cselect_b64 vcc, -1, 0")
    a(f"v_cndmask_b32 v{V_HF2}, v{V_HF2}, v{V_T0}, vcc")
    F(a, V_RW, lambda l, w: L_RED + w * WS_ + (l >> 5) * HS + (l & 31) * 16)
    F(a, V_RR, lambda l, w: L_RED + ((l >> 1) & 3) * QS + ((l >> 3) & 1) * HS + (4 * w + (l >> 4)) * 16 + (l & 1) * 8)
    F(a, V_OUT, lambda l, w: (4 * w + (l >> 4)) * 1024 + (((l >> 1) & 3) + 4 * ((l >> 3) & 1)) * 8 + (l & 1) * 4)
    a(f"s_lshl_b32 s{S_T0}, s{S_CG}, 6")
    a(f"s_lshl_b32 s{S_T1}, s{S_HALF}, 14")
    a(f"s_add_u32 s{S_T0}, s{S_T0}, s{S_T1}")
    a(f"v_add_u32 v{V_OUT}, s{S_T0}, v{V_OUT}")
    F(a, V_GR, lambda l, w: (l & 15) * 4)
    a(f"s_lshl_b32 s{S_T0}, s{S_HALF}, 6")
    a(f"v_add_u32 v{V_GR}, s{S_T0}, v{V_GR}")
    a(f"s_mov_b32 s{S_N}, {0 if first == 0 else 11}")
    a(f"s_add_u32 s{S_SEG}, s{S_P}, {first}")
    a("s_barrier")
    top = a.newlabel("fm")
    a.label(top)
    sF, sH, sO, sX, sOut = S_U, S_U + 1, S_U + 2, S_U + 3, S_U + 4
    a(f"s_lshl_b32 s{S_T0}, s{S_SEG}, 7")
    a(f"s_add_u32 s{sF}, s{S_T0}, {hex(WS_FLAG + FL_HF)}")
    a(f"s_mul_i32 s{sH}, s{S_SEG}, {HF_STRIDE}")
    a(f"s_mul_i32 s{S_T0}, s{S_WAVE}, {22 * 1024}")
    a(f"s_add_u32 s{sH}, s{sH}, s{S_T0}")
    a(f"s_add_u32 s{sH}, s{sH}, {hex(WS_HF)}")
    a(f"s_lshl_b32 s{sO}, s{S_SEG}, 18")
    a(f"s_lshl_b32 s{S_T0}, s{S_WAVE}, 16")
    a(f"s_add_u32 s{sO}, s{sO}, s{S_T0}")
    a(f"s_add_u32 s{sO}, s{sO}, {hex(WS_OF)}")
    a(f"s_lshl_b32 s{sOut}, s{S_SEG}, 15")
    a(f"s_lshl_b32 s{S_T0}, s{S_SEG}, 7")
    a(f"s_add_u32 s{S_T0}, s{S_T0}, {hex(WS_G)}")
    a(f"buffer_load_dword v{V_G}, v{V_GR}, {sr(S_WS, 4)}, s{S_T0} offen sc1")

    def stream(n, base, vaddr, wreg, acc):
        def ld(i):
            if i % 2 == 0:
                a(f"s_add_u32 s{sX}, s{base}, {hex(i * 2048)}")
            a(f"buffer_load_dwordx4 {vr(slots[i % NR], 4)}, v{vaddr(i)}, {sr(S_WS, 4)}, s{sX} offen "
              f"offset:{(i & 1) * 2048}" + (" sc1" if FOPT['fsc'] else ""))
        for i in range(min(n, NR)):
            ld(i)
        for i in range(n):
            for p in range(2):
                a(f"v_mfma_f32_32x32x16_bf16 {vr(acc[p], 16)}, {wreg(2 * i + p)}, {vr(slots[i % NR], 4)}, "
                  f"{'0' if i == 0 else vr(acc[p], 16)}")
            if i + NR < n:
                ld(i + NR)

    def keep_parity(acc, acc2):
        a("s_mov_b32 exec_lo, 0xffff0000")
        a("s_mov_b32 exec_hi, 0xffff0000")
        for r in range(0, 16, 2):
            a(f"v_mov_b64 {vr(acc + r, 2)}, {vr(acc2 + r, 2)}")
        a("s_mov_b64 exec, -1")

    poll_ge(a, sF, 43, V_T0)
    stream(11, sH, lambda i: V_HF2 if i >= 10 else V_L16, lambda k: vr(WD_ + 4 * k, 4), (ACCB, ACCB2))
    keep_parity(ACCB, ACCB2)
    a(f"s_lshl_b32 s{S_T0}, s{S_SEG}, 7")
    a(f"s_add_u32 s{sF}, s{S_T0}, {hex(WS_FLAG + FL_OF)}")
    rstamp(a, 24)
    if FOPT['fpoll'] == 0:
        poll_ge(a, sF, 32, V_T0)
    else:
        skip = a.newlabel("fp_skip")
        a(f"s_cmp_lg_u32 s{S_WAVE}, 0")
        a(f"s_cbranch_scc1 {skip}")
        poll_deep(a, sF, 32, 24, FOPT['fpoll'])
        a.label(skip)
        a("s_barrier")
    rstamp(a, 25)
    stream(32, sO, lambda i: V_L16, lambda k: ur(WO_ + 4 * k, 4), (ACCA, ACCA2))
    rstamp(a, 26)
    keep_parity(ACCA, ACCA2)
    for r in range(16):
        a(f"v_sub_f32 v{ACCA + r}, v{ACCA + r}, v{ACCB + r}")
    for r in range(16):
        a(f"v_fma_f32 v{ACCA + r}, v{V_G}, v{ACCA + r}, v{ACCB + r}")
        if r & 3 == 3:
            a(f"ds_write_b128 v{V_RW}, {vr(ACCA + r - 3, 4)} offset:{(r >> 2) * QS}")
    a("s_waitcnt lgkmcnt(0)")
    a("s_barrier")
    for v in range(4):
        for p in range(2):
            a(f"ds_read_b64 {vr(RING + 4 * v + 2 * p, 2)}, v{V_RR} offset:{v * WS_ + p * 256}")
    for step_ in (2, 4, 8):
        for i in range(0, 16, 2 * step_):
            a(f"v_pk_add_f32 {vr(RING + i, 2)}, {vr(RING + i, 2)}, {vr(RING + i + step_, 2)}")
    a(f"v_cvt_pk_bf16_f32 v{RING}, v{RING}, v{RING + 1}")
    a(f"buffer_store_dword v{RING}, v{V_OUT}, {sr(S_C, 4)}, s{sOut} offen" + outmod)
    a(f"v_xor_b32 v{V_RW}, 32768, v{V_RW}")
    a(f"v_xor_b32 v{V_RR}, 32768, v{V_RR}")
    rstamp(a, 8, S_N)
    if RSTAMPS_CAP:
        a(f"s_add_u32 s{S_N}, s{S_N}, 1")
        a(f"s_min_u32 s{S_N}, s{S_N}, 15")
    a(f"s_add_u32 s{S_SEG}, s{S_SEG}, 3")
    a(f"s_cmp_lt_u32 s{S_SEG}, {63 if FOPT['glast'] else 64}")
    a(f"s_cbranch_scc1 {top}")


RSTAMPS_CAP = True
```

```python
from asmlib import *
from layout import *
from common import *
from proj import *

H_LDS = XB0 + XBUF
S_H, S_J, S_SEG, S_XS, S_XM0, S_DELTA, S_FLO, S_QO, S_KO, S_VO, S_NLEFT, S_XMD = range(44, 56)
S_U = 56
S_SC = 64
WQ, WK, WV = 256, 256 + 128, 128
ACCQ, ACCK, ACCV = ACC0, ACC0 + 16, ACC0 + 32
HOPT = dict(dpoll=1, d63=61, e3=10, e3p=5, e3q=1)
SCALE_LOG2E = 128 ** -0.5 * 1.4426950408889634

VM_KEY = [0, 1, 2, 3, 4, 5, 6, 7]


def f32hex(x):
    import struct
    return hex(struct.unpack('<I', struct.pack('<f', x))[0])


def wait_loaded(a, sleep):
    a(f"s_and_b32 s{S_U}, s{S_H}, 28")
    a(f"s_lshl_b32 s{S_U}, s{S_U}, 8")
    a(f"s_add_u32 s{S_U}, s{S_U}, {hex(WS_FLAG + FL_MEM + 256 + 4)}")
    wave0_wait(a, S_U, 1, 20, sleep)
    a("s_barrier")


def h_prologue(a, nper=3, hold=None, sleep=32, expect=32):
    make_srd(a, S_A, 'wq')
    make_srd(a, S_B, 'wk')
    make_srd(a, S_C, 'wv')
    make_srd(a, S_X, 'x')
    a(f"s_sub_u32 s{S_T0}, s{S_ROLE}, 32")
    if nper == 3:
        a(f"s_mul_i32 s{S_H}, s{S_T0}, 0xaaab")
        a(f"s_lshr_b32 s{S_H}, s{S_H}, 17")
        a(f"s_mul_i32 s{S_T1}, s{S_H}, 3")
        a(f"s_sub_u32 s{S_J}, s{S_T0}, s{S_T1}")
    else:
        a(f"s_lshr_b32 s{S_H}, s{S_T0}, 1")
        a(f"s_and_b32 s{S_J}, s{S_T0}, 1")
    slab_consts(a, 8192)
    x_consts(a)
    F(a, V_ST0, lambda l, w: w * 2048 + l * 16)
    F(a, V_ST1, lambda l, w: (w >> 1) * 4096 + (l & 1) * 2048 + (l >> 5) * 512 + (16 * (w & 1) + ((l & 31) >> 1)) * 16)
    a(f"s_lshl_b32 s{S_WB}, s{S_WAVE}, 18")
    a(f"s_lshl_b32 s{S_T0}, s{S_H}, 8")
    a(f"s_add_u32 s{S_WB}, s{S_WB}, s{S_T0}")
    a(f"s_lshl_b32 s{S_XS}, s{S_J}, 15")
    a(f"s_lshl_b32 s{S_T0}, s{S_WAVE}, 13")
    a(f"s_add_u32 s{S_XS}, s{S_XS}, s{S_T0}")
    a(f"s_mul_i32 s{S_XM0}, s{S_WAVE}, {8 * XROW}")
    a(f"s_add_u32 s{S_XM0}, s{S_XM0}, {XB0}")
    a("s_waitcnt lgkmcnt(0)")
    slabs = []
    for srd, dest, perm in ((S_B, WK, True), (S_C, WV, False), (S_A, WQ, True)):
        for sl in range(4):
            slabs.append(dict(srd=srd, stride=8192, row0=128 * sl, dest=dest + 32 * sl, perm=perm))
    pre = {}
    if hold is not None and hold >= 0:
        pre[hold] = lambda: wait_loaded(a, sleep)
    elif hold is not None:
        ready_flush(a, 20)
        wait_loaded(a, sleep)
    hooks = {0: lambda: ready_flush(a, 20, waited=True)}
    if HOPT['e3']:
        def probe():
            a("v_and_b32 v21, 63, v0")
            a("v_lshlrev_b32 v21, 2, v21")
            dbg_load(a, 20, 21)

        def early_kv():
            a(f"v_add_u32 v{V_XR}, {XB0}, v{V_XR}")
            proj_mfmas(a, [(ACCK, WK, True), (ACCV, WV, False)], {})
            ok, slow = a.newlabel("e3_ok"), a.newlabel("e3_slow")
            a(f"s_cmp_lg_u32 s{S_MODE}, 0")
            a(f"s_cbranch_scc1 {ok}")
            ready_total(a, 20, S_T1)
            a(f"s_cmp_lt_u32 s{S_T1}, 256")
            a(f"s_cbranch_scc1 {slow}")
            a(f"v_cmp_ne_u32 vcc, {expect}, v20")
            ticket_mismatch(a, S_T1)
            a(f"s_cmp_eq_u32 s{S_T1}, 0")
            a(f"s_cbranch_scc1 {ok}")
            a.label(slow)
            mode_check2(a, 20, "L_fallback", expect)
            a.label(ok)
            a(f"s_lshl_b32 s{S_T0}, s{S_J}, 5")
            a(f"s_add_u32 s{S_T0}, s{S_T0}, s{S_H}")
            a(f"s_lshl_b32 s{S_T0}, s{S_T0}, 13")
            a(f"s_add_u32 s{S_KO}, s{S_T0}, {hex(WS_KF)}")
            a(f"s_add_u32 s{S_VO}, s{S_T0}, {hex(WS_VF)}")
            a(f"s_lshl_b32 s{S_T0}, s{S_H}, 8")
            a(f"s_lshl_b32 s{S_T1}, s{S_J}, 2")
            a(f"s_add_u32 s{S_T0}, s{S_T0}, s{S_T1}")
            a(f"s_add_u32 s{S_FLO}, s{S_T0}, {hex(WS_FLAG + FL_KV)}")
            for acc, vo, so in ((ACCK, V_ST0, S_KO), (ACCV, V_ST1, S_VO)):
                pack16(a, acc)
                for half in range(2):
                    a(f"buffer_store_dwordx4 {vr(acc + 4 * half, 4)}, v{vo}, {sr(S_WS, 4)}, s{so} offen "
                      f"offset:{half * 1024} sc1", tag="st0")

        def early_flag():
            a.need("st0")
            a(f"buffer_atomic_add v{V_ONE}, v{V_FLAG}, {sr(S_WS, 4)}, s{S_FLO} offen sc1")
            rstamp(a, 42)

        hooks[HOPT['e3p']] = probe
        hooks[8] = early_kv
        hooks[HOPT['e3']] = early_flag
    slab_load(a, slabs, pre=lambda: x_issue(a, S_XS, S_XM0), hooks=hooks, prehooks=pre)


def h_phase1(a, pause=False, sleep=8, slow=0, nper=3):
    a(f"s_mov_b32 s{S_SEG}, s{S_J}")
    if nper == 3:
        a(f"s_cmp_eq_u32 s{S_J}, 0")
        a(f"s_cselect_b32 s{S_NLEFT}, 22, 21")
    else:
        a(f"s_mov_b32 s{S_NLEFT}, 32")
    qonly = HOPT['e3'] and HOPT['e3q']
    if not qonly:
        a(f"s_mov_b32 s{S_FLO}, {hex(WS_DBG)}")
    if POPT['nodum']:
        a(f"v_mov_b32 v{V_FLAG2}, " + (f"v{V_FLAG}" if qonly else hex(OOB)))
    a(f"s_mov_b32 s{S_DELTA}, {XB1 - XB0}")
    if not HOPT['e3']:
        a(f"v_add_u32 v{V_XR}, {XB0}, v{V_XR}")

    def next_tokens():
        a.need("xs")
        a("s_barrier")
        a(f"s_add_u32 s{S_XM0}, s{S_XM0}, s{S_DELTA}")
        a(f"s_add_u32 s{S_T1}, s{S_SEG}, {nper}")
        a(f"s_min_u32 s{S_T1}, s{S_T1}, 63")
        a(f"s_lshl_b32 s{S_XS}, s{S_T1}, 15")
        a(f"s_lshl_b32 s{S_T1}, s{S_WAVE}, 13")
        a(f"s_add_u32 s{S_XS}, s{S_XS}, s{S_T1}")
        x_issue(a, S_XS, S_XM0)

    def publish(which):
        a(f"s_lshl_b32 s{S_T0}, s{S_SEG}, 5")
        a(f"s_add_u32 s{S_T0}, s{S_T0}, s{S_H}")
        a(f"s_lshl_b32 s{S_T0}, s{S_T0}, 13")
        for c, so, ws in (('k', S_KO, WS_KF), ('v', S_VO, WS_VF), ('q', S_QO, WS_QF)):
            if c in which:
                a(f"s_add_u32 s{so}, s{S_T0}, {hex(ws)}")
        a(f"s_lshl_b32 s{S_T0}, s{S_H}, 8")
        a(f"s_lshl_b32 s{S_T1}, s{S_SEG}, 2")
        a(f"s_add_u32 s{S_T0}, s{S_T0}, s{S_T1}")
        a(f"s_add_u32 s{S_FLO}, s{S_T0}, {hex(WS_FLAG + FL_KV)}")
        for c, acc, vo, so in (('k', ACCK, V_ST0, S_KO), ('v', ACCV, V_ST1, S_VO), ('q', ACCQ, V_ST0, S_QO)):
            if c not in which:
                continue
            pack16(a, acc)
            for half in range(2):
                a(f"buffer_store_dwordx4 {vr(acc + 4 * half, 4)}, v{vo}, {sr(S_WS, 4)}, s{so} offen "
                  f"offset:{half * 1024} sc1", tag="st")
        a(f"v_add_u32 v{V_XR}, s{S_DELTA}, v{V_XR}")
        a(f"s_sub_u32 s{S_DELTA}, 0, s{S_DELTA}")
        a(f"s_add_u32 s{S_SEG}, s{S_SEG}, {nper}")
        a(f"s_sub_u32 s{S_NLEFT}, s{S_NLEFT}, 1")

    if qonly:
        next_tokens()
        proj_mfmas(a, [(ACCQ, WQ, True)], {})
        publish('q')
    top = a.newlabel("hp1")
    a.label(top)
    next_tokens()

    def flag_prev():
        a.need("st")
        flag_add(a, S_FLO)
        rstamp(a, 16, S_NLEFT)

    proj_mfmas(a, [(ACCK, WK, True), (ACCV, WV, False), (ACCQ, WQ, True)], {12: flag_prev})
    publish('kvq')
    if slow:
        a(f"s_sleep {slow}")
    assert not pause
    a(f"s_cmp_lg_u32 s{S_NLEFT}, 0")
    a(f"s_cbranch_scc1 {top}")
    a.need("st")
    a(f"buffer_atomic_add v{V_ONE}, v{V_FLAG}, {sr(S_WS, 4)}, s{S_FLO} offen sc1")


QF_, KF_, VF_ = 32, 64, 96
SA, MASK, SM = 128, 144, 160
KMF, VMF = 176, 208
PT, PM = 224, 232
V_L16, V_KML, V_VML, V_MX, V_SUM, V_TMP = 14, 15, 16, 17, 18, 19
OA = 32


def h2_prologue(a):
    a(f"s_sub_u32 s{S_H}, s{S_ROLE}, 96")
    a(f"s_mov_b32 s{S_J}, 0")
    lane0_offset(a, V_FLAG)
    a(f"v_mov_b32 v{V_ONE}, 1")


def h_phase2(a, stride=12):
    F(a, V_L16, lambda l, w: l * 16)
    F(a, V_KML, lambda l, w: (VM_KEY[l & 7] * 256 + (l >> 5) * 16) if (l & 31) < 8 else OOB)
    F(a, V_VML, lambda l, w: (l & 31) * 16 + (l >> 5) * 8)
    a(f"v_and_b32 v{V_T0}, 31, v0")
    a(f"v_bfe_u32 v{V_T1}, v0, 5, 1")
    a(f"v_lshlrev_b32 v{V_T1}, 2, v{V_T1}")
    a(f"v_sub_u32 v{V_TMP}, v{V_T0}, v{V_T1}")
    a(f"v_mov_b32 v{V_T0}, 0")
    a(f"v_mov_b32 v{V_T1}, {f32hex(-1e30)}")
    for r in range(16):
        a(f"v_cmp_le_i32 vcc, {8 * (r >> 2) + (r & 3)}, v{V_TMP}")
        a(f"v_cndmask_b32 v{MASK + r}, v{V_T1}, v{V_T0}, vcc")
    for i in range(4):
        a(f"v_mov_b32 v{VMF + 4 * i + 2}, 0")
        a(f"v_mov_b32 v{VMF + 4 * i + 3}, 0")
    a(f"v_mov_b32 v{PM + 2}, 0")
    a(f"v_mov_b32 v{PM + 3}, 0")
    a(f"s_mov_b32 s{S_SC}, {f32hex(SCALE_LOG2E)}")
    a(f"s_lshl_b32 s{S_SEG}, s{S_J}, 2")
    a(f"s_add_u32 s{S_SEG}, s{S_SEG}, s{S_WAVE}")
    top, done = a.newlabel("hp2"), a.newlabel("hp2_done")
    a.label(top)
    a(f"s_cmp_ge_u32 s{S_SEG}, 64")
    a(f"s_cbranch_scc1 {done}")
    sFL, sQ, sK, sV, sKM, sVM, sO, sM = range(S_U, S_U + 8)
    a(f"s_lshl_b32 s{S_T0}, s{S_H}, 8")
    a(f"s_lshl_b32 s{S_T1}, s{S_SEG}, 2")
    a(f"s_add_u32 s{sFL}, s{S_T0}, s{S_T1}")
    a(f"s_add_u32 s{sFL}, s{sFL}, {hex(WS_FLAG + FL_KV)}")
    a(f"s_add_u32 s{sM}, s{S_T0}, {hex(WS_FLAG + FL_MEM)}")
    a(f"s_lshl_b32 s{S_T0}, s{S_SEG}, 5")
    a(f"s_add_u32 s{S_T0}, s{S_T0}, s{S_H}")
    a(f"s_lshl_b32 s{S_T1}, s{S_T0}, 13")
    a(f"s_add_u32 s{sQ}, s{S_T1}, {hex(WS_QF)}")
    a(f"s_add_u32 s{sK}, s{S_T1}, {hex(WS_KF)}")
    a(f"s_add_u32 s{sV}, s{S_T1}, {hex(WS_VF)}")
    a(f"s_add_u32 s{sO}, s{S_T1}, {hex(WS_OF)}")
    a(f"s_lshl_b32 s{S_T1}, s{S_T0}, 11")
    a(f"s_add_u32 s{sKM}, s{S_T1}, {hex(WS_KM)}")
    a(f"s_add_u32 s{sVM}, s{S_T1}, {hex(WS_VM)}")
    if HOPT['e3']:
        a(f"s_cmp_lt_u32 s{S_SEG}, 3")
        a(f"s_cselect_b32 s{S_SC + 1}, 8, 4")
        poll_ge(a, sFL, S_SC + 1, V_TMP, target_is_sgpr=True)
    else:
        poll_ge(a, sFL, 4, V_TMP)

    def ld(base, so, n):
        for i in range(n):
            if i == 4:
                a(f"s_add_u32 s{S_T0}, s{so}, 4096")
            a(f"buffer_load_dwordx4 {vr(base + 4 * i, 4)}, v{V_L16}, {sr(S_WS, 4)}, s{so if i < 4 else S_T0} offen "
              f"offset:{(i & 3) * 1024} sc1")

    ld(KF_, sK, 8)
    ld(QF_, sQ, 8)
    ld(VF_, sV, 8)
    for k in range(8):
        c = vr(MASK, 16) if k == 0 else vr(SA, 16)
        a(f"v_mfma_f32_32x32x16_bf16 {vr(SA, 16)}, {vr(KF_ + 4 * k, 4)}, {vr(QF_ + 4 * k, 4)}, {c}")
    a(f"v_max3_f32 v{V_MX}, v{SA}, v{SA + 1}, v{SA + 2}")
    for r in range(3, 15, 2):
        a(f"v_max3_f32 v{V_MX}, v{V_MX}, v{SA + r}, v{SA + r + 1}")
    a(f"v_max_f32 v{V_MX}, v{V_MX}, v{SA + 15}")
    def mem_loads(**kw):
        for k in range(8):
            a(f"buffer_load_dwordx4 {vr(KMF + 4 * k, 4)}, v{V_KML}, {sr(S_WS, 4)}, s{sKM} offen offset:{k * 32} sc1", **kw)
        for t in range(4):
            a(f"buffer_load_dwordx2 {vr(VMF + 4 * t, 2)}, v{V_VML}, {sr(S_WS, 4)}, s{sVM} offen offset:{t * 512} sc1", **kw)

    rstamp(a, 44)
    if not HOPT['dpoll']:
        poll_ge(a, sM, S_SEG, V_TMP, target_is_sgpr=True, strict=True)
        rstamp(a, 45)
        mem_loads()
    else:
        sT = S_SC + 1
        a(f"s_cmp_eq_u32 s{S_SEG}, 61")
        a(f"s_cselect_b32 s{sT}, 59, 60")
        if HOPT['d63'] != 60:
            a(f"s_cmp_eq_u32 s{S_SEG}, 63")
            a(f"s_cselect_b32 s{sT}, {HOPT['d63']}, s{sT}")
        a(f"s_cmp_ge_u32 s{S_SEG}, 61")
        a(f"s_cselect_b32 s{sT}, s{sT}, s{S_SEG}")
        poll_ge(a, sM, sT, V_TMP, target_is_sgpr=True, strict=True)
        again, have = a.newlabel("hp2_again"), a.newlabel("hp2_have")
        a(f"s_mov_b32 s{S_TMP}, 0x200000")
        a.label(again)
        mem_loads(nowait=True)
        a("s_waitcnt vmcnt(0)")
        a(f"s_cmp_lt_u32 s{S_SEG}, 61")
        a(f"s_cbranch_scc1 {have}")
        words = [KMF + i for i in range(32)] + [VMF + 4 * t + i for t in range(4) for i in range(2)]
        a(f"v_max3_u32 v{V_TMP}, v{words[0]}, v{words[1]}, v{words[2]}")
        a(f"v_max3_u32 v{V_SUM}, v{words[3]}, v{words[4]}, v{words[5]}")
        rest = words[6:]
        for i in range(0, len(rest), 2):
            d = V_SUM if i & 2 else V_TMP
            a(f"v_max3_u32 v{d}, v{d}, v{rest[i]}, v{rest[i + 1]}")
        a(f"v_max_u32 v{V_TMP}, v{V_TMP}, v{V_SUM}")
        a(f"v_cmp_eq_u32 vcc, -1, v{V_TMP}")
        a(f"s_sub_u32 s{S_TMP}, s{S_TMP}, 1")
        a(f"s_cbranch_scc1 {have}")
        a(f"s_cbranch_vccnz {again}")
        a.label(have)
        rstamp(a, 45)
    for k in range(8):
        c = "0" if k == 0 else vr(SM, 16)
        a(f"v_mfma_f32_32x32x16_bf16 {vr(SM, 16)}, {vr(KMF + 4 * k, 4)}, {vr(QF_ + 4 * k, 4)}, {c}")
    a(f"v_max3_f32 v{V_MX}, v{V_MX}, v{SM}, v{SM + 1}")
    a(f"v_max3_f32 v{V_MX}, v{V_MX}, v{SM + 2}, v{SM + 3}")
    a(f"v_mov_b32 v{V_TMP}, v{V_MX}")
    a(f"v_permlane32_swap_b32 v{V_MX}, v{V_TMP}")
    a(f"v_max_f32 v{V_MX}, v{V_MX}, v{V_TMP}")
    a(f"v_mul_f32 v{V_MX}, s{S_SC}, v{V_MX}")
    sv = [SA + r for r in range(16)] + [SM + r for r in range(4)]
    for r in sv:
        a(f"v_fma_f32 v{r}, v{r}, s{S_SC}, -v{V_MX}")
    for r in sv:
        a(f"v_exp_f32 v{r}, v{r}")
    a(f"v_add_f32 v{V_SUM}, v{sv[0]}, v{sv[1]}")
    a(f"v_add_f32 v{V_TMP}, v{sv[2]}, v{sv[3]}")
    for i in range(4, 20, 2):
        a(f"v_add_f32 v{V_SUM}, v{V_SUM}, v{sv[i]}")
        a(f"v_add_f32 v{V_TMP}, v{V_TMP}, v{sv[i + 1]}")
    a(f"v_add_f32 v{V_SUM}, v{V_SUM}, v{V_TMP}")
    a(f"v_mov_b32 v{V_TMP}, v{V_SUM}")
    a(f"v_permlane32_swap_b32 v{V_SUM}, v{V_TMP}")
    a(f"v_add_f32 v{V_SUM}, v{V_SUM}, v{V_TMP}")
    a(f"v_rcp_f32 v{V_SUM}, v{V_SUM}")
    for r in sv:
        a(f"v_mul_f32 v{r}, v{r}, v{V_SUM}")
    for i in range(8):
        a(f"v_cvt_pk_bf16_f32 v{PT + i}, v{SA + 2 * i}, v{SA + 2 * i + 1}")
    for i in range(2):
        a(f"v_cvt_pk_bf16_f32 v{PM + i}, v{SM + 2 * i}, v{SM + 2 * i + 1}")
    for step in range(3):
        for t in range(4):
            d = vr(OA + 16 * t, 16)
            if step < 2:
                A_, B_ = vr(VF_ + 4 * (2 * t + step), 4), vr(PT + 4 * step, 4)
            else:
                A_, B_ = vr(VMF + 4 * t, 4), vr(PM, 4)
            a(f"v_mfma_f32_32x32x16_bf16 {d}, {A_}, {B_}, {'0' if step == 0 else d}")
    rstamp(a, 46)
    a(f"s_add_u32 s{S_T1}, s{sO}, 4096")
    for t in range(4):
        pack16(a, OA + 16 * t)
        for half in range(2):
            k = 2 * t + half
            a(f"buffer_store_dwordx4 {vr(OA + 16 * t + 4 * half, 4)}, v{V_L16}, {sr(S_WS, 4)}, "
              f"s{sO if k < 4 else S_T1} offen offset:{(k & 3) * 1024} sc1", tag="ost")
    a(f"s_lshl_b32 s{S_T0}, s{S_SEG}, 7")
    a(f"s_add_u32 s{S_T0}, s{S_T0}, {hex(WS_FLAG + FL_OF)}")
    a.need("ost")
    a(f"buffer_atomic_add v{V_ONE}, v{V_FLAG}, {sr(S_WS, 4)}, s{S_T0} offen sc1")
    rstamp(a, 47)
    a(f"s_add_u32 s{S_SEG}, s{S_SEG}, {stride}")
    a(f"s_branch {top}")
    a.label(done)
```

```python
from asmlib import *
from layout import *
from common import *

SLAB = 32768
NSLOT = 3
XROW = 1040
XB0 = 99328
XB1 = 0
XBUF = 32 * XROW

V_WG = 1
V_TA, V_TAH = 2, 3
V_TB, V_TBH = 4, 5
V_XG = 6
V_XR = 7
V_ST0, V_ST1 = 8, 9
V_FLAG = 10
V_ONE = 11
V_T0, V_T1 = 12, 13
V_FLAG2 = 23
POPT = dict(nodum=1)
ACC0 = 32
XF = 80
NXF = 8

S_A, S_B, S_C, S_X = 24, 28, 32, 36
S_WB = 40
S_WM = 41
S_T0 = 42
S_T1 = 43


def F(a, dst, f, vt=0):
    lanefn(a, dst, lambda t: f(t & 63, t >> 6), vt, V_T0, V_T1, S_T0)


def tr_addr(l, w, perm):
    G, lam = l >> 4, l & 15
    row = 8 * (G >> 1) + (lam >> 2)
    if perm:
        byte = 64 * w + 32 * (G & 1) + 16 * (lam & 1) + 8 * ((lam >> 1) & 1)
    else:
        byte = 64 * w + 32 * (G & 1) + 8 * (lam & 3)
    q16 = (byte >> 4) ^ (4 * (lam >> 2))
    return row * 256 + q16 * 16 + (byte & 8)


def slab_consts(a, stride):
    F(a, V_WG, lambda l, w: (l >> 4) * stride + (((l & 15) ^ (4 * (l >> 4))) * 16))
    F(a, V_TA, lambda l, w: tr_addr(l, w, True))
    F(a, V_TB, lambda l, w: tr_addr(l, w, False))
    a(f"v_add_u32 v{V_TAH}, 0x10000, v{V_TA}")
    a(f"v_add_u32 v{V_TBH}, 0x10000, v{V_TB}")
    a(f"s_lshl_b32 s{S_WM}, s{S_WAVE}, 13")


def slab_load(a, slabs, pre=None, hooks=None, prehooks=None):
    n = len(slabs)
    dist = NSLOT - 1

    def issue(i):
        sl = slabs[i]
        slot = i % NSLOT
        for k in range(8):
            a(f"s_add_u32 s{S_T0}, s{S_WB}, {hex((sl['row0'] + 4 * k) * sl['stride'])}")
            a(f"s_add_u32 m0, s{S_WM}, {slot * SLAB + k * 1024}")
            a(f"buffer_load_dwordx4 v{V_WG}, {sr(sl['srd'], 4)}, s{S_T0} offen lds", tag=f"slab{slot}")

    for i in range(min(dist, n)):
        issue(i)
    if pre:
        pre()
    for i in range(n):
        sl = slabs[i]
        slot = i % NSLOT
        a.need(f"slab{slot}")
        a("s_waitcnt lgkmcnt(0)")
        a("s_barrier")
        if prehooks and i in prehooks:
            prehooks[i]()
        if i + dist < n:
            issue(i + dist)
        if hooks and i in hooks:
            hooks[i]()
        lo, hi = (V_TA, V_TAH) if sl['perm'] else (V_TB, V_TBH)
        for ks in range(8):
            for p in range(2):
                off = slot * SLAB + ks * 4096 + p * 1024
                reg = lo
                if off >= 65536:
                    reg, off = hi, off - 65536
                a(f"ds_read_b64_tr_b16 {ur(sl['dest'] + 4 * ks + 2 * p, 2)}, v{reg} offset:{off}")
    a("s_waitcnt lgkmcnt(0)")


def lane0_offset(a, dst):
    a(f"v_and_b32 v{V_T0}, 63, v0")
    a(f"v_mov_b32 v{V_T1}, {hex(OOB)}")
    a(f"v_cmp_ne_u32 vcc, 0, v{V_T0}")
    a(f"v_cndmask_b32 v{dst}, v{V_T0}, v{V_T1}, vcc")


def x_consts(a):
    F(a, V_XG, lambda l, w: l * 16)
    F(a, V_XR, lambda l, w: (l & 31) * XROW + (l >> 5) * 16)
    lane0_offset(a, V_FLAG)
    a(f"v_mov_b32 v{V_ONE}, 1")


def x_issue(a, s_off, s_m0, tag="xs"):
    for i in range(8):
        if i == 4:
            a(f"s_add_u32 s{S_T0}, s{s_off}, 4096")
        so = s_off if i < 4 else S_T0
        a(f"s_add_u32 m0, s{s_m0}, {i * XROW - (i & 3) * 1024}")
        a(f"buffer_load_dwordx4 v{V_XG}, {sr(S_X, 4)}, s{so} offen offset:{(i & 3) * 1024} lds", tag=tag)


def proj_mfmas(a, tiles, hooks):
    def rd(ks):
        a(f"ds_read_b128 {vr(XF + 4 * (ks % NXF), 4)}, v{V_XR} offset:{ks * 32}")

    ahead = 4
    for ks in range(ahead):
        rd(ks)
    for ks in range(32):
        x = vr(XF + 4 * (ks % NXF), 4)
        for j, (acc, wb, w_is_a) in enumerate(tiles):
            wr = ur(wb + 4 * ks, 4)
            c = "0" if ks == 0 else vr(acc, 16)
            A_, B_ = (wr, x) if w_is_a else (x, wr)
            a(f"v_mfma_f32_32x32x16_bf16 {vr(acc, 16)}, {A_}, {B_}, {c}")
            if j == 0 and ks + ahead < 32:
                rd(ks + ahead)
        if ks in hooks:
            hooks[ks]()


def pack16(a, acc):
    for i in range(8):
        a(f"v_cvt_pk_bf16_f32 v{acc + i}, v{acc + 2 * i}, v{acc + 2 * i + 1}")


def poll_ge(a, s_off, target, vt, limit=0x400000, target_is_sgpr=False, strict=False):
    top, out = a.newlabel("poll"), a.newlabel("poll_out")
    a(f"s_mov_b32 s{S_TMP}, {hex(limit)}")
    a.label(top)
    a(f"buffer_load_dword v{vt}, off, {sr(S_WS, 4)}, s{s_off} sc1")
    a(f"v_readfirstlane_b32 s{S_TMP + 1}, v{vt}")
    t = f"s{target}" if target_is_sgpr else str(target)
    a(f"s_cmp_{'gt' if strict else 'ge'}_u32 s{S_TMP + 1}, {t}")
    a(f"s_cbranch_scc1 {out}")
    a(f"s_sub_u32 s{S_TMP}, s{S_TMP}, 1")
    a(f"s_cmp_lg_u32 s{S_TMP}, 0")
    a(f"s_cbranch_scc1 {top}")
    a.label(out)


def flag_add(a, s_off):
    if POPT['nodum']:
        a(f"buffer_atomic_add v{V_ONE}, v{V_FLAG2}, {sr(S_WS, 4)}, s{s_off} offen sc1")
        a(f"v_mov_b32 v{V_FLAG2}, v{V_FLAG}")
    else:
        a(f"buffer_atomic_add v{V_ONE}, v{V_FLAG}, {sr(S_WS, 4)}, s{s_off} offen sc1")


def poll_deep(a, s_off, target, vt, depth, limit=0x400000, gap=3):
    top, out = a.newlabel("polld"), a.newlabel("polld_out")
    ld = lambda i: a(f"buffer_load_dword v{vt + i}, off, {sr(S_WS, 4)}, s{s_off} sc1", nowait=True)
    a(f"s_mov_b32 s{S_TMP}, {hex(limit)}")
    for i in range(depth - 1):
        ld(i)
        if gap:
            a(f"s_sleep {gap}")
    a.label(top)
    for i in range(depth):
        ld((i + depth - 1) % depth)
        a(f"s_waitcnt vmcnt({depth - 1})")
        a(f"v_readfirstlane_b32 s{S_TMP + 1}, v{vt + i}", nowait=True)
        a(f"s_cmp_ge_u32 s{S_TMP + 1}, {target}")
        a(f"s_cbranch_scc1 {out}")
    a(f"s_sub_u32 s{S_TMP}, s{S_TMP}, 1")
    a(f"s_cmp_lg_u32 s{S_TMP}, 0")
    a(f"s_cbranch_scc1 {top}")
    a.label(out)
    a.clear(*[f"v{vt + i}" for i in range(depth)])
```

```python
import sys
from asmlib import *
from common import *
import chain, hrole, frole, common, proj
from build import build, KNAME

LDS = 163840
MOPT = dict(fdelay=2, hdelay=0, fsleep=32, pf=0, hslow=0, hsplit=0, wb=1, outsc=1, hhold=-2, fskip=-1, gdelay=0)


def gen(force_fallback=False, stamps=False):
    a = Asm()
    a.label(KNAME)
    entry2(a, lds_scratch=0, prefetch=bool(MOPT['pf']))
    expect = 33 if force_fallback else 32
    a(f"s_mov_b32 s{S_MODE}, 0")
    a(f"s_lshl_b32 s{S_ROLE}, s{S_XCC}, 5")
    a(f"s_add_u32 s{S_ROLE}, s{S_ROLE}, s{S_TICKET}")
    a(f"s_cmp_lt_u32 s{S_TICKET}, 32")
    a("s_cbranch_scc1 L_dispatch")
    ready_flush(a, 2)
    wait_ready2(a, 2)
    a.label("L_fallback")
    a("s_waitcnt vmcnt(0) lgkmcnt(0)")
    a("s_barrier")
    a(f"s_mov_b32 s{S_MODE}, 1")
    a(f"s_mov_b32 s{S_ROLE}, s2")
    a("v_mbcnt_lo_u32_b32 v0, -1, 0")
    a("v_mbcnt_hi_u32_b32 v0, -1, v0")
    a(f"s_lshl_b32 s{S_TMP}, s{S_WAVE}, 6")
    a(f"v_add_u32 v0, s{S_TMP}, v0")
    a.label("L_dispatch")
    rstamp(a, 0)
    dstamp(a, 9, 0, first=True)
    dstamp(a, 10, 0)
    a(f"s_cmp_ge_u32 s{S_ROLE}, 128")
    a("s_cbranch_scc1 L_f")
    a(f"s_cmp_ge_u32 s{S_ROLE}, 32")
    a("s_cbranch_scc1 L_h")
    a(f"s_mov_b32 s{chain.S_H}, s{S_ROLE}")
    chain.chain_pre2(a, stamps, True, expect)
    rstamp(a, 1)
    dstamp(a, 11, 0)
    if common.RSTAMPS:
        a(f"s_lshl_b32 s100, s{S_ROLE}, 8")
        a(f"s_add_u32 s100, s100, {hex(0x4180000 + 5 * 4)}")
        a(f"v_mov_b32 v31, s{chain.S_OK}")
        a(f"buffer_store_dword v31, off, {sr(S_WS, 4)}, s100")
    ok = a.newlabel("pre_ok")
    a(f"s_cmp_lg_u32 s{chain.S_OK}, 0")
    a(f"s_cbranch_scc1 {ok}")
    mode_check2(a, chain.T + 2, "L_fallback", expect, lane4=chain.V_FL)
    a.label(ok)
    if MOPT['fdelay'] == 2 or MOPT['hdelay'] == 3:
        a(f"s_lshl_b32 s{chain.S_T0}, s{chain.S_H}, 8")
        a(f"s_add_u32 s{chain.S_T0}, s{chain.S_T0}, {hex(WS_FLAG + FL_MEM + 4)}")
        a(f"v_mov_b32 v{chain.T + 2}, 1")
        a(f"buffer_store_dword v{chain.T + 2}, off, {sr(S_WS, 4)}, s{chain.S_T0} sc1")
    a(f"s_cmp_lg_u32 s{S_MODE}, 0")
    a("s_cbranch_scc1 L_chain_agent")
    chain.chain_body2(a, "", True, stamps)
    if MOPT['wb']:
        l = a.newlabel("wb_skip")
        a(f"s_cmp_lg_u32 s{S_WAVE}, 0")
        a(f"s_cbranch_scc1 {l}")
        if MOPT['wb'] == 1:
            a(f"s_cmp_lg_u32 s{chain.S_H}, 0")
            a(f"s_cbranch_scc1 {l}")
        a.raw("  buffer_wbl2 sc1")
        a.raw("  s_waitcnt vmcnt(0)")
        a.label(l)
    rstamp(a, 3)
    dstamp(a, 13, 0)
    a("s_branch L_end")
    a.label("L_chain_agent")
    chain.chain_body2(a, " sc1", True, stamps)
    a("s_branch L_end")
    a.label("L_h")
    split = MOPT['hsplit']
    if split:
        a(f"s_cmp_ge_u32 s{S_ROLE}, 96")
        a("s_cbranch_scc1 L_h2")
    hrole.h_prologue(a, 2 if split else 3, None if MOPT['hhold'] == -2 else MOPT['hhold'], MOPT['fsleep'], expect)
    rstamp(a, 1)
    dstamp(a, 15, 32)
    if not hrole.HOPT['e3']:
        mode_check2(a, 20, "L_fallback", expect)
    hrole.h_phase1(a, MOPT['hdelay'] == 3, MOPT['fsleep'], MOPT['hslow'], 2 if split else 3)
    rstamp(a, 2)
    if split:
        rstamp(a, 3)
        a("s_branch L_end")
        a.label("L_h2")
        hrole.h2_prologue(a)
        rstamp(a, 1)
        mode_check2(a, 20, "L_fallback", expect)
        rstamp(a, 2)
        hrole.h_phase2(a, 4)
    else:
        hrole.h_phase2(a)
    rstamp(a, 3)
    a("s_branch L_end")
    a.label("L_f")
    if MOPT['fdelay'] == 9:
        a("s_branch L_end")
    if MOPT['fskip'] >= 0:
        ready_flush(a, 20)
        a(f"s_cmp_ge_u32 s{S_ROLE}, {MOPT['fskip']}")
        a("s_cbranch_scc1 L_end")
    if frole.ntg() != 8:
        a(f"s_cmp_ge_u32 s{S_ROLE}, 224")
        a("s_cbranch_scc1 L_g")
    if MOPT['fdelay'] in (2, 3):
        mode_check2(a, 24, "L_fallback", expect)
        a(f"s_and_b32 s30, s{S_ROLE}, 7")
        a(f"s_lshl_b32 s30, s30, 10")
        a(f"s_add_u32 s30, s30, {hex(WS_FLAG + FL_MEM + 256 + (4 if MOPT['fdelay'] == 2 else 0))}")
        wave0_wait(a, 30, 1, 20, MOPT['fsleep'])
        a("s_barrier")
    frole.f_prologue(a)
    rstamp(a, 1)
    if MOPT['fdelay'] not in (2, 3):
        mode_check2(a, 24, "L_fallback", expect)
    frole.f_hidden(a)
    rstamp(a, 2)
    glast = frole.ntg() == 6 and frole.FOPT['fhalf'] and frole.FOPT['glast']
    a.label("L_fw")
    if frole.ntg() == 8:
        frole.f_gate(a)
    else:
        frole.f_gate_wait(a)
    rstamp(a, 4)
    frole.f_weights(a)
    rstamp(a, 5)
    if glast:
        a(f"s_cmp_ge_u32 s{S_ROLE}, 224")
        a("s_cbranch_scc1 L_glast")
    outmod = ' sc1' if MOPT['outsc'] else ''
    if frole.ntg() == 6 and frole.FOPT['fhalf']:
        sw = frole.FOPT['fsw']
        assert sw % 6 == 0
        if sw:
            frole.f_main(a, outmod, sw)
        if glast:
            a("s_branch L_f2")
            a.label("L_glast")
            frole.sleepy_wait(a, WS_FLAG + FL_OF + 128 * 58, 32, 64)
            a.label("L_f2")
        frole.f_main2(a, outmod, sw)
    else:
        frole.f_main(a, outmod)
    rstamp(a, 3)
    dstamp(a, 14, 255)
    if frole.ntg() != 8:
        a("s_branch L_end")
        a.label("L_g")
        mode_check2(a, 24, "L_fallback", expect)
        if MOPT['gdelay']:
            a(f"s_and_b32 s30, s{S_ROLE}, 7")
            a(f"s_lshl_b32 s30, s30, 10")
            a(f"s_add_u32 s30, s30, {hex(WS_FLAG + FL_MEM + 256 + 4)}")
            wave0_wait(a, 30, 1, 20, MOPT['fsleep'])
            a("s_barrier")
        rstamp(a, 1)
        frole.g_role(a)
        rstamp(a, 2)
        if glast:
            gwd = frole.FOPT['gwd']
            if gwd == 1:
                a(f"s_and_b32 s30, s{S_ROLE}, 7")
                a(f"s_lshl_b32 s30, s30, 10")
                a(f"s_add_u32 s30, s30, {hex(WS_FLAG + FL_MEM + 256 + 4)}")
                wave0_wait(a, 30, 1, 20, MOPT['fsleep'])
                a("s_barrier")
            elif gwd > 1:
                frole.sleepy_wait(a, WS_FLAG + FL_OF + 128 * gwd, 32, 64)
            frole.g_index(a)
            a("s_branch L_fw")
    a.label("L_end")
    a("s_waitcnt vmcnt(0)")
    a.label("L_exit")
    a("s_endpgm")
    n = a.finalize()
    print("instructions", a.count(), "nops", n)
    return a.text()


def wrap(body, lds=LDS):
    ref = open('cdna_kernels/' + KNAME[:-7] + '.s.ref').read()
    head = ref[:ref.index('; @launch')]
    return head + HEADER.format(name=KNAME, lds=lds) + body + FOOTER.format(name=KNAME)


if __name__ == "__main__":
    fb = 'fb' in sys.argv
    name = None
    for x in sys.argv[1:]:
        if '=' in x:
            k, v = x.split('=')
            if k == 'name':
                name = v
            elif k in MOPT:
                MOPT[k] = int(v)
            elif k in common.EOPT:
                common.EOPT[k] = int(v)
            elif k in proj.POPT:
                proj.POPT[k] = int(v)
            elif k in frole.FOPT:
                frole.FOPT[k] = int(v)
            elif k in hrole.HOPT:
                hrole.HOPT[k] = int(v)
            elif k == 'dp':
                hrole.HOPT['dpoll'] = chain.OPT['dpoll'] = common.EOPT['kvmark'] = int(v)
            else:
                assert k in chain.OPT, k
                chain.OPT[k] = int(v) if v.lstrip('-').isdigit() else (' ' + v[1:] if v.startswith('_') else v)
    import common
    common.RSTAMPS = 'rts' in sys.argv
    common.DSTAMPS = 'dts' in sys.argv
    txt = wrap(gen(force_fallback=fb, stamps='ts' in sys.argv))
    out = "out_main" + ("_fb" if fb else "") + ("_dts" if 'dts' in sys.argv else "")
    if name:
        out = "gen/" + name
    print("ok", build(txt, out), len(txt))
    if 'install' in sys.argv:
        open('cdna_kernels/' + KNAME[:-7] + '.s', 'w').write(txt)
```
